```python
import torch

def _softmax(x, axis=-1):
    return torch.softmax(x, dim=axis)
def _gelu(x):
    return torch.nn.functional.gelu(x, approximate="tanh")
def _silu(x):
    return torch.nn.functional.silu(x)
def _sigmoid(x):
    return torch.sigmoid(x)
def _layernorm(x, axis=-1, eps=1e-5):
    m = x.mean(dim=axis, keepdim=True)
    v = x.var(dim=axis, keepdim=True, unbiased=False)
    return (x - m) / torch.sqrt(v + eps)
def _scatter_add(tgt, idx, src, axis=0):
    return tgt.clone().index_add_(axis, idx, src)
def _segment_sum(src, seg, n):
    out = torch.zeros((n,) + src.shape[1:], dtype=src.dtype)
    return out.index_add_(0, seg, src)
def _pad(x, pw):
    flat = tuple(v for pair in reversed(pw) for v in pair)
    return torch.nn.functional.pad(x, flat)

kernel_name = 'gather_scatter__hybrid_graph_tf_nagphormer__graph'

def setup_inputs():

    _w = (lambda a: (lambda t: t.to(torch.bfloat16) if t.is_floating_point() else t)(torch.as_tensor(a)))
    N, deg, D = 25000, 32, 64
    E = N * deg
    src = (lambda lo, hi, *s: torch.randint(lo, hi, s))(0, N, E).to(torch.int64)
    dst = (lambda lo, hi, *s: torch.randint(lo, hi, s))(0, N, E).to(torch.int64)
    deg_cnt = torch.bincount(dst, minlength=N).to(float) + 1.0
    sc = 1.0 / D ** 0.5
    return {
        "x": _w((lambda *s: torch.randn(*s, dtype=torch.bfloat16) * 0.1)(N, D)),
        "src": _w(src),
        "dst": _w(dst),
        "deg_inv_sqrt": _w(1.0 / (lambda _x: torch.sqrt(torch.as_tensor(_x)))(deg_cnt)),
        "wq": _w((lambda *s: torch.randn(*s, dtype=torch.bfloat16) * 1.6)(D, D) * sc),
        "wk": _w((lambda *s: torch.randn(*s, dtype=torch.bfloat16) * 3.2)(D, D) * sc),
        "wv": _w((lambda *s: torch.randn(*s, dtype=torch.bfloat16) * 0.1)(D, D) * sc),
        "wo": _w((lambda *s: torch.randn(*s, dtype=torch.bfloat16) * 0.1)(D, D) * sc),
        "w_r": _w((lambda *s: torch.randn(*s, dtype=torch.bfloat16) * 0.1)(D)),
    }

def reference(x, src, dst, deg_inv_sqrt, wq, wk, wv, wo, w_r):
    N, D = x.shape[0], x.shape[1]
    K = 7
    h = x
    toks = [x]
    for _ in range(K):
        msg = h[src] * deg_inv_sqrt[src, None] * deg_inv_sqrt[dst, None]
        h = _segment_sum(msg, dst, N)
        toks.append(h)
    tok = torch.stack(toks, axis=1)
    t = _layernorm(tok, axis=-1)
    q   = torch.einsum('nkd,de->nke', t, wq)
    key = torch.einsum('nkd,de->nke', t, wk)
    v   = torch.einsum('nkd,de->nke', t, wv)
    scale = 1.0 / (D ** 0.5)
    attn = _softmax(torch.einsum('nkd,nld->nkl', q, key) * scale, axis=-1)
    o = torch.einsum('nkl,nld->nkd', attn, v)
    o = tok + torch.einsum('nkd,de->nke', o, wo)
    r = _layernorm(o, axis=-1)
    alpha = _softmax(torch.einsum('nkd,d->nk', r, w_r), axis=-1)
    return torch.einsum('nk,nkd->nd', alpha, o)
```

```python
import re
TRANS = ("v_exp_f32", "v_log_f32", "v_rcp_f32", "v_rsq_f32", "v_sqrt_f32", "v_sin_f32", "v_cos_f32", "v_rcp_iflag_f32")
def _regs(op):
    op = op.strip()
    if op.startswith("-") : op = op[1:]
    if op.startswith("|") and op.endswith("|"): op = op[1:-1]
    m = re.fullmatch(r"([vsa])(\d+)", op)
    if m: return {(m.group(1), int(m.group(2)))}
    m = re.fullmatch(r"([vsa])\[(\d+):(\d+)\]", op)
    if m: return {(m.group(1), i) for i in range(int(m.group(2)), int(m.group(3)) + 1)}
    if op in ("vcc", "vcc_lo", "vcc_hi"): return {("vcc", 0)}
    if op in ("exec", "exec_lo", "exec_hi"): return {("exec", 0)}
    if op == "m0": return {("m0", 0)}
    return set()
class Ins:
    __slots__ = ("text", "mn", "ops", "mods", "w", "r", "kind", "label", "targets", "srcC", "srcAB", "passes", "nop", "lanesel", "storedata", "sreads_vmem", "constreads")
def parse(text):
    I = Ins(); I.text = text; I.label = None; I.targets = []; I.w = set(); I.r = set(); I.kind = None
    I.srcC = set(); I.srcAB = set(); I.passes = 0; I.nop = 0; I.lanesel = set(); I.storedata = set(); I.sreads_vmem = set(); I.constreads = set()
    code = text.split(";")[0].strip()
    ann = text.split(";", 1)[1] if ";" in text else ""
    m = re.search(r"@to\s+([\w ,]+)", ann)
    if m: I.targets = [t for t in re.split(r"[ ,]+", m.group(1).strip()) if t]
    if not code or code.startswith("."):
        I.kind = "none"; I.mn = ""; return I
    if code.endswith(":"):
        I.kind = "label"; I.label = code[:-1]; I.mn = ""; return I
    parts = code.split(None, 1)
    mn = parts[0]; I.mn = mn
    rest = parts[1] if len(parts) > 1 else ""
    ops = []; cur = ""; depth = 0
    for ch in rest:
        if ch == "[": depth += 1
        if ch == "]": depth -= 1
        if ch == "," and depth == 0: ops.append(cur.strip()); cur = ""
        else: cur += ch
    if cur.strip(): ops.append(cur.strip())
    mods = ""
    if ops:
        last = ops[-1].split(None, 1)
        if len(last) > 1:
            ops[-1] = last[0]; mods = last[1]
    I.ops = ops; I.mods = mods
    R = [_regs(o) for o in ops]
    def allr(idx):
        s = set()
        for k in idx:
            if k < len(R): s |= R[k]
        return s
    n = len(ops)
    base = re.sub(r"_(e32|e64|dpp|sdwa)$", "", mn)
    if mn.startswith("v_mfma") or mn.startswith("v_smfmac"):
        I.kind = "mfma"; I.w = R[0]; I.srcAB = R[1] | R[2]; I.srcC = R[3]; I.r = I.srcAB | I.srcC
        I.passes = 8 if "32x32" in mn else 4
    elif mn.startswith("v_"):
        I.kind = "valu"
        if base.startswith("v_cmp"):
            I.w = R[0]; I.r = allr(range(1, n))
            if base.startswith("v_cmpx"): I.w = I.w | {("exec", 0)}
        elif base in ("v_readfirstlane_b32", "v_readlane_b32"):
            I.w = R[0]; I.r = allr(range(1, n))
            if base == "v_readlane_b32": I.lanesel = R[2]
        elif base == "v_writelane_b32":
            I.w = R[0]; I.r = allr(range(0, n)); I.lanesel = R[2]
        elif re.match(r"v_(add|sub|subrev|addc|subb|subbrev)_co_", base) or base.startswith("v_mad_u64") or base.startswith("v_div_scale"):
            I.w = R[0] | R[1]; I.r = allr(range(2, n))
        elif base.startswith("v_permlane") and "swap" in base:
            I.w = R[0] | R[1]; I.r = R[0] | R[1]
        elif base in ("v_fmac_f32", "v_mac_f32", "v_dot2c_f32_bf16", "v_pk_fmac_f16", "v_dot2c_f32_f16", "v_fmac_f64"):
            I.w = R[0]; I.r = allr(range(0, n))
        elif base == "v_nop":
            pass
        else:
            I.w = R[0]; I.r = allr(range(1, n))
            if "op_sel" in mods and re.search(r"op_sel:\[[01,]*1\]", mods) and base in ("v_mad_u32_u16", "v_mad_u16", "v_add_u16", "v_cvt_pk_bf16_f32") and False:
                pass
        if base == "v_cndmask_b32" and n == 3: I.r = I.r | {("vcc", 0)}
        if base in ("v_addc_co_u32", "v_subb_co_u32") and n == 4: I.r = I.r | {("vcc", 0)}
        I.constreads = {x for x in I.r if x[0] in ("s", "vcc")}
    elif mn.startswith("ds_"):
        I.kind = "ds"
        if mn.startswith("ds_read") or "_rtn" in mn or mn.startswith("ds_bpermute") or mn.startswith("ds_permute") or mn.startswith("ds_swizzle"):
            I.w = R[0]; I.r = allr(range(1, n))
        else:
            I.r = allr(range(0, n))
    elif mn.startswith("buffer_"):
        I.kind = "vmem"
        if mn.startswith("buffer_load"):
            if re.search(r"\blds\b", mods):
                I.r = allr(range(0, n))
            else:
                I.w = R[0]; I.r = allr(range(1, n))
                if "d16" in mn: I.r = I.r | R[0]
        elif mn.startswith("buffer_store"):
            I.r = allr(range(0, n))
            if "x3" in mn or "x4" in mn: I.storedata = R[0]
        elif mn.startswith("buffer_atomic"):
            I.r = allr(range(0, n))
            if "sc0" in mods: I.w = R[0]
        I.sreads_vmem = {x for x in I.r if x[0] == "s"}
    elif mn.startswith("global_") or mn.startswith("flat_"):
        I.kind = "vmem"
        if "load" in mn:
            I.w = R[0]; I.r = allr(range(1, n))
            if "d16" in mn: I.r = I.r | R[0]
        elif "store" in mn:
            I.r = allr(range(0, n))
            if "x3" in mn or "x4" in mn: I.storedata = R[1]
        else:
            I.r = allr(range(0, n))
        I.sreads_vmem = {x for x in I.r if x[0] == "s"}
    elif mn.startswith("s_"):
        I.kind = "salu"
        if mn == "s_nop":
            I.nop = int(ops[0], 0) + 1
        elif mn in ("s_branch",) or mn.startswith("s_cbranch"):
            I.kind = "branch"; I.targets = I.targets + [ops[0]]
        elif mn == "s_call_b64":
            I.kind = "branch"; I.targets = I.targets + [ops[1]]
        elif mn in ("s_setpc_b64", "s_swappc_b64"):
            I.kind = "branch"
        elif mn == "s_endpgm":
            I.kind = "end"
        elif mn.startswith("s_cmp") or mn.startswith("s_bitcmp") or mn in ("s_waitcnt", "s_barrier", "s_sleep", "s_setprio", "s_sendmsg"):
            I.r = allr(range(0, n))
        else:
            I.w = R[0]; I.r = allr(range(1, n))
            if "saveexec" in mn: I.w = I.w | {("exec", 0)}
    else:
        raise ValueError("unknown instr: " + text)
    return I
def states(I):
    if I.kind in ("none", "label"): return 0
    if I.nop: return I.nop
    return 1
def required(P, C):
    req = 0
    vg = lambda S: {x for x in S if x[0] in ("v", "a")}
    sg = lambda S: {x for x in S if x[0] in ("s", "vcc")}
    cb = re.sub(r"_(e32|e64|dpp|sdwa)$", "", C.mn)
    pb = re.sub(r"_(e32|e64|dpp|sdwa)$", "", P.mn)
    if P.kind == "valu":
        pw_s = sg(P.w); pw_v = vg(P.w)
        if pw_s:
            if C.kind == "valu" and (pw_s & C.constreads): req = max(req, 2)
            if C.kind == "valu" and (pw_s & C.lanesel): req = max(req, 4)
            if C.kind == "vmem" and (pw_s & C.sreads_vmem): req = max(req, 5)
            if C.kind == "mfma" and (pw_s & C.r): req = max(req, 2)
        if pw_v:
            if C.kind == "valu" and ("dpp" in C.mn or "quad_perm" in C.mods or "row_" in C.mods or "wave_" in C.mods) and (pw_v & C.r): req = max(req, 2)
            if cb in ("v_readfirstlane_b32", "v_readlane_b32") and (pw_v & C.r): req = max(req, 1)
            if cb.startswith("v_permlane") and (pw_v & C.r): req = max(req, 2)
            if C.kind == "mfma" and (pw_v & C.r): req = max(req, 2)
            if pb in TRANS and C.kind in ("valu", "mfma", "vmem", "ds") and cb not in TRANS and (pw_v & C.r): req = max(req, 1)
            if pb.startswith("v_dot") and C.kind in ("valu", "mfma", "vmem", "ds") and (pw_v & (C.r | C.w)):
                if not (cb == pb and C.ops[-1:] and (pw_v & _regs(C.ops[-1] if not pb.endswith("c_f32_bf16") else C.ops[0])) and not (pw_v & (_regs(C.ops[1]) | _regs(C.ops[2])))):
                    req = max(req, 3)
            if ("sdwa" in P.mn or "dst_sel" in P.mods or re.search(r"op_sel:\[[01],[01],[01],1\]", P.mods)) and C.kind in ("valu", "mfma") and (pw_v & (C.r | C.w)): req = max(req, 1)
        if ("exec", 0) in P.w:
            if C.kind == "mfma": req = max(req, 4)
            if C.kind == "valu" and ("dpp" in C.mn or "quad_perm" in C.mods or "row_" in C.mods): req = max(req, 5)
            if cb.startswith("v_permlane") or cb in ("v_readfirstlane_b32", "v_readlane_b32", "v_writelane_b32"): req = max(req, 4)
    if P.kind == "vmem" and P.storedata:
        if C.kind == "valu" and (P.storedata & C.w): req = max(req, 2)
        elif C.kind in ("mfma",) and (P.storedata & C.w): req = max(req, 2)
        elif C.kind in ("vmem", "ds") and (P.storedata & C.w): req = max(req, 1)
    if P.kind == "mfma":
        lat = {4: (6, 8, 3), 8: (10, 12, 7)}[P.passes]
        if C.kind == "mfma":
            if P.w & C.srcC:
                same = (P.w == C.srcC and P.passes == C.passes)
                if not same: req = max(req, lat[0])
            if P.w & C.srcAB: req = max(req, lat[1])
            if (P.w & C.w) and not (P.w == C.srcC and P.w == C.w): req = max(req, lat[1])
        elif C.kind in ("valu", "vmem", "ds"):
            if P.w & (C.r | C.w): req = max(req, lat[1])
            if C.kind == "valu" and (P.srcC & C.w): req = max(req, lat[2])
            if C.kind in ("vmem", "ds") and (P.srcC & C.w): req = max(req, lat[2])
    if P.kind == "salu" and ("m0", 0) in P.w:
        if (C.kind == "vmem" and re.search(r"\blds\b", getattr(C, "mods", ""))) or (C.kind == "ds" and "addtid" in C.mn): req = max(req, 1)
    return req
MAXD = 12
def fix_hazards(lines, verbose=False):
    ins = [parse(l) for l in lines]
    labels = {I.label: i for i, I in enumerate(ins) if I.kind == "label"}
    jumps_to = {}
    for i, I in enumerate(ins):
        for t in I.targets:
            if t in labels: jumps_to.setdefault(labels[t], []).append(i)
    extra = [0] * len(ins)
    def preds(i):
        out = []
        if i > 0:
            p = ins[i - 1]
            if not (p.kind == "end" or p.mn == "s_branch" or p.mn == "s_setpc_b64"): out.append(i - 1)
        if ins[i].kind == "label": out += jumps_to.get(i, [])
        return out
    n_ins = 0
    for i, C in enumerate(ins):
        if C.kind in ("none", "label", "salu", "branch", "end") : continue
        need = 0
        stack = [(p, 0) for p in preds(i)]
        seen = {}
        while stack:
            p, d = stack.pop()
            if seen.get(p, 99) <= d: continue
            seen[p] = d
            P = ins[p]
            if P.kind not in ("none", "label"):
                r = required(P, C)
                if r > d: need = max(need, r - d)
            d2 = d + states(P) + extra[p]
            if d2 < MAXD:
                for q in preds(p): stack.append((q, d2))
        if need:
            extra[i] = need; n_ins += 1
    out = []
    for i, I in enumerate(ins):
        k = extra[i]
        while k > 0:
            c = min(k, 16); out.append(f"s_nop {c-1}"); k -= c
        out.append(I.text)
    if verbose: print("hazard nops inserted:", n_ins)
    return out
```

```python
import sys, os
sys.path.insert(0, os.path.dirname(os.path.abspath(__file__)))
from asmlib import fix_hazards

NB = 250
NPB = 100
CH = 3200
WS_REC = 0x0
WS_TAB = 0x400000
WS_G = 0x800000
WS_GS = 0x400000
WS_WF = 0x2800000
WS_DUMP = 0x3000000
WS_STAMP = 0x2C00000
WS_BYTES = 0x8000000
SRD3 = "0x00020000"

class Gen:
    def __init__(self):
        self.L = []
        self.uid = 0
    def e(self, s):
        for line in s.strip("\n").split("\n"):
            line = line.strip()
            if line: self.L.append(line)
    def lab(self, p="L"):
        self.uid += 1
        return f"{p}_{self.uid}"

def srd(g, d, lo, hi, nbytes, add=None):
    if add:
        g.e(f"s_add_u32 s{d}, s{lo}, {add}")
        g.e(f"s_addc_u32 s{d+1}, s{hi}, 0")
    else:
        g.e(f"s_mov_b32 s{d}, s{lo}")
        g.e(f"s_mov_b32 s{d+1}, s{hi}")
    g.e(f"s_mov_b32 s{d+2}, {nbytes}")
    g.e(f"s_mov_b32 s{d+3}, {SRD3}")

def kernel_header(g, name):
    g.e(f".globl {name}")
    g.e(".p2align 8")
    g.e(f".type {name},@function")
    g.e(f"{name}:")

def kernel_desc(g, name, nv, ns):
    g.e('.section .rodata,"a"')
    g.e(".p2align 6")
    g.e(f".amdhsa_kernel {name}")
    g.L.append(f"  .amdhsa_next_free_vgpr {nv}")
    g.L.append(f"  .amdhsa_next_free_sgpr {ns}")
    g.L.append(f"  .amdhsa_accum_offset {(nv+3)//4*4}")
    g.L.append("  .amdhsa_group_segment_fixed_size 0")
    g.L.append("  .amdhsa_kernarg_size 96")
    g.L.append("  .amdhsa_user_sgpr_count 2")
    g.L.append("  .amdhsa_user_sgpr_kernarg_segment_ptr 1")
    g.L.append("  .amdhsa_system_sgpr_workgroup_id_x 1")
    g.e(".end_amdhsa_kernel")
    g.e(".text")

K1_LDS = 2048 + 12800
def gen_k1(g):
    e = g.e
    kernel_header(g, "bin_kernel")
    e(f"s_cmp_gt_u32 s2, {NB}")
    e("s_cbranch_scc1 K1_END")
    e("s_load_dwordx8 s[4:11], s[0:1], 0")
    e("s_load_dwordx2 s[12:13], s[0:1], 88")
    e(f"s_cmp_eq_u32 s2, {NB}")
    e("s_cbranch_scc1 K1_W")
    e("v_lshlrev_b32 v1, 4, v0")
    e("v_lshlrev_b32 v2, 2, v0")
    e("v_mov_b32 v3, 0")
    e("s_movk_i32 s14, 0x100")
    e("v_cmp_gt_u32 vcc, s14, v0")
    e("s_and_saveexec_b64 s[40:41], vcc")
    e("ds_write_b32 v2, v3")
    e("s_mov_b64 exec, s[40:41]")
    e("s_movk_i32 s14, 800")
    e("v_cmp_gt_u32 vcc, s14, v0")
    e("s_mov_b64 s[42:43], vcc")
    e("s_mul_i32 s14, s2, 12800")
    e("s_mul_i32 s15, s2, 200")
    e("v_lshrrev_b32 v4, 3, v0")
    e("v_lshlrev_b32 v4, 1, v4")
    e("s_waitcnt lgkmcnt(0)")
    srd(g, 16, 6, 7, 3200000)
    srd(g, 20, 8, 9, 3200000)
    srd(g, 24, 4, 5, 3200000)
    srd(g, 28, 10, 11, 50000)
    srd(g, 32, 12, 13, hex(WS_BYTES))
    srd(g, 36, 12, 13, NB * 1024, add=hex(WS_TAB))
    e("s_mov_b64 exec, s[42:43]")
    e("s_cbranch_execz K1_NOLD")
    e("buffer_load_dwordx4 v[8:11], v1, s[20:23], s14 offen")
    e("buffer_load_dwordx4 v[12:15], v1, s[16:19], s14 offen")
    e("buffer_load_dwordx4 v[16:19], v1, s[24:27], s14 offen")
    e("buffer_load_ushort v20, v4, s[28:31], s15 offen")
    e("v_mov_b32 v24, -1"); e("v_mov_b32 v25, -1"); e("v_mov_b32 v26, -1"); e("v_mov_b32 v27, -1")
    e(f"s_add_u32 s44, s14, {hex(WS_G + WS_GS)}")
    e("buffer_store_dwordx4 v[24:27], v1, s[32:35], s44 offen")
    e("K1_NOLD:")
    e("s_mov_b64 exec, -1")
    e("s_waitcnt lgkmcnt(0)")
    e("s_barrier")
    e("s_mov_b64 exec, s[42:43]")
    e("s_cbranch_execz K1_B1")
    e("s_waitcnt vmcnt(4)")
    e("s_movk_i32 s45, 5243")
    e("v_mov_b32 v21, 1")
    for u in range(4):
        e(f"v_mul_u32_u24 v{28+u}, s45, v{8+u}")
        e(f"v_lshrrev_b32 v{28+u}, 19, v{28+u}")
        e(f"v_mul_u32_u24 v22, 100, v{28+u}")
        e(f"v_sub_u32 v{8+u}, v{8+u}, v22")
        e(f"v_lshlrev_b32 v{28+u}, 2, v{28+u}")
        e(f"ds_add_rtn_u32 v{32+u}, v{28+u}, v21")
    e("s_waitcnt vmcnt(3)")
    for u in range(4):
        e(f"v_lshl_or_b32 v{8+u}, v{8+u}, 16, v{12+u}")
    e("s_waitcnt vmcnt(1)")
    e("v_lshlrev_b32 v20, 16, v20")
    for r in range(4):
        e(f"v_lshlrev_b32 v22, 16, v{16+r}")
        e(f"v_and_b32 v23, 0xffff0000, v{16+r}")
        e("v_mul_f32 v22, v22, v20")
        e("v_mul_f32 v23, v23, v20")
        e(f"v_cvt_pk_bf16_f32 v{16+r}, v22, v23")
    e(f"s_add_u32 s44, s14, {hex(WS_G)}")
    e("buffer_store_dwordx4 v[16:19], v1, s[32:35], s44 offen")
    e("K1_B1:")
    e("s_mov_b64 exec, -1")
    e("s_waitcnt lgkmcnt(0)")
    e("s_barrier")
    e("v_cmp_gt_u32 vcc, 64, v0")
    e("s_and_saveexec_b64 s[40:41], vcc")
    e("s_cbranch_execz K1_B2")
    e("ds_read_b128 v[40:43], v1")
    e("s_waitcnt lgkmcnt(0)")
    e("v_add_u32 v44, v40, v41")
    e("v_add_u32 v45, v44, v42")
    e("v_add_u32 v46, v45, v43")
    e("v_mov_b32 v47, v46")
    for sh in (1, 2, 4, 8):
        e(f"v_add_u32_dpp v47, v47, v47 row_shr:{sh} row_mask:0xf bank_mask:0xf bound_ctrl:0")
    e("v_add_u32_dpp v47, v47, v47 row_bcast:15 row_mask:0xa bank_mask:0xf")
    e("v_add_u32_dpp v47, v47, v47 row_bcast:31 row_mask:0xc bank_mask:0xf")
    e("v_sub_u32 v48, v47, v46")
    e("v_add_u32 v49, v48, v40")
    e("v_add_u32 v50, v48, v44")
    e("v_add_u32 v51, v48, v45")
    e("ds_write_b128 v1, v[48:51] offset:1024")
    e("s_lshl_b32 s46, s2, 2")
    e("v_lshlrev_b32 v52, 12, v0")
    for u in range(4):
        e(f"v_lshl_or_b32 v{40+u}, v{40+u}, 16, v{48+u}")
        e(f"buffer_store_dword v{40+u}, v52, s[36:39], s46 offen offset:{1024*u}")
    e("K1_B2:")
    e("s_mov_b64 exec, -1")
    e("s_waitcnt lgkmcnt(0)")
    e("s_barrier")
    e("s_mov_b64 exec, s[42:43]")
    e("s_cbranch_execz K1_B3")
    for u in range(4):
        e(f"ds_read_b32 v{36+u}, v{28+u} offset:1024")
    e("s_waitcnt lgkmcnt(0)")
    for u in range(4):
        e(f"v_add_u32 v{36+u}, v{36+u}, v{32+u}")
        e(f"v_lshlrev_b32 v{36+u}, 2, v{36+u}")
        e(f"ds_write_b32 v{36+u}, v{8+u} offset:2048")
    e("K1_B3:")
    e("s_mov_b64 exec, -1")
    e("s_waitcnt lgkmcnt(0)")
    e("s_barrier")
    e("s_mov_b64 exec, s[42:43]")
    e("s_cbranch_execz K1_END")
    e("ds_read_b128 v[40:43], v1 offset:2048")
    e("s_waitcnt lgkmcnt(0)")
    e("buffer_store_dwordx4 v[40:43], v1, s[32:35], s14 offen")
    e("s_endpgm")
    e("K1_W:")
    e("s_load_dwordx8 s[16:23], s[0:1], 32")
    e("v_lshrrev_b32 v1, 6, v0")
    e("v_and_b32 v2, 63, v0")
    e("v_readfirstlane_b32 s3, v1")
    e("v_lshrrev_b32 v3, 4, v2")
    e("v_and_b32 v4, 15, v2")
    e("s_lshr_b32 s24, s3, 2")
    e("s_and_b32 s25, s3, 3")
    e("v_lshrrev_b32 v5, 2, v4")
    e("v_and_b32 v6, 3, v4")
    e("v_lshl_add_u32 v7, v5, 4, v6")
    e("s_lshl_b32 s26, s25, 2")
    e("s_lshl_b32 s27, s24, 2")
    e("v_add_u32 v8, s26, v7")
    e("v_add_u32 v9, s27, v7")
    e("v_lshlrev_b32 v10, 7, v8")
    e("v_lshl_add_u32 v10, v3, 4, v10")
    e("v_lshlrev_b32 v11, 7, v9")
    e("v_lshl_add_u32 v11, v3, 4, v11")
    e("s_waitcnt lgkmcnt(0)")
    srd(g, 28, 16, 17, 8192)
    srd(g, 32, 18, 19, 8192)
    srd(g, 36, 20, 21, 8192)
    srd(g, 40, 22, 23, 8192)
    srd(g, 44, 12, 13, 16384, add=hex(WS_WF))
    e("buffer_load_dwordx4 v[16:19], v10, s[28:31], 0 offen")
    e("buffer_load_dwordx4 v[20:23], v10, s[28:31], 0 offen offset:64")
    e("buffer_load_dwordx4 v[24:27], v11, s[32:35], 0 offen")
    e("buffer_load_dwordx4 v[28:31], v11, s[32:35], 0 offen offset:64")
    e("buffer_load_dwordx4 v[32:35], v10, s[36:39], 0 offen")
    e("buffer_load_dwordx4 v[36:39], v10, s[36:39], 0 offen offset:64")
    e("v_lshlrev_b32 v12, 10, v3")
    e("v_lshl_add_u32 v12, v9, 1, v12")
    e("s_movk_i32 s48, 0x1000")
    for sp in range(2):
        for j in range(8):
            off = (32 * sp + j) * 128
            so = "0"
            if off >= 4096:
                so = "s48"; off -= 4096
            e(f"buffer_load_ushort v{60 + sp*8 + j}, v12, s[40:43], {so} offen offset:{off}")
    for i in range(8): e(f"v_mov_b32 v{48+i}, 0")
    e("s_waitcnt vmcnt(0)")
    for r in range(8):
        e(f"v_lshl_or_b32 v{40+r}, v{61+2*r}, 16, v{60+2*r}")
    e("v_mfma_f32_16x16x32_bf16 v[48:51], v[16:19], v[24:27], v[48:51]")
    e("v_mfma_f32_16x16x32_bf16 v[52:55], v[32:35], v[40:43], v[52:55]")
    e("v_mfma_f32_16x16x32_bf16 v[48:51], v[20:23], v[28:31], v[48:51]")
    e("v_mfma_f32_16x16x32_bf16 v[52:55], v[36:39], v[44:47], v[52:55]")
    e("s_mov_b32 s49, 0x3e38aa3b")
    for b in range(4): e(f"v_mul_f32 v{48+b}, s49, v{48+b}")
    e("v_cvt_pk_bf16_f32 v56, v48, v49"); e("v_cvt_pk_bf16_f32 v57, v50, v51")
    e("v_cvt_pk_bf16_f32 v58, v52, v53"); e("v_cvt_pk_bf16_f32 v59, v54, v55")
    e("s_lshl_b32 s50, s24, 11")
    e("s_lshr_b32 s51, s25, 1"); e("s_lshl_b32 s51, s51, 10"); e("s_add_u32 s50, s50, s51")
    e("s_and_b32 s51, s25, 1"); e("s_lshl_b32 s51, s51, 3"); e("s_add_u32 s50, s50, s51")
    e("v_lshlrev_b32 v13, 4, v2")
    e("buffer_store_dwordx2 v[56:57], v13, s[44:47], s50 offen")
    e("s_add_u32 s50, s50, 8192")
    e("buffer_store_dwordx2 v[58:59], v13, s[44:47], s50 offen")
    e("K1_END:")
    e("s_endpgm")

def finish(g, launches, header_src):
    head = []
    for line in open(header_src).read().split("\n"):
        if line.startswith("; @launch") or line.startswith(".amdgcn_target"): break
        if line.startswith("; Override") or line.startswith("; grid=ceil"): continue
        head.append(line)
    out = head + launches + ['.amdgcn_target "amdgcn-amd-amdhsa--gfx950"', ".text"] + fix_hazards(g.L, True)
    return "\n".join(out) + "\n"
```

```python
from gen import *
import gen_p as P

vLC, vSW, vSTG, vNB = 0, 1, 2, 3
ID, Q25, SA = 4, 6, 8
TOK, TT, ACC, U, S, PP, PK, ZR = 16, 24, 32, 48, 56, 60, 62, 63
WM, WV = 64, 96
sPM = 78
sC = 80

def m32(d, a, b, c):
    cc = "0" if c is None else f"v[{c}:{c+3}]"
    return f"v_mfma_f32_16x16x32_bf16 v[{d}:{d+3}], v[{a}:{a+3}], v[{b}:{b+3}], {cc}"
def m16(d, a, b, c):
    cc = "0" if c is None else f"v[{c}:{c+3}]"
    return f"v_mfma_f32_16x16x16_bf16 v[{d}:{d+3}], v[{a}:{a+1}], v[{b}:{b+1}], {cc}"

def red_q(e, x, tmp, op):
    e(f"v_mov_b32 v{tmp}, v{x}")
    e(f"v_permlane16_swap_b32 v{x}, v{tmp}")
    e(f"{op} v{x}, v{x}, v{tmp}")
    e(f"v_mov_b32 v{tmp}, v{x}")
    e(f"v_permlane32_swap_b32 v{x}, v{tmp}")
    e(f"{op} v{x}, v{x}, v{tmp}")
def red_16(e, x, tmp, op):
    e(f"v_mov_b32 v{tmp}, v{x}")
    e(f"v_permlane16_swap_b32 v{x}, v{tmp}")
    e(f"{op} v{x}, v{x}, v{tmp}")

def gen_final(g):
    e = g.e
    sWR = P.sWR
    e("v_mbcnt_lo_u32_b32 v20, -1, 0")
    e("v_mbcnt_hi_u32_b32 v20, -1, v20")
    e("v_lshrrev_b32 v21, 4, v20")
    e("v_and_b32 v22, 15, v20")
    e("v_lshlrev_b32 v23, 5, v21")
    e(f"buffer_load_dwordx4 v[24:27], v23, s[{sWR}:{sWR+3}], 0 offen")
    e(f"buffer_load_dwordx4 v[28:31], v23, s[{sWR}:{sWR+3}], 0 offen offset:16")
    e("v_lshlrev_b32 v32, 4, v20")
    e(f"v_add_u32 v32, {P.L_WF}, v32")
    for f in range(16):
        e(f"ds_read_b128 v[{WM+4*f}:{WM+4*f+3}], v32 offset:{1024*f}")
    e("v_lshrrev_b32 v33, 3, v22")
    e("s_lshl_b32 s62, s3, 5")
    e(f"s_add_u32 s62, s62, {P.L_NODEOF}")
    e("v_lshl_add_u32 v34, v33, 2, s62")
    for t in range(4):
        e(f"ds_read_b32 v{36+t}, v34 offset:{8*t}")
    e("v_and_b32 v35, 7, v22")
    e(f"v_mul_u32_u24 v{vLC}, {P.TOKROW}, v35" if P.TOKROW <= 64 else f"s_movk_i32 s63, {P.TOKROW}\nv_mul_u32_u24 v{vLC}, s63, v35")
    e(f"v_lshl_add_u32 v{vLC}, v21, 5, v{vLC}")
    if P.L_TOK: e(f"v_add_u32 v{vLC}, {P.L_TOK}, v{vLC}")
    e("v_lshrrev_b32 v40, 2, v22")
    e("v_and_b32 v41, 3, v22")
    e("v_cmp_eq_u32 s[62:63], v40, v21")
    e("v_and_b32 v42, 1, v41")
    e("v_lshlrev_b32 v42, 4, v42")
    e("v_mov_b32 v43, 0x3f80")
    e("v_lshlrev_b32 v43, v42, v43")
    e("v_cndmask_b32 v43, 0, v43, s[62:63]")
    e("v_cmp_gt_u32 vcc, 2, v41")
    e(f"v_cndmask_b32 v{ID}, 0, v43, vcc")
    e(f"v_cndmask_b32 v{ID+1}, v43, 0, vcc")
    e(f"v_mov_b32 v{Q25}, 0x3e803e80"); e(f"v_mov_b32 v{Q25+1}, 0x3e803e80")
    e(f"v_mov_b32 v{ZR}, 0")
    e("v_lshrrev_b32 v44, 1, v21")
    e(f"v_cmp_eq_u32 s[{sPM}:{sPM+1}], v44, v33")
    e(f"s_mul_i32 s64, s3, {P.GSZ}")
    e(f"s_add_u32 s64, s64, {P.L_STREAM}")
    e("v_lshl_add_u32 v45, v40, 4, v41")
    e("v_and_b32 v46, 1, v21")
    e("v_lshl_add_u32 v45, v46, 2, v45")
    e("v_lshlrev_b32 v45, 1, v45")
    e("v_lshl_add_u32 v45, v44, 7, v45")
    e(f"v_add_u32 v{vSTG}, s64, v45")
    e(f"s_mov_b32 s{sC}, 0x3c800000")
    e(f"s_mov_b32 s{sC+1}, 0x3727c5ac")
    e(f"s_mov_b32 s{sC+2}, 0xffff0000")
    e(f"s_mov_b32 s{sC+3}, 0x3fb8aa3b")
    e("v_cmp_eq_u32 s[62:63], 0, v41")
    e("v_cmp_eq_u32 s[64:65], 1, v41")
    e("v_mov_b32 v47, 0x3f803f80")
    e("s_waitcnt vmcnt(0)")
    for r in range(8):
        e(f"v_cndmask_b32 v{SA+r}, 0, v47, s[62:63]")
        e(f"v_cndmask_b32 v{SA+r}, v{SA+r}, v{24+r}, s[64:65]")
    for r in range(4): e(f"v_mov_b32 v{48+r}, 0x3f803f80")
    e(m32(52, SA, 48, None)); e(m32(52, SA + 4, 48, 52))
    e("s_waitcnt lgkmcnt(0)")
    e(f"v_lshl_or_b32 v{vNB}, v37, 8, v36")
    e(f"v_lshl_or_b32 v{vNB}, v38, 16, v{vNB}")
    e(f"v_lshl_or_b32 v{vNB}, v39, 24, v{vNB}")
    e(f"v_mov_b32 v{vSW}, v53")
    e(f"s_movk_i32 s{sC+4}, {P.TOKNODE}")
    def load_tok(t):
        e(f"v_bfe_u32 v{S}, v{vNB}, {8*t}, 8")
        e(f"v_mad_u32_u24 v{S}, v{S}, s{sC+4}, v{vLC}")
        e(f"ds_read_b128 v[{TOK}:{TOK+3}], v{S}")
        e(f"ds_read_b128 v[{TOK+4}:{TOK+7}], v{S} offset:16")
    for t in range(4):
        load_tok(t)
        e("s_waitcnt lgkmcnt(0)")
        e(m32(S, SA, TOK, None)); e(m32(S, SA + 4, TOK + 4, S))
        for T in range(4): e(m16(ACC + 4*T, ID, TOK + 2*T, None))
        q = U
        e(f"v_dot2_f32_bf16 v{q}, v{TOK}, v{TOK}, 0")
        e(f"v_dot2_f32_bf16 v{q+1}, v{TOK+1}, v{TOK+1}, 0")
        for r in range(2, 8):
            e(f"v_dot2_f32_bf16 v{q+r%2}, v{TOK+r}, v{TOK+r}, v{q+r%2}")
        e(f"v_add_f32 v{q}, v{q}, v{q+1}")
        red_q(e, q, q + 1, "v_add_f32")
        e(f"v_mul_f32 v{q+2}, s{sC}, v{S}")
        e(f"v_mul_f32 v{q+3}, v{q+2}, v{q+2}")
        e(f"v_fma_f32 v{q}, v{q}, s{sC}, -v{q+3}")
        e(f"v_max_f32 v{q}, 0, v{q}")
        e(f"v_add_f32 v{q}, s{sC+1}, v{q}")
        e(f"v_rsq_f32 v{q+4}, v{q}")
        e(f"v_mul_f32 v{q+6}, v{q+2}, v{q+4}")
        e(f"v_sub_f32 v{q+6}, 0, v{q+6}")
        for h in range(8):
            a = ACC + 2*h
            e(f"v_pk_fma_f32 v[{a}:{a+1}], v[{a}:{a+1}], v[{q+4}:{q+5}], v[{q+6}:{q+7}] op_sel_hi:[1,0,0]")
        for h in range(8):
            e(f"v_cvt_pk_bf16_f32 v{TT+h}, v{ACC+2*h}, v{ACC+2*h+1}")
        for T in range(4): e(m32(ACC + 4*T, WM + 8*T, TT, None))
        for T in range(4): e(m32(ACC + 4*T, WM + 8*T + 4, TT + 4, ACC + 4*T))
        for h in range(8):
            e(f"v_cvt_pk_bf16_f32 v{U+h}, v{ACC+2*h}, v{ACC+2*h+1}")
        e(m32(S, TT, U, None)); e(m32(S, TT + 4, U + 4, S))
        for T in range(4): e(m32(ACC + 4*T, TT, WV + 8*T, None))
        for T in range(4): e(m32(ACC + 4*T, TT + 4, WV + 8*T + 4, ACC + 4*T))
        e(f"v_max3_f32 v{PP}, v{S}, v{S+1}, v{S+2}")
        e(f"v_max_f32 v{PP}, v{PP}, v{S+3}")
        red_16(e, PP, PP + 1, "v_max_f32")
        for b in range(4): e(f"v_sub_f32 v{S+b}, v{S+b}, v{PP}")
        for b in range(4): e(f"v_exp_f32 v{S+b}, v{S+b}")
        e(f"v_add_f32 v{PP}, v{S}, v{S+1}")
        e(f"v_add_f32 v{PP+1}, v{S+2}, v{S+3}")
        e(f"v_add_f32 v{PP}, v{PP}, v{PP+1}")
        red_16(e, PP, PP + 1, "v_add_f32")
        e(f"v_rcp_f32 v{PP}, v{PP}")
        e(f"v_cndmask_b32 v{PP}, 0, v{PP}, s[{sPM}:{sPM+1}]")
        e(f"v_pk_mul_f32 v[{S}:{S+1}], v[{S}:{S+1}], v[{PP}:{PP+1}] op_sel_hi:[1,0]")
        e(f"v_pk_mul_f32 v[{S+2}:{S+3}], v[{S+2}:{S+3}], v[{PP}:{PP+1}] op_sel_hi:[1,0]")
        e(f"v_cvt_pk_bf16_f32 v{PP}, v{S}, v{S+1}")
        e(f"v_cvt_pk_bf16_f32 v{PP+1}, v{S+2}, v{S+3}")
        for h in range(8):
            e(f"v_cvt_pk_bf16_f32 v{U+h}, v{ACC+2*h}, v{ACC+2*h+1}")
        for T in range(4): e(m16(ACC + 4*T, U + 2*T, PP, None))
        for T in range(4): e(m16(ACC + 4*T, ID, TOK + 2*T, ACC + 4*T))
        for h in range(8):
            e(f"v_cvt_pk_bf16_f32 v{TT+h}, v{ACC+2*h}, v{ACC+2*h+1}")
        for T in range(4): e(m16(ACC + 4*T, PP, U + 2*T, None))
        for T in range(4): e(m16(ACC + 4*T, TOK + 2*T, ID, ACC + 4*T))
        e(m32(S, SA, TT, None)); e(m32(S, SA + 4, TT + 4, S))
        q = U
        e(f"v_dot2_f32_bf16 v{PP}, v{TT}, v{TT}, 0")
        e(f"v_dot2_f32_bf16 v{PP+1}, v{TT+1}, v{TT+1}, 0")
        for r in range(2, 8):
            e(f"v_dot2_f32_bf16 v{PP+r%2}, v{TT+r}, v{TT+r}, v{PP+r%2}")
        e(f"v_add_f32 v{q}, v{PP}, v{PP+1}")
        red_q(e, q, q + 1, "v_add_f32")
        e(f"v_mul_f32 v{q+2}, s{sC}, v{S}")
        e(f"v_mul_f32 v{q+3}, v{q+2}, v{q+2}")
        e(f"v_fma_f32 v{q}, v{q}, s{sC}, -v{q+3}")
        e(f"v_max_f32 v{q}, 0, v{q}")
        e(f"v_add_f32 v{q}, s{sC+1}, v{q}")
        e(f"v_rsq_f32 v{q+4}, v{q}")
        e(f"v_fma_f32 v{q+5}, -v{q+2}, v{vSW}, v{S+1}")
        e(f"v_mul_f32 v{q+5}, s{sC+3}, v{q+5}")
        e(f"v_mul_f32 v{q}, v{q+4}, v{q+5}")
        e(f"v_max_f32_dpp v{q+1}, v{q}, v{q} quad_perm:[1,0,3,2] row_mask:0xf bank_mask:0xf")
        e(f"v_max_f32_dpp v{q+1}, v{q+1}, v{q+1} quad_perm:[2,3,0,1] row_mask:0xf bank_mask:0xf")
        e(f"v_max_f32_dpp v{q+1}, v{q+1}, v{q+1} row_half_mirror row_mask:0xf bank_mask:0xf")
        e(f"v_sub_f32 v{q}, v{q}, v{q+1}")
        e(f"v_exp_f32 v{q}, v{q}")
        e(f"v_add_f32_dpp v{q+1}, v{q}, v{q} quad_perm:[1,0,3,2] row_mask:0xf bank_mask:0xf")
        e(f"v_add_f32_dpp v{q+1}, v{q+1}, v{q+1} quad_perm:[2,3,0,1] row_mask:0xf bank_mask:0xf")
        e(f"v_add_f32_dpp v{q+1}, v{q+1}, v{q+1} row_half_mirror row_mask:0xf bank_mask:0xf")
        e(f"v_rcp_f32 v{q+1}, v{q+1}")
        e(f"v_mul_f32 v{q}, v{q}, v{q+1}")
        e(f"v_and_b32 v{q+1}, s{sC+2}, v{q}")
        e(f"v_sub_f32 v{q}, v{q}, v{q+1}")
        e(f"v_cvt_pk_bf16_f32 v{PK}, v{q+1}, v{q}")
        e(m16(S, PK, Q25, None))
        for T in range(4):
            a = ACC + 4*T
            e(f"v_pk_mul_f32 v[{a}:{a+1}], v[{a}:{a+1}], v[{S}:{S+1}]")
            e(f"v_pk_fma_f32 v[{a}:{a+1}], v[{a+2}:{a+3}], v[{S+2}:{S+3}], v[{a}:{a+1}]")
            e(f"v_add_f32 v{a}, v{a}, v{a+1}")
        e(f"v_permlane16_swap_b32 v{ACC}, v{ACC+4}")
        e(f"v_permlane16_swap_b32 v{ACC+8}, v{ACC+12}")
        e(f"v_add_f32 v{ACC}, v{ACC}, v{ACC+4}")
        e(f"v_add_f32 v{ACC+8}, v{ACC+8}, v{ACC+12}")
        e(f"v_cvt_pk_bf16_f32 v{ACC}, v{ACC}, v{ACC+8}")
        e(f"ds_write_b16 v{vSTG}, v{ACC} offset:{256*t}")
        e(f"ds_write_b16_d16_hi v{vSTG}, v{ACC} offset:{256*t + 16}")
    e("v_mbcnt_lo_u32_b32 v20, -1, 0")
    e("v_mbcnt_hi_u32_b32 v20, -1, v20")
    e("v_lshrrev_b32 v21, 3, v20")
    e("s_lshl_b32 s62, s3, 5")
    e(f"s_add_u32 s62, s62, {P.L_NODEOF}")
    e("v_lshl_add_u32 v22, v21, 2, s62")
    e("ds_read_b32 v23, v22")
    e(f"s_mul_i32 s64, s3, {P.GSZ}")
    e(f"s_add_u32 s64, s64, {P.L_STREAM}")
    e("v_lshl_add_u32 v24, v20, 4, s64")
    e("s_waitcnt lgkmcnt(0)")
    e("ds_read_b128 v[28:31], v24")
    e("s_mul_i32 s63, s2, 100")
    e("v_add_u32 v23, s63, v23")
    e("v_and_b32 v25, 7, v20")
    e("v_lshlrev_b32 v25, 4, v25")
    e("v_lshl_add_u32 v23, v23, 7, v25")
    e("s_lshl_b32 s63, s3, 3")
    e("v_add_u32 v21, s63, v21")
    e("s_movk_i32 s63, 100")
    e("v_cmp_gt_u32 vcc, s63, v21")
    e("s_mov_b64 exec, vcc")
    e("s_waitcnt lgkmcnt(0)")
    e(f"buffer_store_dwordx4 v[28:31], v23, s[{P.sOUT}:{P.sOUT+3}], 0 offen")
```

```python
from gen import *

PMAX = 80
NBLK = PMAX // 8
GSZ = PMAX * 16
NGRP = 13
TOKROW = 144
TOKNODE = 8 * TOKROW
L_TOK = 0
L_STREAM = 100 * TOKNODE
L_WF = L_STREAM + NGRP * GSZ + 512
L_KEY = L_WF + 16384
L_DUMMY = L_KEY + 512
L_NODEOF = L_DUMMY + 256
L_DEGOF = L_NODEOF + 512
L_INFO = L_DEGOF + 512
L_DISF = L_INFO + 512
L_SLOW = L_DISF + 512
P_LDS = L_SLOW + 64
RING = 16
TRYMAX = 200000
NHOPS = 7
FORCESLOW = False
SLEEP = 2

sWS, sGI, sGO, sX, sDIS, sTAB, sOUT, sWR = 20, 24, 28, 32, 36, 40, 44, 48
sK, sP0, sEXIT, sTRY = 52, 53, 54, 55
sOFFJ = 56
sM800 = 60
sTMP = 62
sVALID = 70
sI1, sI2 = 72, 73
s128 = 74
sRET = 76
sSLOW = 75
vTID, vLANE, vL16, vIDXA = 0, 1, 2, 3
vA1, vA2, vAC1, vAC2 = 4, 8, 12, 16
vMAX, vT0, vT1 = 20, 21, 22
vIDX = 24
vRING = 40
vOFF = 104
vDIS1, vDIS2, vDIS3, vTOKA, vGOFF = 120, 121, 122, 123, 124
vF = 40

def tree(g, sreg, lo, hi, label):
    if lo == hi:
        g.e(f"s_branch {label(lo)}"); return
    mid = (lo + hi + 1) // 2
    l = g.lab("TR")
    g.e(f"s_cmp_ge_u32 s{sreg}, {mid}")
    g.e(f"s_cbranch_scc1 {l}")
    tree(g, sreg, lo, mid - 1, label)
    g.e(f"{l}:")
    tree(g, sreg, mid, hi, label)

def gen_p(g, dump=False, final=True, sc1=True, dbgstat=False):
    e = g.e
    SC = " sc1" if sc1 else ""
    kernel_header(g, "graph_kernel")
    e(f"s_cmp_ge_u32 s2, {NB}")
    e("s_cbranch_scc1 P_END")
    e("s_load_dwordx8 s[4:11], s[0:1], 0")
    e("s_load_dwordx2 s[12:13], s[0:1], 88")
    e("s_load_dwordx2 s[14:15], s[0:1], 72")
    e("s_load_dwordx2 s[16:17], s[0:1], 64")
    e("s_load_dwordx2 s[18:19], s[0:1], 80")
    e(f"v_and_b32 v{vLANE}, 63, v0")
    e("v_lshrrev_b32 v40, 6, v0")
    e("v_readfirstlane_b32 s3, v40")
    e(f"s_movk_i32 s{s128}, 128")
    e("v_lshlrev_b32 v41, 2, v0")
    e("v_sub_u32 v42, 255, v0")
    e("s_movk_i32 s62, 100")
    e("v_cmp_gt_u32 vcc, s62, v0")
    e("v_cndmask_b32 v42, 0, v42, vcc")
    e("v_mov_b32 v43, 0")
    e("s_movk_i32 s62, 128")
    e("v_cmp_gt_u32 vcc, s62, v0")
    e("s_and_saveexec_b64 s[64:65], vcc")
    e(f"ds_write_b32 v41, v42 offset:{L_KEY - 0}" if L_KEY < 65536 else
      f"v_add_u32 v44, {L_KEY}, v41\nds_write_b32 v44, v42\nds_write_b32 v44, v43 offset:{L_NODEOF-L_KEY}\nds_write_b32 v44, v43 offset:{L_DEGOF-L_KEY}\nds_write_b32 v44, v43 offset:{L_SLOW-L_KEY}" if False else
      f"v_add_u32 v44, {L_KEY}, v41\nds_write_b32 v44, v42\nds_write_b32 v44, v43 offset:{L_NODEOF-L_KEY}\nds_write_b32 v44, v43 offset:{L_DEGOF-L_KEY}")
    e("s_mov_b64 exec, s[64:65]")
    e("v_lshlrev_b32 v45, 4, v0")
    e("v_mov_b32 v48, -1"); e("v_mov_b32 v49, -1"); e("v_mov_b32 v50, -1"); e("v_mov_b32 v51, -1")
    e(f"v_add_u32 v46, {L_STREAM}, v45")
    e("ds_write_b128 v46, v[48:51]")
    nextra = (NGRP * GSZ + 512 - 16384) // 16
    e(f"v_cmp_gt_u32 vcc, {nextra}, v0" if nextra <= 64 else f"s_movk_i32 s62, {nextra}\nv_cmp_gt_u32 vcc, s62, v0")
    e("s_and_saveexec_b64 s[64:65], vcc")
    e("ds_write_b128 v46, v[48:51] offset:16384")
    e(f"v_mov_b32 v47, {L_SLOW}")
    e("ds_write_b32 v47, v43")
    e("s_mov_b64 exec, s[64:65]")
    e("s_movk_i32 s62, 800")
    e("v_cmp_gt_u32 vcc, s62, v0")
    e(f"s_mov_b64 s[{sM800}:{sM800+1}], vcc")
    e("s_waitcnt lgkmcnt(0)")
    srd(g, sWS, 12, 13, hex(WS_BYTES))
    srd(g, sX, 4, 5, 3200000)
    srd(g, sDIS, 10, 11, 50000)
    srd(g, sTAB, 12, 13, NB * 1024, add=hex(WS_TAB))
    srd(g, sOUT, 14, 15, 3200000)
    srd(g, sWR, 16, 17, 128)
    e("v_and_b32 v52, 0xfffffffc, v0")
    e("s_lshl_b32 s62, s2, 10")
    e(f"buffer_load_dword v53, v52, s[{sTAB}:{sTAB+3}], s62 offen")
    e("s_mul_i32 s63, s2, 12800")
    e(f"buffer_load_dwordx4 v[56:59], v45, s[{sX}:{sX+3}], s63 offen")
    e("v_lshlrev_b32 v54, 1, v0")
    e("s_mul_i32 s64, s2, 200")
    e(f"buffer_load_ushort v55, v54, s[{sDIS}:{sDIS+3}], s64 offen")
    e(f"s_mov_b32 s65, {hex(WS_WF)}")
    e(f"buffer_load_dwordx4 v[60:63], v45, s[{sWS}:{sWS+3}], s65 offen")
    e("v_lshrrev_b32 v64, 2, v0")
    e("v_and_b32 v65, 3, v0")
    e("s_movk_i32 s66, 12800")
    e("v_mul_u32_u24 v66, s66, v64")
    e("v_lshl_add_u32 v66, v65, 4, v66")
    e("s_movk_i32 s66, 1000")
    e("v_cmp_gt_u32 vcc, s66, v0")
    e("s_waitcnt vmcnt(3)")
    e("v_cndmask_b32 v53, 0, v53, vcc")
    e("v_and_b32 v67, 0xffff, v53")
    e("v_lshrrev_b32 v68, 16, v53")
    e("v_lshl_add_u32 v66, v67, 2, v66")
    e("v_lshlrev_b32 v69, 2, v65")
    e("v_sub_u32 v69, v68, v69")
    R = 72
    O = 84
    e(f"buffer_load_dwordx4 v[{R}:{R+3}], v66, s[{sWS}:{sWS+3}], 0 offen")
    e("v_cmp_lt_i32 vcc, 16, v69")
    e(f"s_mov_b32 s{sI1}, 0"); e(f"s_mov_b32 s{sI2}, 0")
    e("s_cbranch_vccz P_NOI1")
    e(f"s_mov_b32 s{sI1}, 1")
    e(f"buffer_load_dwordx4 v[{R+4}:{R+7}], v66, s[{sWS}:{sWS+3}], 0 offen offset:64")
    e("v_cmp_lt_i32 vcc, 32, v69")
    e("s_cbranch_vccz P_NOI1")
    e(f"s_mov_b32 s{sI2}, 1")
    e(f"buffer_load_dwordx4 v[{R+8}:{R+11}], v66, s[{sWS}:{sWS+3}], 0 offen offset:128")
    e("P_NOI1:")
    e("v_cmp_lt_u32 vcc, 48, v68")
    e("s_mov_b64 s[66:67], vcc")
    e("s_waitcnt lgkmcnt(0)")
    e("s_barrier")
    e("s_and_saveexec_b64 s[64:65], vcc")
    e("v_mov_b32 v70, 1")
    e(f"v_mov_b32 v71, {L_SLOW}")
    e("ds_write_b32 v71, v70")
    e("s_mov_b64 exec, s[64:65]")
    e("s_waitcnt vmcnt(0)")
    e(f"s_mov_b64 exec, s[{sM800}:{sM800+1}]")
    e("s_cbranch_execz P_NOPOI")
    for k in range(2, 7):
        e(f"s_add_u32 s66, s63, {hex(WS_G + k * WS_GS)}")
        e(f"buffer_store_dwordx4 v[48:51], v45, s[{sWS}:{sWS+3}], s66 offen{SC}")
    e("v_lshrrev_b32 v70, 3, v0")
    e(f"v_mul_u32_u24 v70, {TOKNODE}, v70" if TOKNODE <= 64 else f"s_movk_i32 s66, {TOKNODE}\nv_mul_u32_u24 v70, s66, v70")
    e("v_and_b32 v71, 7, v0")
    e("v_lshl_add_u32 v70, v71, 4, v70")
    e("ds_write_b128 v70, v[56:59]")
    e("P_NOPOI:")
    e("s_mov_b64 exec, -1")
    e(f"v_add_u32 v70, {L_WF}, v45")
    e("ds_write_b128 v70, v[60:63]")
    e("s_movk_i32 s66, 100")
    e("v_cmp_gt_u32 vcc, s66, v0")
    e("s_and_saveexec_b64 s[64:65], vcc")
    e("v_lshlrev_b32 v55, 16, v55")
    e(f"v_add_u32 v70, {L_DISF}, v41")
    e("ds_write_b32 v70, v55")
    e("s_mov_b64 exec, s[64:65]")
    e(f"v_mov_b32 v70, {s128 and 128}")
    e(f"v_lshlrev_b32 v71, 2, v{vLANE}")
    e(f"v_add_u32 v71, {L_DUMMY}, v71")
    A = 96
    def atom(i):
        for u in range(4):
            r = R + 4 * i + u
            e(f"v_lshrrev_b32 v{A+4*i+u}, 16, v{r}")
            e(f"v_cmp_lt_i32 s[{sTMP + 2*(u%2)}:{sTMP + 2*(u%2) + 1}], {16*i+u}, v69")
            e(f"v_lshlrev_b32 v108, 2, v{A+4*i+u}")
            e(f"v_add_u32 v108, {L_KEY}, v108")
            e(f"v_cndmask_b32 v108, v71, v108, s[{sTMP + 2*(u%2)}:{sTMP + 2*(u%2) + 1}]")
            e(f"ds_add_rtn_u32 v{O+4*i+u}, v108, v70")
    atom(0)
    e(f"s_cmp_eq_u32 s{sI1}, 0"); e("s_cbranch_scc1 P_AT_D")
    atom(1)
    e(f"s_cmp_eq_u32 s{sI2}, 0"); e("s_cbranch_scc1 P_AT_D")
    atom(2)
    e("P_AT_D:")
    e("s_waitcnt lgkmcnt(0)")
    e("s_barrier")
    e("v_lshrrev_b32 v108, 3, v0")
    e("v_and_b32 v109, 7, v0")
    e("v_lshlrev_b32 v110, 6, v109")
    e(f"v_add_u32 v110, {L_KEY}, v110")
    for q in range(4):
        e(f"ds_read_b128 v[{112+4*q}:{115+4*q}], v110 offset:{16*q}")
    e("v_lshlrev_b32 v111, 2, v108")
    e(f"v_add_u32 v111, {L_KEY}, v111")
    e("ds_read_b32 v109, v111")
    e("v_mov_b32 v110, 0")
    e("s_waitcnt lgkmcnt(0)")
    for q in range(4):
        for u in range(4):
            e(f"v_cmp_gt_u32 s[{sTMP+2*u}:{sTMP+2*u+1}], v{112+4*q+u}, v109")
        for u in range(4):
            e(f"v_addc_co_u32 v110, vcc, 0, v110, s[{sTMP+2*u}:{sTMP+2*u+1}]")
    e("v_add_u32_dpp v110, v110, v110 quad_perm:[1,0,3,2] row_mask:0xf bank_mask:0xf")
    e("v_add_u32_dpp v110, v110, v110 quad_perm:[2,3,0,1] row_mask:0xf bank_mask:0xf")
    e("v_add_u32_dpp v110, v110, v110 row_half_mirror row_mask:0xf bank_mask:0xf")
    e("v_lshrrev_b32 v112, 7, v109")
    e("v_add_u32 v112, -1, v112")
    e("v_and_b32 v113, 7, v0")
    e("v_cmp_eq_u32 vcc, 0, v113")
    e(f"s_and_b64 s[64:65], vcc, s[{sM800}:{sM800+1}]")
    e("s_mov_b64 exec, s[64:65]")
    e("v_lshlrev_b32 v113, 2, v110")
    e(f"v_add_u32 v113, {L_NODEOF}, v113")
    e("ds_write_b32 v113, v108")
    e(f"ds_write_b32 v113, v112 offset:{L_DEGOF - L_NODEOF}")
    e("s_mov_b64 exec, -1")
    e("s_waitcnt lgkmcnt(0)")
    e("s_barrier")
    e("s_mov_b64 exec, s[64:65]")
    e("v_and_b32 v113, 0xfffffff8, v110")
    e("v_lshlrev_b32 v113, 2, v113")
    e(f"v_add_u32 v113, {L_DEGOF}, v113")
    e("ds_read_b32 v114, v113")
    e("v_lshrrev_b32 v115, 3, v110")
    e(f"s_movk_i32 s66, {GSZ}")
    e("v_mul_u32_u24 v115, s66, v115")
    e("v_and_b32 v116, 7, v110")
    e("v_lshl_add_u32 v115, v116, 4, v115")
    e("s_waitcnt lgkmcnt(0)")
    e(f"v_cmp_lt_u32 vcc, {PMAX}, v114" if PMAX <= 64 else f"s_movk_i32 s66, {PMAX}\nv_cmp_lt_u32 vcc, s66, v114")
    e(f"v_sub_u32 v116, {PMAX}, v114")
    e("v_cndmask_b32 v116, v116, 0, vcc")
    e("v_lshl_or_b32 v115, v116, 16, v115")
    e(f"v_add_u32 v113, {L_INFO - L_KEY}, v111")
    e("ds_write_b32 v113, v115")
    e("s_and_b64 exec, exec, vcc")
    e("v_mov_b32 v116, 1")
    e(f"v_mov_b32 v117, {L_SLOW}")
    e("ds_write_b32 v117, v116")
    e("s_mov_b64 exec, -1")
    e("s_waitcnt lgkmcnt(0)")
    e("s_barrier")
    def place(i):
        for u in range(4):
            e(f"v_lshlrev_b32 v108, 2, v{A+4*i+u}")
            e(f"v_add_u32 v108, {L_INFO}, v108")
            e(f"ds_read_b32 v{112+u}, v108")
        e("s_waitcnt lgkmcnt(0)")
        for u in range(4):
            m = sTMP + 2 * (u % 2)
            e(f"v_lshrrev_b32 v108, 7, v{O+4*i+u}")
            e(f"v_lshrrev_b32 v109, 16, v{112+u}")
            e("v_add3_u32 v108, v108, v109, -1")
            e(f"v_cmp_lt_i32 s[{m}:{m+1}], {16*i+u}, v69")
            e(f"s_movk_i32 s66, {PMAX}")
            e("v_cmp_gt_u32 vcc, s66, v108")
            e(f"s_and_b64 s[{m}:{m+1}], s[{m}:{m+1}], vcc")
            e(f"v_and_b32 v109, 0xffff, v{112+u}")
            e("v_lshrrev_b32 v110, 3, v108")
            e("v_lshl_add_u32 v109, v110, 7, v109")
            e("v_and_b32 v110, 7, v108")
            e("v_lshl_add_u32 v109, v110, 1, v109")
            e(f"v_add_u32 v109, {L_STREAM}, v109")
            e(f"v_cndmask_b32 v109, v71, v109, s[{m}:{m+1}]")
            e(f"ds_write_b16 v109, v{R+4*i+u}")
    place(0)
    e(f"s_cmp_eq_u32 s{sI1}, 0"); e("s_cbranch_scc1 P_PL_D")
    place(1)
    e(f"s_cmp_eq_u32 s{sI2}, 0"); e("s_cbranch_scc1 P_PL_D")
    place(2)
    e("P_PL_D:")
    e("s_waitcnt vmcnt(0) lgkmcnt(0)")
    e("s_barrier")
    e(f"s_cmp_ge_u32 s3, {NGRP}")
    e("s_cbranch_scc1 P_END")
    e(f"v_mov_b32 v60, {L_SLOW}")
    e("ds_read_b32 v61, v60")
    e("s_lshl_b32 s62, s3, 5")
    e(f"s_add_u32 s63, s62, {L_DEGOF}")
    e("v_mov_b32 v62, s63")
    e("ds_read_b32 v63, v62")
    e(f"v_lshrrev_b32 v64, 4, v{vLANE}")
    e(f"v_bfe_u32 v65, v{vLANE}, 3, 1")
    e(f"v_and_b32 v66, 7, v{vLANE}")
    e(f"v_lshlrev_b32 v{vL16}, 4, v66")
    e("v_lshrrev_b32 v67, 1, v64")
    e("v_lshl_add_u32 v68, v67, 1, v65")
    e("v_and_b32 v69, 1, v64")
    e("v_lshl_add_u32 v69, v69, 2, v68")
    e(f"s_add_u32 s63, s62, {L_NODEOF}")
    e("v_lshl_add_u32 v70, v68, 2, s63")
    e("ds_read_b32 v71, v70")
    e("ds_read_b32 v72, v70 offset:16")
    e("v_lshl_add_u32 v70, v69, 2, s63")
    e("ds_read_b32 v73, v70")
    e("s_lshl_b32 s64, s3, 3")
    e("v_add_u32 v69, s64, v69")
    e("s_movk_i32 s66, 100")
    e("v_cmp_gt_u32 vcc, s66, v69")
    e(f"s_mov_b64 s[{sVALID}:{sVALID+1}], vcc")
    e(f"v_lshrrev_b32 v74, 3, v{vLANE}")
    e(f"s_mul_i32 s64, s3, {GSZ}")
    e(f"s_add_u32 s64, s64, {L_STREAM}")
    e(f"v_lshl_add_u32 v{vIDXA}, v74, 4, s64")
    e("s_waitcnt lgkmcnt(0)")
    e(f"v_readfirstlane_b32 s{sSLOW}, v61")
    e("v_readfirstlane_b32 s67, v63")
    for (n, d) in ((71, vDIS1), (72, vDIS2), (73, vDIS3)):
        e(f"v_lshlrev_b32 v70, 2, v{n}")
        e(f"v_add_u32 v70, {L_DISF}, v70")
        e(f"ds_read_b32 v{d}, v70")
    e(f"s_movk_i32 s64, {TOKNODE}")
    e(f"v_mul_u32_u24 v{vTOKA}, s64, v73")
    e(f"v_add_u32 v{vTOKA}, v{vTOKA}, v{vL16}")
    e("s_mul_i32 s64, s2, 100")
    e("v_add_u32 v73, s64, v73")
    e(f"v_lshl_add_u32 v{vGOFF}, v73, 7, v{vL16}")
    e("s_max_u32 s67, s67, 16")
    e(f"s_min_u32 s67, s67, {PMAX}")
    e(f"s_sub_u32 s{sP0}, {PMAX}, s67")
    e(f"s_add_u32 s{sEXIT}, s{sP0}, 15")
    e(f"s_lshr_b32 s64, s{sP0}, 3")
    for j in range(4):
        e(f"s_sub_u32 s65, {j}, s64"); e("s_and_b32 s65, s65, 3"); e("s_add_u32 s65, s65, s64")
        e(f"s_lshl_b32 s{sOFFJ+j}, s65, 7")
    e(f"v_and_b32 v64, 7, v{vLANE}")
    e("v_lshrrev_b32 v65, 1, v64")
    e("v_and_b32 v66, 1, v64")
    e("v_lshlrev_b32 v66, 4, v66")
    e("v_mov_b32 v67, 0x3f80")
    e("v_lshlrev_b32 v67, v66, v67")
    e(f"v_lshrrev_b32 v68, 4, v{vLANE}")
    e(f"v_bfe_u32 v69, v{vLANE}, 3, 1")
    e("v_add_u32 v70, 2, v69")
    e("v_cmp_eq_u32 s[62:63], v68, v69")
    e("v_cmp_eq_u32 s[64:65], v68, v70")
    for r in range(4):
        e(f"v_cmp_eq_u32 vcc, {r}, v65")
        e(f"s_and_b64 s[68:69], vcc, s[62:63]")
        e(f"v_cndmask_b32 v{vA1+r}, 0, v67, s[68:69]")
        e(f"s_and_b64 s[68:69], vcc, s[64:65]")
        e(f"v_cndmask_b32 v{vA2+r}, 0, v67, s[68:69]")
    if FORCESLOW:
        e("s_cmp_lt_u32 s2, 3"); e("s_cbranch_scc0 P_NOFS"); e(f"s_mov_b32 s{sSLOW}, 1"); e("P_NOFS:")
    for i in range(RING): e(f"v_mov_b32 v{vOFF+i}, 0x7ffffff0")
    e(f"s_mov_b32 s{sK}, 1")
    e(f"s_mov_b32 s{sGI+2}, 3200000"); e(f"s_mov_b32 s{sGI+3}, {SRD3}")
    e(f"s_mov_b32 s{sGO+2}, 3200000"); e(f"s_mov_b32 s{sGO+3}, {SRD3}")
    e(f"s_add_u32 s{sGO}, s12, {hex(WS_G)}"); e(f"s_addc_u32 s{sGO+1}, s13, 0")
    e("s_waitcnt lgkmcnt(0)")
    def stamp(idx, val):
        e("s_memrealtime s[62:63]")
        e("s_lshl_b32 s64, s2, 4"); e("s_add_u32 s64, s64, s3"); e("s_lshl_b32 s64, s64, 4")
        e(f"s_add_u32 s64, s64, {idx}"); e("s_lshl_b32 s64, s64, 3")
        e(f"s_add_u32 s64, s64, {hex(WS_STAMP)}")
        e("s_waitcnt lgkmcnt(0)")
        e("s_mov_b64 exec, 1")
        e(f"v_mov_b32 v{vF}, s62"); e(f"v_mov_b32 v{vF+1}, {val}"); e(f"v_mov_b32 v{vF+2}, s64")
        e(f"buffer_store_dwordx2 v[{vF}:{vF+1}], v{vF+2}, s[{sWS}:{sWS+3}], 0 offen")
        e("s_mov_b64 exec, -1")
    if dbgstat:
        stamp("0", f"s{sEXIT}")
    e("P_HOP:")
    e(f"s_mov_b32 s{sGI}, s{sGO}"); e(f"s_mov_b32 s{sGI+1}, s{sGO+1}")
    e(f"s_add_u32 s{sGO}, s{sGO}, {hex(WS_GS)}"); e(f"s_addc_u32 s{sGO+1}, s{sGO+1}, 0")
    e(f"s_mov_b32 s{sTRY}, 0")
    e(f"s_cmp_lg_u32 s{sSLOW}, 0")
    e("s_cbranch_scc1 P_SLOWG")
    for j in range(4):
        e(f"v_add_u32 v{vT0}, s{sOFFJ+j}, v{vIDXA}")
        e(f"ds_read_b128 v[{vIDX+4*j}:{vIDX+4*j+3}], v{vT0}")
    for i in range(8): e(f"v_mov_b32 v{vAC1+i}, 0")
    e("s_waitcnt lgkmcnt(0)")
    tree(g, sP0, 0, PMAX - 16, lambda p: f"PA_{p}")
    def issue(p):
        blk = p // 8; r = vIDX + 4 * (blk % 4) + (p % 8) // 2
        t = vOFF + (p % RING)
        s = vRING + 4 * (p % RING)
        e(f"v_mad_u32_u16 v{t}, v{r}, s{s128}, v{vL16} op_sel:[{p%2},0,0,0]")
        e(f"buffer_load_dwordx4 v[{s}:{s+3}], v{t}, s[{sGI}:{sGI+3}], 0 offen{SC}")
    def check(sl):
        s = vRING + 4 * sl
        e(f"v_max3_u32 v{vT0}, v{s}, v{s+1}, v{s+2}")
        e(f"v_max_u32 v{vT0}, v{vT0}, v{s+3}")
        e(f"v_cmp_eq_u32 vcc, -1, v{vT0}")
    for p in range(PMAX):
        e(f"PA_{p}:")
        issue(p)
        if p >= 15:
            if p < PMAX - 1:
                e(f"s_cmp_eq_u32 s{sEXIT}, {p}")
                e(f"s_cbranch_scc1 PB_{p-15}")
            else:
                e(f"s_branch PB_{p-15}")
    for p in range(PMAX):
        e(f"PB_{p}:")
        if p % 8 == 0:
            e("s_waitcnt lgkmcnt(0)")
            nb = p // 8 + 3
            if nb < NBLK:
                e(f"ds_read_b128 v[{vIDX+4*(nb%4)}:{vIDX+4*(nb%4)+3}], v{vIDXA} offset:{nb*128}")
        s = vRING + 4 * (p % RING)
        e(f"s_waitcnt vmcnt({min(RING-1, PMAX-1-p)})")
        check(p % RING)
        e(f"s_cbranch_vccnz ST_{p}")
        e(f"RT_{p}:")
        e(f"v_mfma_f32_16x16x32_bf16 v[{vAC1}:{vAC1+3}], v[{vA1}:{vA1+3}], v[{s}:{s+3}], v[{vAC1}:{vAC1+3}]")
        e(f"v_mfma_f32_16x16x32_bf16 v[{vAC2}:{vAC2+3}], v[{vA2}:{vA2+3}], v[{s}:{s+3}], v[{vAC2}:{vAC2+3}]")
        if p + RING < PMAX:
            issue(p + RING)
    e("s_branch P_FLUSH")
    for p in range(PMAX):
        e(f"ST_{p}:")
        e(f"s_call_b64 s[{sRET}:{sRET+1}], POLL_{p % RING}")
        e(f"s_branch RT_{p}")
    for sl in range(RING):
        s = vRING + 4 * sl
        e(f"POLL_{sl}:")
        e(f"s_add_u32 s{sTRY}, s{sTRY}, 1")
        e(f"s_cmp_gt_u32 s{sTRY}, {TRYMAX}")
        e("s_cbranch_scc1 P_RET")
        if SLEEP: e(f"s_sleep {SLEEP}")
        e("s_mov_b64 exec, vcc")
        e(f"buffer_load_dwordx4 v[{s}:{s+3}], v{vOFF+sl}, s[{sGI}:{sGI+3}], 0 offen{SC}")
        e("s_mov_b64 exec, -1")
        e("s_waitcnt vmcnt(0)")
        check(sl)
        e(f"s_cbranch_vccnz POLL_{sl}")
        if sl < RING - 1: e("s_branch P_REFRESH")
    e("P_REFRESH:")
    for sl in range(RING):
        s = vRING + 4 * sl
        l = g.lab("RF")
        check(sl)
        e(f"s_cbranch_vccz {l}")
        e("s_mov_b64 exec, vcc")
        e(f"buffer_load_dwordx4 v[{s}:{s+3}], v{vOFF+sl}, s[{sGI}:{sGI+3}], 0 offen{SC}")
        e("s_mov_b64 exec, -1")
        e(f"{l}:")
    e("s_waitcnt vmcnt(0)")
    e("P_RET:")
    e(f"s_setpc_b64 s[{sRET}:{sRET+1}] ; @to " + " ".join(f"RT_{p}" for p in range(PMAX)))
    e("P_FLUSH:")
    if dbgstat:
        stamp(f"s{sK}", f"s{sTRY}")
    H = vF
    for b in range(4):
        e(f"v_mul_f32 v{vAC1+b}, v{vAC1+b}, v{vDIS1}")
        e(f"v_mul_f32 v{vAC2+b}, v{vAC2+b}, v{vDIS2}")
    e(f"v_cvt_pk_bf16_f32 v{H}, v{vAC1}, v{vAC1+1}")
    e(f"v_cvt_pk_bf16_f32 v{H+1}, v{vAC1+2}, v{vAC1+3}")
    e(f"v_cvt_pk_bf16_f32 v{H+2}, v{vAC2}, v{vAC2+1}")
    e(f"v_cvt_pk_bf16_f32 v{H+3}, v{vAC2+2}, v{vAC2+3}")
    e(f"v_permlane16_swap_b32 v{H}, v{H+2}")
    e(f"v_permlane16_swap_b32 v{H+1}, v{H+3}")
    e(f"s_mov_b64 exec, s[{sVALID}:{sVALID+1}]")
    e(f"s_cmp_eq_u32 s{sK}, 7")
    e("s_cbranch_scc1 P_NOG")
    G = vF + 4
    for r in range(4):
        e(f"v_lshlrev_b32 v{vF+8}, 16, v{H+r}")
        e(f"v_and_b32 v{vF+9}, 0xffff0000, v{H+r}")
        e(f"v_mul_f32 v{vF+8}, v{vF+8}, v{vDIS3}")
        e(f"v_mul_f32 v{vF+9}, v{vF+9}, v{vDIS3}")
        e(f"v_cvt_pk_bf16_f32 v{G+r}, v{vF+8}, v{vF+9}")
        e(f"v_min_u32 v{G+r}, -2, v{G+r}")
    e(f"buffer_store_dwordx4 v[{G}:{G+3}], v{vGOFF}, s[{sGO}:{sGO+3}], 0 offen{SC}")
    e("P_NOG:")
    e(f"s_mul_i32 s62, s{sK}, {TOKROW}")
    e(f"v_add_u32 v{vF+10}, s62, v{vTOKA}")
    e(f"ds_write_b128 v{vF+10}, v[{H}:{H+3}]")
    e("s_mov_b64 exec, -1")
    e(f"s_add_u32 s{sK}, s{sK}, 1")
    e(f"s_cmp_le_u32 s{sK}, {NHOPS}")
    e("s_cbranch_scc1 P_HOP")
    e("P_FINAL:")
    if dump:
        e("s_waitcnt lgkmcnt(0)")
        e(f"s_mov_b64 exec, s[{sVALID}:{sVALID+1}]")
        e(f"v_sub_u32 v{vT0}, v{vGOFF}, v{vL16}")
        e(f"v_lshlrev_b32 v{vT0}, 3, v{vT0}")
        e(f"v_add_u32 v{vT0}, v{vT0}, v{vL16}")
        e(f"s_mov_b32 s62, {hex(WS_DUMP)}")
        for k in range(8):
            e(f"ds_read_b128 v[{vRING}:{vRING+3}], v{vTOKA} offset:{k*TOKROW}")
            e("s_waitcnt lgkmcnt(0)")
            e(f"buffer_store_dwordx4 v[{vRING}:{vRING+3}], v{vT0}, s[{sWS}:{sWS+3}], s62 offen offset:{k*128}")
            e("s_nop 1")
        e("s_mov_b64 exec, -1")
    if final:
        from gen_final import gen_final
        gen_final(g)
    e("s_branch P_END")
    e("P_SLOWG:")
    e(f"v_lshrrev_b32 v{vT0}, 3, v{vLANE}")
    e("s_lshl_b32 s62, s3, 5")
    e(f"s_add_u32 s62, s62, {L_NODEOF}")
    e(f"v_lshl_add_u32 v{vT1}, v{vT0}, 2, s62")
    e(f"ds_read_b32 v40, v{vT1}")
    e("s_lshl_b32 s62, s3, 3")
    e(f"v_add_u32 v{vT0}, s62, v{vT0}")
    e("s_mul_i32 s62, s2, 100")
    e("s_movk_i32 s63, 100")
    e(f"v_cmp_gt_u32 vcc, s63, v{vT0}")
    for i in range(8): e(f"v_mov_b32 v{vAC1+i}, 0")
    e(f"v_lshlrev_b32 v41, 4, v{vLANE}")
    srd(g, 88, 6, 7, 3200000)
    srd(g, 92, 8, 9, 3200000)
    e("s_waitcnt lgkmcnt(0)")
    e("v_add_u32 v40, s62, v40")
    e("v_cndmask_b32 v40, -1, v40, vcc")
    e("s_mov_b32 s66, 0")
    e("SG_CHUNK:")
    e("buffer_load_dwordx4 v[44:47], v41, s[92:95], s66 offen")
    e("buffer_load_dwordx4 v[48:51], v41, s[88:91], s66 offen")
    e("s_waitcnt vmcnt(0)")
    for u in range(4):
        e("s_mov_b32 s67, 0")
        e(f"SG_R{u}:")
        e("v_readlane_b32 s68, v40, s67")
        e("s_mov_b64 s[62:63], 0xff")
        e("s_lshl_b64 s[62:63], s[62:63], s67")
        e(f"v_cmp_eq_u32 s[64:65], s68, v{44+u}")
        e(f"SG_E{u}:")
        e("s_cmp_eq_u64 s[64:65], 0")
        e(f"s_cbranch_scc1 SG_N{u}")
        e("s_ff1_i32_b64 s69, s[64:65]")
        e("s_bitset0_b64 s[64:65], s69")
        e(f"v_readlane_b32 s68, v{48+u}, s69")
        e("s_lshl_b32 s68, s68, 7")
        e(f"v_add_u32 v42, s68, v{vL16}")
        e("v_mov_b32 v43, 0x7ffffff0")
        e("v_cndmask_b32 v42, v43, v42, s[62:63]")
        e(f"SG_P{u}:")
        e(f"buffer_load_dwordx4 v[52:55], v42, s[{sGI}:{sGI+3}], 0 offen{SC}")
        e("s_waitcnt vmcnt(0)")
        e(f"v_max3_u32 v{vT0}, v52, v53, v54")
        e(f"v_max_u32 v{vT0}, v{vT0}, v55")
        e(f"v_cmp_eq_u32 vcc, -1, v{vT0}")
        e(f"s_cbranch_vccz SG_A{u}")
        e(f"s_add_u32 s{sTRY}, s{sTRY}, 1")
        e(f"s_cmp_gt_u32 s{sTRY}, {TRYMAX}")
        e(f"s_cbranch_scc1 SG_A{u}")
        e("s_sleep 8")
        e(f"s_branch SG_P{u}")
        e(f"SG_A{u}:")
        e(f"v_mfma_f32_16x16x32_bf16 v[{vAC1}:{vAC1+3}], v[{vA1}:{vA1+3}], v[52:55], v[{vAC1}:{vAC1+3}]")
        e(f"v_mfma_f32_16x16x32_bf16 v[{vAC2}:{vAC2+3}], v[{vA2}:{vA2+3}], v[52:55], v[{vAC2}:{vAC2+3}]")
        e(f"s_branch SG_E{u}")
        e(f"SG_N{u}:")
        e("s_add_u32 s67, s67, 8")
        e("s_cmp_lt_u32 s67, 64")
        e(f"s_cbranch_scc1 SG_R{u}")
    e("s_add_u32 s66, s66, 1024")
    e("s_cmp_lt_u32 s66, 3200000")
    e("s_cbranch_scc1 SG_CHUNK")
    e("s_branch P_FLUSH")
    e("P_END:")
    e("s_endpgm")

def build(path, **kw):
    g = Gen()
    gen_k1(g)
    gen_p(g, **kw)
    kernel_desc(g, "bin_kernel", 80, 64)
    kernel_desc(g, "graph_kernel", 128, 96)
    launches = [f"; @launch kernel=bin_kernel grid=({NB+1},1,1) block=(1024,1,1) lds={K1_LDS}",
                f"; @launch kernel=graph_kernel grid=({NB},1,1) block=(1024,1,1) lds={P_LDS}"]
    s = finish(g, launches, "gather_scatter__hybrid_graph_tf_nagphormer__graph.s.ref")
    open(path, "w").write(s)
    return s

if __name__ == "__main__":
    import argparse
    ap = argparse.ArgumentParser()
    ap.add_argument("out"); ap.add_argument("--dump", action="store_true"); ap.add_argument("--nofinal", action="store_true")
    ap.add_argument("--dbgstat", action="store_true"); ap.add_argument("--sleep", type=int, default=2); ap.add_argument("--nhops", type=int, default=7); ap.add_argument("--nosc1", action="store_true"); ap.add_argument("--forceslow", action="store_true")
    a = ap.parse_args()
    SLEEP = a.sleep; NHOPS = a.nhops; FORCESLOW = a.forceslow
    build(a.out, dump=a.dump, final=not a.nofinal, dbgstat=a.dbgstat, sc1=not a.nosc1)
    print("P_LDS", P_LDS)
```

```python
import sys, os
sys.path.insert(0, os.path.dirname(os.path.abspath(__file__)))
from asmlib import fix_hazards

NB = 250
NPB = 100
CH = 3200
WS_REC = 0x0
WS_TAB = 0x400000
WS_G = 0x800000
WS_GS = 0x400000
WS_WF = 0x2800000
WS_DUMP = 0x3000000
WS_STAMP = 0x2C00000
WS_BYTES = 0x8000000
K1STAMP = False
SRD3 = "0x00020000"

class Gen:
    def __init__(self):
        self.L = []
        self.uid = 0
    def e(self, s):
        for line in s.strip("\n").split("\n"):
            line = line.strip()
            if line: self.L.append(line)
    def lab(self, p="L"):
        self.uid += 1
        return f"{p}_{self.uid}"

def srd(g, d, lo, hi, nbytes, add=None):
    if add:
        g.e(f"s_add_u32 s{d}, s{lo}, {add}")
        g.e(f"s_addc_u32 s{d+1}, s{hi}, 0")
    else:
        g.e(f"s_mov_b32 s{d}, s{lo}")
        g.e(f"s_mov_b32 s{d+1}, s{hi}")
    g.e(f"s_mov_b32 s{d+2}, {nbytes}")
    g.e(f"s_mov_b32 s{d+3}, {SRD3}")

def kernel_header(g, name):
    g.e(f".globl {name}")
    g.e(".p2align 8")
    g.e(f".type {name},@function")
    g.e(f"{name}:")

def kernel_desc(g, name, nv, ns):
    g.e('.section .rodata,"a"')
    g.e(".p2align 6")
    g.e(f".amdhsa_kernel {name}")
    g.L.append(f"  .amdhsa_next_free_vgpr {nv}")
    g.L.append(f"  .amdhsa_next_free_sgpr {ns}")
    g.L.append(f"  .amdhsa_accum_offset {(nv+3)//4*4}")
    g.L.append("  .amdhsa_group_segment_fixed_size 0")
    g.L.append("  .amdhsa_kernarg_size 96")
    g.L.append("  .amdhsa_user_sgpr_count 2")
    g.L.append("  .amdhsa_user_sgpr_kernarg_segment_ptr 1")
    g.L.append("  .amdhsa_system_sgpr_workgroup_id_x 1")
    g.e(".end_amdhsa_kernel")
    g.e(".text")

K1_LDS = 2048 + 12800
def gen_k1(g):
    e = g.e
    kernel_header(g, "bin_kernel")
    e(f"s_cmp_gt_u32 s2, {NB}")
    e("s_cbranch_scc1 K1_END")
    e("s_load_dwordx8 s[4:11], s[0:1], 0")
    e("s_load_dwordx2 s[12:13], s[0:1], 88")
    if K1STAMP: e("s_memrealtime s[52:53]")
    e(f"s_cmp_eq_u32 s2, {NB}")
    e("s_cbranch_scc1 K1_W")
    e("v_lshlrev_b32 v1, 4, v0")
    e("v_lshlrev_b32 v2, 2, v0")
    e("v_mov_b32 v3, 0")
    e("s_movk_i32 s14, 0x100")
    e("v_cmp_gt_u32 vcc, s14, v0")
    e("s_and_saveexec_b64 s[40:41], vcc")
    e("ds_write_b32 v2, v3")
    e("s_mov_b64 exec, s[40:41]")
    e("s_movk_i32 s14, 800")
    e("v_cmp_gt_u32 vcc, s14, v0")
    e("s_mov_b64 s[42:43], vcc")
    e("s_mul_i32 s14, s2, 12800")
    e("s_mul_i32 s15, s2, 200")
    e("v_lshrrev_b32 v4, 3, v0")
    e("v_lshlrev_b32 v4, 1, v4")
    e("s_waitcnt lgkmcnt(0)")
    srd(g, 16, 6, 7, 3200000)
    srd(g, 20, 8, 9, 3200000)
    srd(g, 24, 4, 5, 3200000)
    srd(g, 28, 10, 11, 50000)
    srd(g, 32, 12, 13, hex(WS_BYTES))
    srd(g, 36, 12, 13, NB * 1024, add=hex(WS_TAB))
    e("s_mov_b64 exec, s[42:43]")
    e("s_cbranch_execz K1_NOLD")
    e("buffer_load_dwordx4 v[8:11], v1, s[20:23], s14 offen")
    e("buffer_load_dwordx4 v[12:15], v1, s[16:19], s14 offen")
    e("buffer_load_dwordx4 v[16:19], v1, s[24:27], s14 offen")
    e("buffer_load_ushort v20, v4, s[28:31], s15 offen")
    e("v_mov_b32 v24, -1"); e("v_mov_b32 v25, -1"); e("v_mov_b32 v26, -1"); e("v_mov_b32 v27, -1")
    e(f"s_add_u32 s44, s14, {hex(WS_G + WS_GS)}")
    e("buffer_store_dwordx4 v[24:27], v1, s[32:35], s44 offen")
    e("K1_NOLD:")
    e("s_mov_b64 exec, -1")
    e("s_waitcnt lgkmcnt(0)")
    e("s_barrier")
    e("s_mov_b64 exec, s[42:43]")
    e("s_cbranch_execz K1_B1")
    e("s_waitcnt vmcnt(4)")
    e("s_movk_i32 s45, 5243")
    e("v_mov_b32 v21, 1")
    for u in range(4):
        e(f"v_mul_u32_u24 v{28+u}, s45, v{8+u}")
        e(f"v_lshrrev_b32 v{28+u}, 19, v{28+u}")
        e(f"v_mul_u32_u24 v22, 100, v{28+u}")
        e(f"v_sub_u32 v{8+u}, v{8+u}, v22")
        e(f"v_lshlrev_b32 v{28+u}, 2, v{28+u}")
        e(f"ds_add_rtn_u32 v{32+u}, v{28+u}, v21")
    e("s_waitcnt vmcnt(3)")
    for u in range(4):
        e(f"v_lshl_or_b32 v{8+u}, v{8+u}, 16, v{12+u}")
    e("s_waitcnt vmcnt(1)")
    e("v_lshlrev_b32 v20, 16, v20")
    for r in range(4):
        e(f"v_lshlrev_b32 v22, 16, v{16+r}")
        e(f"v_and_b32 v23, 0xffff0000, v{16+r}")
        e("v_mul_f32 v22, v22, v20")
        e("v_mul_f32 v23, v23, v20")
        e(f"v_cvt_pk_bf16_f32 v{16+r}, v22, v23")
    e(f"s_add_u32 s44, s14, {hex(WS_G)}")
    e("buffer_store_dwordx4 v[16:19], v1, s[32:35], s44 offen")
    e("K1_B1:")
    e("s_mov_b64 exec, -1")
    e("s_waitcnt lgkmcnt(0)")
    e("s_barrier")
    e("v_cmp_gt_u32 vcc, 64, v0")
    e("s_and_saveexec_b64 s[40:41], vcc")
    e("s_cbranch_execz K1_B2")
    e("ds_read_b128 v[40:43], v1")
    e("s_waitcnt lgkmcnt(0)")
    e("v_add_u32 v44, v40, v41")
    e("v_add_u32 v45, v44, v42")
    e("v_add_u32 v46, v45, v43")
    e("v_mov_b32 v47, v46")
    for sh in (1, 2, 4, 8):
        e(f"v_add_u32_dpp v47, v47, v47 row_shr:{sh} row_mask:0xf bank_mask:0xf bound_ctrl:0")
    e("v_add_u32_dpp v47, v47, v47 row_bcast:15 row_mask:0xa bank_mask:0xf")
    e("v_add_u32_dpp v47, v47, v47 row_bcast:31 row_mask:0xc bank_mask:0xf")
    e("v_sub_u32 v48, v47, v46")
    e("v_add_u32 v49, v48, v40")
    e("v_add_u32 v50, v48, v44")
    e("v_add_u32 v51, v48, v45")
    e("ds_write_b128 v1, v[48:51] offset:1024")
    e("s_lshl_b32 s46, s2, 2")
    e("v_lshlrev_b32 v52, 12, v0")
    for u in range(4):
        e(f"v_lshl_or_b32 v{40+u}, v{40+u}, 16, v{48+u}")
        e(f"buffer_store_dword v{40+u}, v52, s[36:39], s46 offen offset:{1024*u}")
    e("K1_B2:")
    e("s_mov_b64 exec, -1")
    e("s_waitcnt lgkmcnt(0)")
    e("s_barrier")
    e("s_mov_b64 exec, s[42:43]")
    e("s_cbranch_execz K1_B3")
    for u in range(4):
        e(f"ds_read_b32 v{36+u}, v{28+u} offset:1024")
    e("s_waitcnt lgkmcnt(0)")
    for u in range(4):
        e(f"v_add_u32 v{36+u}, v{36+u}, v{32+u}")
        e(f"v_lshlrev_b32 v{36+u}, 2, v{36+u}")
        e(f"ds_write_b32 v{36+u}, v{8+u} offset:2048")
    e("K1_B3:")
    e("s_mov_b64 exec, -1")
    e("s_waitcnt lgkmcnt(0)")
    e("s_barrier")
    e("s_mov_b64 exec, s[42:43]")
    e("s_cbranch_execz K1_END")
    e("ds_read_b128 v[40:43], v1 offset:2048")
    e("s_waitcnt lgkmcnt(0)")
    e("buffer_store_dwordx4 v[40:43], v1, s[32:35], s14 offen")
    if K1STAMP:
        e("s_waitcnt vmcnt(0)")
        e("s_memrealtime s[54:55]")
        e("s_lshl_b32 s56, s2, 4"); e(f"s_add_u32 s56, s56, {hex(WS_STAMP + 0x100000)}")
        e("v_cmp_eq_u32 vcc, 0, v0"); e("s_and_b64 exec, exec, vcc")
        e("s_waitcnt lgkmcnt(0)")
        e("v_mov_b32 v40, s52"); e("v_mov_b32 v41, s54"); e("v_mov_b32 v42, s56")
        e("buffer_store_dwordx2 v[40:41], v42, s[32:35], 0 offen")
    e("s_endpgm")
    e("K1_W:")
    e("s_load_dwordx8 s[16:23], s[0:1], 32")
    e("v_lshrrev_b32 v1, 6, v0")
    e("v_and_b32 v2, 63, v0")
    e("v_readfirstlane_b32 s3, v1")
    e("v_lshrrev_b32 v3, 4, v2")
    e("v_and_b32 v4, 15, v2")
    e("s_lshr_b32 s24, s3, 2")
    e("s_and_b32 s25, s3, 3")
    e("v_lshrrev_b32 v5, 2, v4")
    e("v_and_b32 v6, 3, v4")
    e("v_lshl_add_u32 v7, v5, 4, v6")
    e("s_lshl_b32 s26, s25, 2")
    e("s_lshl_b32 s27, s24, 2")
    e("v_add_u32 v8, s26, v7")
    e("v_add_u32 v9, s27, v7")
    e("v_lshlrev_b32 v10, 7, v8")
    e("v_lshl_add_u32 v10, v3, 4, v10")
    e("v_lshlrev_b32 v11, 7, v9")
    e("v_lshl_add_u32 v11, v3, 4, v11")
    e("s_waitcnt lgkmcnt(0)")
    srd(g, 28, 16, 17, 8192)
    srd(g, 32, 18, 19, 8192)
    srd(g, 36, 20, 21, 8192)
    srd(g, 40, 22, 23, 8192)
    srd(g, 44, 12, 13, 16384, add=hex(WS_WF))
    e("buffer_load_dwordx4 v[16:19], v10, s[28:31], 0 offen")
    e("buffer_load_dwordx4 v[20:23], v10, s[28:31], 0 offen offset:64")
    e("buffer_load_dwordx4 v[24:27], v11, s[32:35], 0 offen")
    e("buffer_load_dwordx4 v[28:31], v11, s[32:35], 0 offen offset:64")
    e("buffer_load_dwordx4 v[32:35], v10, s[36:39], 0 offen")
    e("buffer_load_dwordx4 v[36:39], v10, s[36:39], 0 offen offset:64")
    e("v_lshlrev_b32 v12, 10, v3")
    e("v_lshl_add_u32 v12, v9, 1, v12")
    e("s_movk_i32 s48, 0x1000")
    for sp in range(2):
        for j in range(8):
            off = (32 * sp + j) * 128
            so = "0"
            if off >= 4096:
                so = "s48"; off -= 4096
            e(f"buffer_load_ushort v{60 + sp*8 + j}, v12, s[40:43], {so} offen offset:{off}")
    for i in range(8): e(f"v_mov_b32 v{48+i}, 0")
    e("s_waitcnt vmcnt(0)")
    for r in range(8):
        e(f"v_lshl_or_b32 v{40+r}, v{61+2*r}, 16, v{60+2*r}")
    e("v_mfma_f32_16x16x32_bf16 v[48:51], v[16:19], v[24:27], v[48:51]")
    e("v_mfma_f32_16x16x32_bf16 v[52:55], v[32:35], v[40:43], v[52:55]")
    e("v_mfma_f32_16x16x32_bf16 v[48:51], v[20:23], v[28:31], v[48:51]")
    e("v_mfma_f32_16x16x32_bf16 v[52:55], v[36:39], v[44:47], v[52:55]")
    e("s_mov_b32 s49, 0x3e38aa3b")
    for b in range(4): e(f"v_mul_f32 v{48+b}, s49, v{48+b}")
    e("v_cvt_pk_bf16_f32 v56, v48, v49"); e("v_cvt_pk_bf16_f32 v57, v50, v51")
    e("v_cvt_pk_bf16_f32 v58, v52, v53"); e("v_cvt_pk_bf16_f32 v59, v54, v55")
    e("s_lshl_b32 s50, s24, 11")
    e("s_lshr_b32 s51, s25, 1"); e("s_lshl_b32 s51, s51, 10"); e("s_add_u32 s50, s50, s51")
    e("s_and_b32 s51, s25, 1"); e("s_lshl_b32 s51, s51, 3"); e("s_add_u32 s50, s50, s51")
    e("v_lshlrev_b32 v13, 4, v2")
    e("buffer_store_dwordx2 v[56:57], v13, s[44:47], s50 offen")
    e("s_add_u32 s50, s50, 8192")
    e("buffer_store_dwordx2 v[58:59], v13, s[44:47], s50 offen")
    e("K1_END:")
    e("s_endpgm")

def finish(g, launches, header_src):
    head = []
    for line in open(header_src).read().split("\n"):
        if line.startswith("; @launch") or line.startswith(".amdgcn_target"): break
        if line.startswith("; Override") or line.startswith("; grid=ceil"): continue
        head.append(line)
    out = head + launches + ['.amdgcn_target "amdgcn-amd-amdhsa--gfx950"', ".text"] + fix_hazards(g.L, True)
    return "\n".join(out) + "\n"
```

```python
from gen import *

PMAX = 80
NBLK = PMAX // 8
GSZ = PMAX * 16
NGRP = 13
TOKROW = 144
TOKNODE = 8 * TOKROW
L_TOK = 0
L_STREAM = 100 * TOKNODE
L_WF = L_STREAM + NGRP * GSZ + 512
L_KEY = L_WF + 16384
L_DUMMY = L_KEY + 512
L_NODEOF = L_DUMMY + 256
L_DEGOF = L_NODEOF + 512
L_INFO = L_DEGOF + 512
L_DISF = L_INFO + 512
L_SLOW = L_DISF + 512
P_LDS = L_SLOW + 64
RING = 16
TRYMAX = 200000
NHOPS = 7
GATE = False
GDELAY = 0
FORCESLOW = False
SLEEP = 2

sWS, sGI, sGO, sX, sDIS, sTAB, sOUT, sWR = 20, 24, 28, 32, 36, 40, 44, 48
sK, sP0, sEXIT, sTRY = 52, 53, 54, 55
sOFFJ = 56
sM800 = 60
sTMP = 62
sVALID = 70
sI1, sI2 = 72, 73
s128 = 74
sRET = 76
sSLOW = 75
vTID, vLANE, vL16, vIDXA = 0, 1, 2, 3
vA1, vA2, vAC1, vAC2 = 4, 8, 12, 16
vMAX, vT0, vT1 = 20, 21, 22
vIDX = 24
vRING = 40
vOFF = 104
vDIS1, vDIS2, vDIS3, vTOKA, vGOFF = 120, 121, 122, 123, 124
vF = 40

def tree(g, sreg, lo, hi, label):
    if lo == hi:
        g.e(f"s_branch {label(lo)}"); return
    mid = (lo + hi + 1) // 2
    l = g.lab("TR")
    g.e(f"s_cmp_ge_u32 s{sreg}, {mid}")
    g.e(f"s_cbranch_scc1 {l}")
    tree(g, sreg, lo, mid - 1, label)
    g.e(f"{l}:")
    tree(g, sreg, mid, hi, label)

def gen_p(g, dump=False, final=True, sc1=True, dbgstat=False):
    e = g.e
    SC = " sc1" if sc1 else ""
    kernel_header(g, "graph_kernel")
    e(f"s_cmp_ge_u32 s2, {NB}")
    e("s_cbranch_scc1 P_END")
    e("s_load_dwordx8 s[4:11], s[0:1], 0")
    e("s_load_dwordx2 s[12:13], s[0:1], 88")
    e("s_load_dwordx2 s[14:15], s[0:1], 72")
    e("s_load_dwordx2 s[16:17], s[0:1], 64")
    e("s_load_dwordx2 s[18:19], s[0:1], 80")
    if dbgstat: e("s_memrealtime s[90:91]")
    e(f"v_and_b32 v{vLANE}, 63, v0")
    e("v_lshrrev_b32 v40, 6, v0")
    e("v_readfirstlane_b32 s3, v40")
    e(f"s_movk_i32 s{s128}, 128")
    e("v_lshlrev_b32 v41, 2, v0")
    e("v_sub_u32 v42, 255, v0")
    e("s_movk_i32 s62, 100")
    e("v_cmp_gt_u32 vcc, s62, v0")
    e("v_cndmask_b32 v42, 0, v42, vcc")
    e("v_mov_b32 v43, 0")
    for r in range(4): e(f"v_mov_b32 v{124+r}, 0")
    e("s_movk_i32 s62, 128")
    e("v_cmp_gt_u32 vcc, s62, v0")
    e("s_and_saveexec_b64 s[64:65], vcc")
    e(f"ds_write_b32 v41, v42 offset:{L_KEY - 0}" if L_KEY < 65536 else
      f"v_add_u32 v44, {L_KEY}, v41\nds_write_b32 v44, v42\nds_write_b32 v44, v43 offset:{L_NODEOF-L_KEY}\nds_write_b32 v44, v43 offset:{L_DEGOF-L_KEY}\nds_write_b32 v44, v43 offset:{L_SLOW-L_KEY}" if False else
      f"v_add_u32 v44, {L_KEY}, v41\nds_write_b32 v44, v42\nds_write_b32 v44, v43 offset:{L_NODEOF-L_KEY}\nds_write_b32 v44, v43 offset:{L_DEGOF-L_KEY}")
    e("s_mov_b64 exec, s[64:65]")
    e("v_lshlrev_b32 v45, 4, v0")
    e("v_mov_b32 v48, -1"); e("v_mov_b32 v49, -1"); e("v_mov_b32 v50, -1"); e("v_mov_b32 v51, -1")
    e(f"v_add_u32 v46, {L_STREAM}, v45")
    e("ds_write_b128 v46, v[48:51]")
    nextra = (NGRP * GSZ + 512 - 16384) // 16
    e(f"v_cmp_gt_u32 vcc, {nextra}, v0" if nextra <= 64 else f"s_movk_i32 s62, {nextra}\nv_cmp_gt_u32 vcc, s62, v0")
    e("s_and_saveexec_b64 s[64:65], vcc")
    e("ds_write_b128 v46, v[48:51] offset:16384")
    e(f"v_mov_b32 v47, {L_SLOW}")
    e("ds_write_b32 v47, v43")
    e("ds_write_b128 v47, v[124:127] offset:16")
    e("s_mov_b64 exec, s[64:65]")
    e("s_movk_i32 s62, 800")
    e("v_cmp_gt_u32 vcc, s62, v0")
    e(f"s_mov_b64 s[{sM800}:{sM800+1}], vcc")
    e("s_waitcnt lgkmcnt(0)")
    srd(g, sWS, 12, 13, hex(WS_BYTES))
    srd(g, sX, 4, 5, 3200000)
    srd(g, sDIS, 10, 11, 50000)
    srd(g, sTAB, 12, 13, NB * 1024, add=hex(WS_TAB))
    srd(g, sOUT, 14, 15, 3200000)
    srd(g, sWR, 16, 17, 128)
    e("v_and_b32 v52, 0xfffffffc, v0")
    e("s_lshl_b32 s62, s2, 10")
    e(f"buffer_load_dword v53, v52, s[{sTAB}:{sTAB+3}], s62 offen")
    e("s_mul_i32 s63, s2, 12800")
    e(f"buffer_load_dwordx4 v[56:59], v45, s[{sX}:{sX+3}], s63 offen")
    e("v_lshlrev_b32 v54, 1, v0")
    e("s_mul_i32 s64, s2, 200")
    e(f"buffer_load_ushort v55, v54, s[{sDIS}:{sDIS+3}], s64 offen")
    e(f"s_mov_b32 s65, {hex(WS_WF)}")
    e(f"buffer_load_dwordx4 v[60:63], v45, s[{sWS}:{sWS+3}], s65 offen")
    e("v_lshrrev_b32 v64, 2, v0")
    e("v_and_b32 v65, 3, v0")
    e("s_movk_i32 s66, 12800")
    e("v_mul_u32_u24 v66, s66, v64")
    e("v_lshl_add_u32 v66, v65, 4, v66")
    e("s_movk_i32 s66, 1000")
    e("v_cmp_gt_u32 vcc, s66, v0")
    e("s_waitcnt vmcnt(3)")
    e("v_cndmask_b32 v53, 0, v53, vcc")
    e("v_and_b32 v67, 0xffff, v53")
    e("v_lshrrev_b32 v68, 16, v53")
    e("v_lshl_add_u32 v66, v67, 2, v66")
    e("v_lshlrev_b32 v69, 2, v65")
    e("v_sub_u32 v69, v68, v69")
    R = 72
    O = 84
    e(f"buffer_load_dwordx4 v[{R}:{R+3}], v66, s[{sWS}:{sWS+3}], 0 offen")
    e("v_cmp_lt_i32 vcc, 16, v69")
    e(f"s_mov_b32 s{sI1}, 0"); e(f"s_mov_b32 s{sI2}, 0")
    e("s_cbranch_vccz P_NOI1")
    e(f"s_mov_b32 s{sI1}, 1")
    e(f"buffer_load_dwordx4 v[{R+4}:{R+7}], v66, s[{sWS}:{sWS+3}], 0 offen offset:64")
    e("v_cmp_lt_i32 vcc, 32, v69")
    e("s_cbranch_vccz P_NOI1")
    e(f"s_mov_b32 s{sI2}, 1")
    e(f"buffer_load_dwordx4 v[{R+8}:{R+11}], v66, s[{sWS}:{sWS+3}], 0 offen offset:128")
    e("P_NOI1:")
    e("v_cmp_lt_u32 vcc, 48, v68")
    e("s_mov_b64 s[66:67], vcc")
    e("s_waitcnt lgkmcnt(0)")
    e("s_barrier")
    e("s_and_saveexec_b64 s[64:65], vcc")
    e("v_mov_b32 v70, 1")
    e(f"v_mov_b32 v71, {L_SLOW}")
    e("ds_write_b32 v71, v70")
    e("s_mov_b64 exec, s[64:65]")
    e("s_waitcnt vmcnt(0)")
    e(f"s_mov_b64 exec, s[{sM800}:{sM800+1}]")
    e("s_cbranch_execz P_NOPOI")
    for k in range(2, 7):
        e(f"s_add_u32 s66, s63, {hex(WS_G + k * WS_GS)}")
        e(f"buffer_store_dwordx4 v[48:51], v45, s[{sWS}:{sWS+3}], s66 offen{SC}")
    e("v_lshrrev_b32 v70, 3, v0")
    e(f"v_mul_u32_u24 v70, {TOKNODE}, v70" if TOKNODE <= 64 else f"s_movk_i32 s66, {TOKNODE}\nv_mul_u32_u24 v70, s66, v70")
    e("v_and_b32 v71, 7, v0")
    e("v_lshl_add_u32 v70, v71, 4, v70")
    e("ds_write_b128 v70, v[56:59]")
    e("P_NOPOI:")
    e("s_mov_b64 exec, -1")
    e(f"v_add_u32 v70, {L_WF}, v45")
    e("ds_write_b128 v70, v[60:63]")
    e("s_movk_i32 s66, 100")
    e("v_cmp_gt_u32 vcc, s66, v0")
    e("s_and_saveexec_b64 s[64:65], vcc")
    e("v_lshlrev_b32 v55, 16, v55")
    e(f"v_add_u32 v70, {L_DISF}, v41")
    e("ds_write_b32 v70, v55")
    e("s_mov_b64 exec, s[64:65]")
    e(f"v_mov_b32 v70, {s128 and 128}")
    e(f"v_lshlrev_b32 v71, 2, v{vLANE}")
    e(f"v_add_u32 v71, {L_DUMMY}, v71")
    A = 96
    def atom(i):
        for u in range(4):
            r = R + 4 * i + u
            e(f"v_lshrrev_b32 v{A+4*i+u}, 16, v{r}")
            e(f"v_cmp_lt_i32 s[{sTMP + 2*(u%2)}:{sTMP + 2*(u%2) + 1}], {16*i+u}, v69")
            e(f"v_lshlrev_b32 v108, 2, v{A+4*i+u}")
            e(f"v_add_u32 v108, {L_KEY}, v108")
            e(f"v_cndmask_b32 v108, v71, v108, s[{sTMP + 2*(u%2)}:{sTMP + 2*(u%2) + 1}]")
            e(f"ds_add_rtn_u32 v{O+4*i+u}, v108, v70")
    atom(0)
    e(f"s_cmp_eq_u32 s{sI1}, 0"); e("s_cbranch_scc1 P_AT_D")
    atom(1)
    e(f"s_cmp_eq_u32 s{sI2}, 0"); e("s_cbranch_scc1 P_AT_D")
    atom(2)
    e("P_AT_D:")
    e("s_waitcnt lgkmcnt(0)")
    e("s_barrier")
    e("v_lshrrev_b32 v108, 3, v0")
    e("v_and_b32 v109, 7, v0")
    e("v_lshlrev_b32 v110, 6, v109")
    e(f"v_add_u32 v110, {L_KEY}, v110")
    for q in range(4):
        e(f"ds_read_b128 v[{112+4*q}:{115+4*q}], v110 offset:{16*q}")
    e("v_lshlrev_b32 v111, 2, v108")
    e(f"v_add_u32 v111, {L_KEY}, v111")
    e("ds_read_b32 v109, v111")
    e("v_mov_b32 v110, 0")
    e("s_waitcnt lgkmcnt(0)")
    for q in range(4):
        for u in range(4):
            e(f"v_cmp_gt_u32 s[{sTMP+2*u}:{sTMP+2*u+1}], v{112+4*q+u}, v109")
        for u in range(4):
            e(f"v_addc_co_u32 v110, vcc, 0, v110, s[{sTMP+2*u}:{sTMP+2*u+1}]")
    e("v_add_u32_dpp v110, v110, v110 quad_perm:[1,0,3,2] row_mask:0xf bank_mask:0xf")
    e("v_add_u32_dpp v110, v110, v110 quad_perm:[2,3,0,1] row_mask:0xf bank_mask:0xf")
    e("v_add_u32_dpp v110, v110, v110 row_half_mirror row_mask:0xf bank_mask:0xf")
    e("v_lshrrev_b32 v112, 7, v109")
    e("v_add_u32 v112, -1, v112")
    e("v_and_b32 v113, 7, v0")
    e("v_cmp_eq_u32 vcc, 0, v113")
    e(f"s_and_b64 s[64:65], vcc, s[{sM800}:{sM800+1}]")
    e("s_mov_b64 exec, s[64:65]")
    e("v_lshlrev_b32 v113, 2, v110")
    e(f"v_add_u32 v113, {L_NODEOF}, v113")
    e("ds_write_b32 v113, v108")
    e(f"ds_write_b32 v113, v112 offset:{L_DEGOF - L_NODEOF}")
    e("s_mov_b64 exec, -1")
    e("s_waitcnt lgkmcnt(0)")
    e("s_barrier")
    e("s_mov_b64 exec, s[64:65]")
    e("v_and_b32 v113, 0xfffffff8, v110")
    e("v_lshlrev_b32 v113, 2, v113")
    e(f"v_add_u32 v113, {L_DEGOF}, v113")
    e("ds_read_b32 v114, v113")
    e("v_lshrrev_b32 v115, 3, v110")
    e(f"s_movk_i32 s66, {GSZ}")
    e("v_mul_u32_u24 v115, s66, v115")
    e("v_and_b32 v116, 7, v110")
    e("v_lshl_add_u32 v115, v116, 4, v115")
    e("s_waitcnt lgkmcnt(0)")
    e(f"v_cmp_lt_u32 vcc, {PMAX}, v114" if PMAX <= 64 else f"s_movk_i32 s66, {PMAX}\nv_cmp_lt_u32 vcc, s66, v114")
    e(f"v_sub_u32 v116, {PMAX}, v114")
    e("v_cndmask_b32 v116, v116, 0, vcc")
    e("v_lshl_or_b32 v115, v116, 16, v115")
    e(f"v_add_u32 v113, {L_INFO - L_KEY}, v111")
    e("ds_write_b32 v113, v115")
    e("s_and_b64 exec, exec, vcc")
    e("v_mov_b32 v116, 1")
    e(f"v_mov_b32 v117, {L_SLOW}")
    e("ds_write_b32 v117, v116")
    e("s_mov_b64 exec, -1")
    e("s_waitcnt lgkmcnt(0)")
    e("s_barrier")
    def place(i):
        for u in range(4):
            e(f"v_lshlrev_b32 v108, 2, v{A+4*i+u}")
            e(f"v_add_u32 v108, {L_INFO}, v108")
            e(f"ds_read_b32 v{112+u}, v108")
        e("s_waitcnt lgkmcnt(0)")
        for u in range(4):
            m = sTMP + 2 * (u % 2)
            e(f"v_lshrrev_b32 v108, 7, v{O+4*i+u}")
            e(f"v_lshrrev_b32 v109, 16, v{112+u}")
            e("v_add3_u32 v108, v108, v109, -1")
            e(f"v_cmp_lt_i32 s[{m}:{m+1}], {16*i+u}, v69")
            e(f"s_movk_i32 s66, {PMAX}")
            e("v_cmp_gt_u32 vcc, s66, v108")
            e(f"s_and_b64 s[{m}:{m+1}], s[{m}:{m+1}], vcc")
            e(f"v_and_b32 v109, 0xffff, v{112+u}")
            e("v_lshrrev_b32 v110, 3, v108")
            e("v_lshl_add_u32 v109, v110, 7, v109")
            e("v_and_b32 v110, 7, v108")
            e("v_lshl_add_u32 v109, v110, 1, v109")
            e(f"v_add_u32 v109, {L_STREAM}, v109")
            e(f"v_cndmask_b32 v109, v71, v109, s[{m}:{m+1}]")
            e(f"ds_write_b16 v109, v{R+4*i+u}")
    place(0)
    e(f"s_cmp_eq_u32 s{sI1}, 0"); e("s_cbranch_scc1 P_PL_D")
    place(1)
    e(f"s_cmp_eq_u32 s{sI2}, 0"); e("s_cbranch_scc1 P_PL_D")
    place(2)
    e("P_PL_D:")
    e("s_waitcnt vmcnt(0) lgkmcnt(0)")
    e("s_barrier")
    e(f"s_cmp_ge_u32 s3, {NGRP}")
    e("s_cbranch_scc1 P_END")
    e(f"v_mov_b32 v60, {L_SLOW}")
    e("ds_read_b32 v61, v60")
    e("s_lshl_b32 s62, s3, 5")
    e(f"s_add_u32 s63, s62, {L_DEGOF}")
    e("v_mov_b32 v62, s63")
    e("ds_read_b32 v63, v62")
    e(f"v_lshrrev_b32 v64, 4, v{vLANE}")
    e(f"v_bfe_u32 v65, v{vLANE}, 3, 1")
    e(f"v_and_b32 v66, 7, v{vLANE}")
    e(f"v_lshlrev_b32 v{vL16}, 4, v66")
    e("v_lshrrev_b32 v67, 1, v64")
    e("v_lshl_add_u32 v68, v67, 1, v65")
    e("v_and_b32 v69, 1, v64")
    e("v_lshl_add_u32 v69, v69, 2, v68")
    e(f"s_add_u32 s63, s62, {L_NODEOF}")
    e("v_lshl_add_u32 v70, v68, 2, s63")
    e("ds_read_b32 v71, v70")
    e("ds_read_b32 v72, v70 offset:16")
    e("v_lshl_add_u32 v70, v69, 2, s63")
    e("ds_read_b32 v73, v70")
    e("s_lshl_b32 s64, s3, 3")
    e("v_add_u32 v69, s64, v69")
    e("s_movk_i32 s66, 100")
    e("v_cmp_gt_u32 vcc, s66, v69")
    e(f"s_mov_b64 s[{sVALID}:{sVALID+1}], vcc")
    e(f"v_lshrrev_b32 v74, 3, v{vLANE}")
    e(f"s_mul_i32 s64, s3, {GSZ}")
    e(f"s_add_u32 s64, s64, {L_STREAM}")
    e(f"v_lshl_add_u32 v{vIDXA}, v74, 4, s64")
    e("s_waitcnt lgkmcnt(0)")
    e(f"v_readfirstlane_b32 s{sSLOW}, v61")
    e("v_readfirstlane_b32 s67, v63")
    for (n, d) in ((71, vDIS1), (72, vDIS2), (73, vDIS3)):
        e(f"v_lshlrev_b32 v70, 2, v{n}")
        e(f"v_add_u32 v70, {L_DISF}, v70")
        e(f"ds_read_b32 v{d}, v70")
    e(f"s_movk_i32 s64, {TOKNODE}")
    e(f"v_mul_u32_u24 v{vTOKA}, s64, v73")
    e(f"v_add_u32 v{vTOKA}, v{vTOKA}, v{vL16}")
    e("s_mul_i32 s64, s2, 100")
    e("v_add_u32 v73, s64, v73")
    e(f"v_lshl_add_u32 v{vGOFF}, v73, 7, v{vL16}")
    e("s_max_u32 s67, s67, 16")
    e(f"s_min_u32 s67, s67, {PMAX}")
    e(f"s_sub_u32 s{sP0}, {PMAX}, s67")
    e(f"s_add_u32 s{sEXIT}, s{sP0}, 15")
    e(f"s_lshr_b32 s64, s{sP0}, 3")
    for j in range(4):
        e(f"s_sub_u32 s65, {j}, s64"); e("s_and_b32 s65, s65, 3"); e("s_add_u32 s65, s65, s64")
        e(f"s_lshl_b32 s{sOFFJ+j}, s65, 7")
    e(f"v_and_b32 v64, 7, v{vLANE}")
    e("v_lshrrev_b32 v65, 1, v64")
    e("v_and_b32 v66, 1, v64")
    e("v_lshlrev_b32 v66, 4, v66")
    e("v_mov_b32 v67, 0x3f80")
    e("v_lshlrev_b32 v67, v66, v67")
    e(f"v_lshrrev_b32 v68, 4, v{vLANE}")
    e(f"v_bfe_u32 v69, v{vLANE}, 3, 1")
    e("v_add_u32 v70, 2, v69")
    e("v_cmp_eq_u32 s[62:63], v68, v69")
    e("v_cmp_eq_u32 s[64:65], v68, v70")
    for r in range(4):
        e(f"v_cmp_eq_u32 vcc, {r}, v65")
        e(f"s_and_b64 s[68:69], vcc, s[62:63]")
        e(f"v_cndmask_b32 v{vA1+r}, 0, v67, s[68:69]")
        e(f"s_and_b64 s[68:69], vcc, s[64:65]")
        e(f"v_cndmask_b32 v{vA2+r}, 0, v67, s[68:69]")
    if FORCESLOW:
        e("s_cmp_lt_u32 s2, 3"); e("s_cbranch_scc0 P_NOFS"); e(f"s_mov_b32 s{sSLOW}, 1"); e("P_NOFS:")
    for i in range(RING): e(f"v_mov_b32 v{vOFF+i}, 0x7ffffff0")
    e(f"s_mov_b32 s{sK}, 1")
    e(f"s_mov_b32 s{sGI+2}, 3200000"); e(f"s_mov_b32 s{sGI+3}, {SRD3}")
    e(f"s_mov_b32 s{sGO+2}, 3200000"); e(f"s_mov_b32 s{sGO+3}, {SRD3}")
    e(f"s_add_u32 s{sGO}, s12, {hex(WS_G)}"); e(f"s_addc_u32 s{sGO+1}, s13, 0")
    e("s_waitcnt lgkmcnt(0)")
    def stamp(idx, val, pre=None):
        if pre is None: e("s_memrealtime s[62:63]")
        else: e(f"s_mov_b32 s62, s{pre}")
        e("s_lshl_b32 s64, s2, 4"); e("s_add_u32 s64, s64, s3"); e("s_lshl_b32 s64, s64, 4")
        e(f"s_add_u32 s64, s64, {idx}"); e("s_lshl_b32 s64, s64, 3")
        e(f"s_add_u32 s64, s64, {hex(WS_STAMP)}")
        e("s_waitcnt lgkmcnt(0)")
        e("s_mov_b64 exec, 1")
        e(f"v_mov_b32 v{vF}, s62"); e(f"v_mov_b32 v{vF+1}, {val}"); e(f"v_mov_b32 v{vF+2}, s64")
        e(f"buffer_store_dwordx2 v[{vF}:{vF+1}], v{vF+2}, s[{sWS}:{sWS+3}], 0 offen")
        e("s_mov_b64 exec, -1")
    if dbgstat:
        stamp("0", f"s{sEXIT}")
        stamp("8", "0", pre=90)
    e("P_HOP:")
    e(f"s_mov_b32 s{sGI}, s{sGO}"); e(f"s_mov_b32 s{sGI+1}, s{sGO+1}")
    e(f"s_add_u32 s{sGO}, s{sGO}, {hex(WS_GS)}"); e(f"s_addc_u32 s{sGO+1}, s{sGO+1}, 0")
    e(f"s_mov_b32 s{sTRY}, 0")
    if GATE:
        e(f"s_sub_u32 s62, s{sK}, 1")
        e(f"s_mul_i32 s62, s62, {NGRP}")
        e(f"v_mov_b32 v{vT1}, {L_SLOW + 16}")
        e("P_GATE:")
        e(f"ds_read_b32 v{vT0}, v{vT1}")
        e("s_waitcnt lgkmcnt(0)")
        e(f"v_readfirstlane_b32 s63, v{vT0}")
        e("s_cmp_ge_u32 s63, s62")
        e("s_cbranch_scc1 P_GATED")
        e("s_sleep 2")
        e("s_branch P_GATE")
        e("P_GATED:")
        if GDELAY: e(f"s_sleep {GDELAY}")
    e(f"s_cmp_lg_u32 s{sSLOW}, 0")
    e("s_cbranch_scc1 P_SLOWG")
    for j in range(4):
        e(f"v_add_u32 v{vT0}, s{sOFFJ+j}, v{vIDXA}")
        e(f"ds_read_b128 v[{vIDX+4*j}:{vIDX+4*j+3}], v{vT0}")
    for i in range(8): e(f"v_mov_b32 v{vAC1+i}, 0")
    e("s_waitcnt lgkmcnt(0)")
    tree(g, sP0, 0, PMAX - 16, lambda p: f"PA_{p}")
    def issue(p):
        blk = p // 8; r = vIDX + 4 * (blk % 4) + (p % 8) // 2
        t = vOFF + (p % RING)
        s = vRING + 4 * (p % RING)
        e(f"v_mad_u32_u16 v{t}, v{r}, s{s128}, v{vL16} op_sel:[{p%2},0,0,0]")
        e(f"buffer_load_dwordx4 v[{s}:{s+3}], v{t}, s[{sGI}:{sGI+3}], 0 offen{SC}")
    def check(sl):
        s = vRING + 4 * sl
        e(f"v_max3_u32 v{vT0}, v{s}, v{s+1}, v{s+2}")
        e(f"v_max_u32 v{vT0}, v{vT0}, v{s+3}")
        e(f"v_cmp_eq_u32 vcc, -1, v{vT0}")
    for p in range(PMAX):
        e(f"PA_{p}:")
        issue(p)
        if p >= 15:
            if p < PMAX - 1:
                e(f"s_cmp_eq_u32 s{sEXIT}, {p}")
                e(f"s_cbranch_scc1 PB_{p-15}")
            else:
                e(f"s_branch PB_{p-15}")
    for p in range(PMAX):
        e(f"PB_{p}:")
        if p % 8 == 0:
            e("s_waitcnt lgkmcnt(0)")
            nb = p // 8 + 3
            if nb < NBLK:
                e(f"ds_read_b128 v[{vIDX+4*(nb%4)}:{vIDX+4*(nb%4)+3}], v{vIDXA} offset:{nb*128}")
        s = vRING + 4 * (p % RING)
        e(f"s_waitcnt vmcnt({min(RING-1, PMAX-1-p)})")
        check(p % RING)
        e(f"s_cbranch_vccnz ST_{p}")
        e(f"RT_{p}:")
        e(f"v_mfma_f32_16x16x32_bf16 v[{vAC1}:{vAC1+3}], v[{vA1}:{vA1+3}], v[{s}:{s+3}], v[{vAC1}:{vAC1+3}]")
        e(f"v_mfma_f32_16x16x32_bf16 v[{vAC2}:{vAC2+3}], v[{vA2}:{vA2+3}], v[{s}:{s+3}], v[{vAC2}:{vAC2+3}]")
        if p + RING < PMAX:
            issue(p + RING)
    e("s_branch P_FLUSH")
    for p in range(PMAX):
        e(f"ST_{p}:")
        e(f"s_call_b64 s[{sRET}:{sRET+1}], POLL_{p % RING}")
        e(f"s_branch RT_{p}")
    for sl in range(RING):
        s = vRING + 4 * sl
        e(f"POLL_{sl}:")
        e(f"s_add_u32 s{sTRY}, s{sTRY}, 1")
        e(f"s_cmp_gt_u32 s{sTRY}, {TRYMAX}")
        e("s_cbranch_scc1 P_RET")
        if SLEEP: e(f"s_sleep {SLEEP}")
        e("s_mov_b64 exec, vcc")
        e(f"buffer_load_dwordx4 v[{s}:{s+3}], v{vOFF+sl}, s[{sGI}:{sGI+3}], 0 offen{SC}")
        e("s_mov_b64 exec, -1")
        e("s_waitcnt vmcnt(0)")
        check(sl)
        e(f"s_cbranch_vccnz POLL_{sl}")
        if sl < RING - 1: e("s_branch P_REFRESH")
    e("P_REFRESH:")
    for sl in range(RING):
        s = vRING + 4 * sl
        l = g.lab("RF")
        check(sl)
        e(f"s_cbranch_vccz {l}")
        e("s_mov_b64 exec, vcc")
        e(f"buffer_load_dwordx4 v[{s}:{s+3}], v{vOFF+sl}, s[{sGI}:{sGI+3}], 0 offen{SC}")
        e("s_mov_b64 exec, -1")
        e(f"{l}:")
    e("s_waitcnt vmcnt(0)")
    e("P_RET:")
    e(f"s_setpc_b64 s[{sRET}:{sRET+1}] ; @to " + " ".join(f"RT_{p}" for p in range(PMAX)))
    e("P_FLUSH:")
    if dbgstat:
        stamp(f"s{sK}", f"s{sTRY}")
    H = vF
    for b in range(4):
        e(f"v_mul_f32 v{vAC1+b}, v{vAC1+b}, v{vDIS1}")
        e(f"v_mul_f32 v{vAC2+b}, v{vAC2+b}, v{vDIS2}")
    e(f"v_cvt_pk_bf16_f32 v{H}, v{vAC1}, v{vAC1+1}")
    e(f"v_cvt_pk_bf16_f32 v{H+1}, v{vAC1+2}, v{vAC1+3}")
    e(f"v_cvt_pk_bf16_f32 v{H+2}, v{vAC2}, v{vAC2+1}")
    e(f"v_cvt_pk_bf16_f32 v{H+3}, v{vAC2+2}, v{vAC2+3}")
    e(f"v_permlane16_swap_b32 v{H}, v{H+2}")
    e(f"v_permlane16_swap_b32 v{H+1}, v{H+3}")
    e(f"s_mov_b64 exec, s[{sVALID}:{sVALID+1}]")
    e(f"s_cmp_eq_u32 s{sK}, 7")
    e("s_cbranch_scc1 P_NOG")
    G = vF + 4
    for r in range(4):
        e(f"v_lshlrev_b32 v{vF+8}, 16, v{H+r}")
        e(f"v_and_b32 v{vF+9}, 0xffff0000, v{H+r}")
        e(f"v_mul_f32 v{vF+8}, v{vF+8}, v{vDIS3}")
        e(f"v_mul_f32 v{vF+9}, v{vF+9}, v{vDIS3}")
        e(f"v_cvt_pk_bf16_f32 v{G+r}, v{vF+8}, v{vF+9}")
        e(f"v_min_u32 v{G+r}, -2, v{G+r}")
    e(f"buffer_store_dwordx4 v[{G}:{G+3}], v{vGOFF}, s[{sGO}:{sGO+3}], 0 offen{SC}")
    e("P_NOG:")
    if GATE:
        e("s_mov_b64 exec, 1")
        e(f"v_mov_b32 v{vF+11}, {L_SLOW + 16}")
        e(f"v_mov_b32 v{vF+12}, 1")
        e(f"ds_add_u32 v{vF+11}, v{vF+12}")
        e(f"s_mov_b64 exec, s[{sVALID}:{sVALID+1}]")
    e(f"s_mul_i32 s62, s{sK}, {TOKROW}")
    e(f"v_add_u32 v{vF+10}, s62, v{vTOKA}")
    e(f"ds_write_b128 v{vF+10}, v[{H}:{H+3}]")
    e("s_mov_b64 exec, -1")
    e(f"s_add_u32 s{sK}, s{sK}, 1")
    e(f"s_cmp_le_u32 s{sK}, {NHOPS}")
    e("s_cbranch_scc1 P_HOP")
    e("P_FINAL:")
    if dump:
        e("s_waitcnt lgkmcnt(0)")
        e(f"s_mov_b64 exec, s[{sVALID}:{sVALID+1}]")
        e(f"v_sub_u32 v{vT0}, v{vGOFF}, v{vL16}")
        e(f"v_lshlrev_b32 v{vT0}, 3, v{vT0}")
        e(f"v_add_u32 v{vT0}, v{vT0}, v{vL16}")
        e(f"s_mov_b32 s62, {hex(WS_DUMP)}")
        for k in range(8):
            e(f"ds_read_b128 v[{vRING}:{vRING+3}], v{vTOKA} offset:{k*TOKROW}")
            e("s_waitcnt lgkmcnt(0)")
            e(f"buffer_store_dwordx4 v[{vRING}:{vRING+3}], v{vT0}, s[{sWS}:{sWS+3}], s62 offen offset:{k*128}")
            e("s_nop 1")
        e("s_mov_b64 exec, -1")
    if final:
        from gen_final import gen_final
        gen_final(g)
    if dbgstat:
        stamp("9", "0")
    e("s_branch P_END")
    e("P_SLOWG:")
    e(f"v_lshrrev_b32 v{vT0}, 3, v{vLANE}")
    e("s_lshl_b32 s62, s3, 5")
    e(f"s_add_u32 s62, s62, {L_NODEOF}")
    e(f"v_lshl_add_u32 v{vT1}, v{vT0}, 2, s62")
    e(f"ds_read_b32 v40, v{vT1}")
    e("s_lshl_b32 s62, s3, 3")
    e(f"v_add_u32 v{vT0}, s62, v{vT0}")
    e("s_mul_i32 s62, s2, 100")
    e("s_movk_i32 s63, 100")
    e(f"v_cmp_gt_u32 vcc, s63, v{vT0}")
    for i in range(8): e(f"v_mov_b32 v{vAC1+i}, 0")
    e(f"v_lshlrev_b32 v41, 4, v{vLANE}")
    srd(g, 88, 6, 7, 3200000)
    srd(g, 92, 8, 9, 3200000)
    e("s_waitcnt lgkmcnt(0)")
    e("v_add_u32 v40, s62, v40")
    e("v_cndmask_b32 v40, -1, v40, vcc")
    e("s_mov_b32 s66, 0")
    e("SG_CHUNK:")
    e("buffer_load_dwordx4 v[44:47], v41, s[92:95], s66 offen")
    e("buffer_load_dwordx4 v[48:51], v41, s[88:91], s66 offen")
    e("s_waitcnt vmcnt(0)")
    for u in range(4):
        e("s_mov_b32 s67, 0")
        e(f"SG_R{u}:")
        e("v_readlane_b32 s68, v40, s67")
        e("s_mov_b64 s[62:63], 0xff")
        e("s_lshl_b64 s[62:63], s[62:63], s67")
        e(f"v_cmp_eq_u32 s[64:65], s68, v{44+u}")
        e(f"SG_E{u}:")
        e("s_cmp_eq_u64 s[64:65], 0")
        e(f"s_cbranch_scc1 SG_N{u}")
        e("s_ff1_i32_b64 s69, s[64:65]")
        e("s_bitset0_b64 s[64:65], s69")
        e(f"v_readlane_b32 s68, v{48+u}, s69")
        e("s_lshl_b32 s68, s68, 7")
        e(f"v_add_u32 v42, s68, v{vL16}")
        e("v_mov_b32 v43, 0x7ffffff0")
        e("v_cndmask_b32 v42, v43, v42, s[62:63]")
        e(f"SG_P{u}:")
        e(f"buffer_load_dwordx4 v[52:55], v42, s[{sGI}:{sGI+3}], 0 offen{SC}")
        e("s_waitcnt vmcnt(0)")
        e(f"v_max3_u32 v{vT0}, v52, v53, v54")
        e(f"v_max_u32 v{vT0}, v{vT0}, v55")
        e(f"v_cmp_eq_u32 vcc, -1, v{vT0}")
        e(f"s_cbranch_vccz SG_A{u}")
        e(f"s_add_u32 s{sTRY}, s{sTRY}, 1")
        e(f"s_cmp_gt_u32 s{sTRY}, {TRYMAX}")
        e(f"s_cbranch_scc1 SG_A{u}")
        e("s_sleep 8")
        e(f"s_branch SG_P{u}")
        e(f"SG_A{u}:")
        e(f"v_mfma_f32_16x16x32_bf16 v[{vAC1}:{vAC1+3}], v[{vA1}:{vA1+3}], v[52:55], v[{vAC1}:{vAC1+3}]")
        e(f"v_mfma_f32_16x16x32_bf16 v[{vAC2}:{vAC2+3}], v[{vA2}:{vA2+3}], v[52:55], v[{vAC2}:{vAC2+3}]")
        e(f"s_branch SG_E{u}")
        e(f"SG_N{u}:")
        e("s_add_u32 s67, s67, 8")
        e("s_cmp_lt_u32 s67, 64")
        e(f"s_cbranch_scc1 SG_R{u}")
    e("s_add_u32 s66, s66, 1024")
    e("s_cmp_lt_u32 s66, 3200000")
    e("s_cbranch_scc1 SG_CHUNK")
    e("s_branch P_FLUSH")
    e("P_END:")
    e("s_endpgm")

def build(path, **kw):
    g = Gen()
    gen_k1(g)
    gen_p(g, **kw)
    kernel_desc(g, "bin_kernel", 80, 64)
    kernel_desc(g, "graph_kernel", 128, 96)
    launches = [f"; @launch kernel=bin_kernel grid=({NB+1},1,1) block=(1024,1,1) lds={K1_LDS}",
                f"; @launch kernel=graph_kernel grid=({NB},1,1) block=(1024,1,1) lds={P_LDS}"]
    s = finish(g, launches, "gather_scatter__hybrid_graph_tf_nagphormer__graph.s.ref")
    open(path, "w").write(s)
    return s

if __name__ == "__main__":
    import argparse
    ap = argparse.ArgumentParser()
    ap.add_argument("out"); ap.add_argument("--dump", action="store_true"); ap.add_argument("--nofinal", action="store_true")
    ap.add_argument("--dbgstat", action="store_true"); ap.add_argument("--sleep", type=int, default=2); ap.add_argument("--nhops", type=int, default=7); ap.add_argument("--nosc1", action="store_true"); ap.add_argument("--forceslow", action="store_true"); ap.add_argument("--gate", action="store_true"); ap.add_argument("--gdelay", type=int, default=0)
    a = ap.parse_args()
    import gen; gen.K1STAMP = a.dbgstat
    SLEEP = a.sleep; NHOPS = a.nhops; FORCESLOW = a.forceslow; GATE = a.gate; GDELAY = a.gdelay
    build(a.out, dump=a.dump, final=not a.nofinal, dbgstat=a.dbgstat, sc1=not a.nosc1)
    print("P_LDS", P_LDS)
```

```python
import sys, os
sys.path.insert(0, os.path.dirname(os.path.abspath(__file__)))
from asmlib import fix_hazards

NB = 250
NPB = 100
CH = 3200
WS_REC = 0x0
WS_TAB = 0x400000
WS_G = 0x800000
WS_GS = 0x400000
WS_WF = 0x2800000
WS_DUMP = 0x3000000
WS_STAMP = 0x2C00000
WS_BYTES = 0x8000000
K1STAMP = False
FREE = False
K1DELAY = 0
K1SC = ''
SRD3 = "0x00020000"

class Gen:
    def __init__(self):
        self.L = []
        self.uid = 0
    def e(self, s):
        for line in s.strip("\n").split("\n"):
            line = line.strip()
            if line: self.L.append(line)
    def lab(self, p="L"):
        self.uid += 1
        return f"{p}_{self.uid}"

def srd(g, d, lo, hi, nbytes, add=None):
    if add:
        g.e(f"s_add_u32 s{d}, s{lo}, {add}")
        g.e(f"s_addc_u32 s{d+1}, s{hi}, 0")
    else:
        g.e(f"s_mov_b32 s{d}, s{lo}")
        g.e(f"s_mov_b32 s{d+1}, s{hi}")
    g.e(f"s_mov_b32 s{d+2}, {nbytes}")
    g.e(f"s_mov_b32 s{d+3}, {SRD3}")

def kernel_header(g, name):
    g.e(f".globl {name}")
    g.e(".p2align 8")
    g.e(f".type {name},@function")
    g.e(f"{name}:")

def kernel_desc(g, name, nv, ns):
    g.e('.section .rodata,"a"')
    g.e(".p2align 6")
    g.e(f".amdhsa_kernel {name}")
    g.L.append(f"  .amdhsa_next_free_vgpr {nv}")
    g.L.append(f"  .amdhsa_next_free_sgpr {ns}")
    g.L.append(f"  .amdhsa_accum_offset {(nv+3)//4*4}")
    g.L.append("  .amdhsa_group_segment_fixed_size 0")
    g.L.append("  .amdhsa_kernarg_size 96")
    g.L.append("  .amdhsa_user_sgpr_count 2")
    g.L.append("  .amdhsa_user_sgpr_kernarg_segment_ptr 1")
    g.L.append("  .amdhsa_system_sgpr_workgroup_id_x 1")
    g.e(".end_amdhsa_kernel")
    g.e(".text")

K1_LDS = 2048 + 12800
def gen_k1(g):
    e = g.e
    kernel_header(g, "bin_kernel")
    e(f"s_cmp_gt_u32 s2, {NB}")
    e("s_cbranch_scc1 K1_END")
    e("s_load_dwordx8 s[4:11], s[0:1], 0")
    e("s_load_dwordx2 s[12:13], s[0:1], 88")
    if K1STAMP: e("s_memrealtime s[52:53]")
    if K1DELAY: e(f"s_sleep {K1DELAY}")
    e(f"s_cmp_eq_u32 s2, {NB}")
    e("s_cbranch_scc1 K1_W")
    e("v_lshlrev_b32 v1, 4, v0")
    e("v_lshlrev_b32 v2, 2, v0")
    e("v_mov_b32 v3, 0")
    e("s_movk_i32 s14, 0x100")
    e("v_cmp_gt_u32 vcc, s14, v0")
    e("s_and_saveexec_b64 s[40:41], vcc")
    e("ds_write_b32 v2, v3")
    e("s_mov_b64 exec, s[40:41]")
    e("s_movk_i32 s14, 800")
    e("v_cmp_gt_u32 vcc, s14, v0")
    e("s_mov_b64 s[42:43], vcc")
    e("s_mul_i32 s14, s2, 12800")
    e("s_mul_i32 s15, s2, 200")
    e("v_lshrrev_b32 v4, 3, v0")
    e("v_lshlrev_b32 v4, 1, v4")
    e("s_waitcnt lgkmcnt(0)")
    srd(g, 16, 6, 7, 3200000)
    srd(g, 20, 8, 9, 3200000)
    srd(g, 24, 4, 5, 3200000)
    srd(g, 28, 10, 11, 50000)
    srd(g, 32, 12, 13, hex(WS_BYTES))
    srd(g, 36, 12, 13, NB * 1024, add=hex(WS_TAB))
    e("s_mov_b64 exec, s[42:43]")
    e("s_cbranch_execz K1_NOLD")
    e("buffer_load_dwordx4 v[8:11], v1, s[20:23], s14 offen")
    e("buffer_load_dwordx4 v[12:15], v1, s[16:19], s14 offen")
    e("buffer_load_dwordx4 v[16:19], v1, s[24:27], s14 offen")
    e("buffer_load_ushort v20, v4, s[28:31], s15 offen")
    for r_ in range(4): e(f"v_mov_b32 v{24+r_}, {0 if FREE else -1}")
    e(f"s_add_u32 s44, s14, {hex(WS_G + WS_GS)}")
    e("buffer_store_dwordx4 v[24:27], v1, s[32:35], s44 offen" + K1SC)
    e("K1_NOLD:")
    e("s_mov_b64 exec, -1")
    e("s_waitcnt lgkmcnt(0)")
    e("s_barrier")
    e("s_mov_b64 exec, s[42:43]")
    e("s_cbranch_execz K1_B1")
    e("s_waitcnt vmcnt(4)")
    e("s_movk_i32 s45, 5243")
    e("v_mov_b32 v21, 1")
    for u in range(4):
        e(f"v_mul_u32_u24 v{28+u}, s45, v{8+u}")
        e(f"v_lshrrev_b32 v{28+u}, 19, v{28+u}")
        e(f"v_mul_u32_u24 v22, 100, v{28+u}")
        e(f"v_sub_u32 v{8+u}, v{8+u}, v22")
        e(f"v_lshlrev_b32 v{28+u}, 2, v{28+u}")
        e(f"ds_add_rtn_u32 v{32+u}, v{28+u}, v21")
    e("s_waitcnt vmcnt(3)")
    for u in range(4):
        e(f"v_lshl_or_b32 v{8+u}, v{8+u}, 16, v{12+u}")
    e("s_waitcnt vmcnt(1)")
    e("v_lshlrev_b32 v20, 16, v20")
    for r in range(4):
        e(f"v_lshlrev_b32 v22, 16, v{16+r}")
        e(f"v_and_b32 v23, 0xffff0000, v{16+r}")
        e("v_mul_f32 v22, v22, v20")
        e("v_mul_f32 v23, v23, v20")
        e(f"v_cvt_pk_bf16_f32 v{16+r}, v22, v23")
    e(f"s_add_u32 s44, s14, {hex(WS_G)}")
    e("buffer_store_dwordx4 v[16:19], v1, s[32:35], s44 offen" + K1SC)
    e("K1_B1:")
    e("s_mov_b64 exec, -1")
    e("s_waitcnt lgkmcnt(0)")
    e("s_barrier")
    e("v_cmp_gt_u32 vcc, 64, v0")
    e("s_and_saveexec_b64 s[40:41], vcc")
    e("s_cbranch_execz K1_B2")
    e("ds_read_b128 v[40:43], v1")
    e("s_waitcnt lgkmcnt(0)")
    e("v_add_u32 v44, v40, v41")
    e("v_add_u32 v45, v44, v42")
    e("v_add_u32 v46, v45, v43")
    e("v_mov_b32 v47, v46")
    for sh in (1, 2, 4, 8):
        e(f"v_add_u32_dpp v47, v47, v47 row_shr:{sh} row_mask:0xf bank_mask:0xf bound_ctrl:0")
    e("v_add_u32_dpp v47, v47, v47 row_bcast:15 row_mask:0xa bank_mask:0xf")
    e("v_add_u32_dpp v47, v47, v47 row_bcast:31 row_mask:0xc bank_mask:0xf")
    e("v_sub_u32 v48, v47, v46")
    e("v_add_u32 v49, v48, v40")
    e("v_add_u32 v50, v48, v44")
    e("v_add_u32 v51, v48, v45")
    e("ds_write_b128 v1, v[48:51] offset:1024")
    e("s_lshl_b32 s46, s2, 2")
    e("v_lshlrev_b32 v52, 12, v0")
    for u in range(4):
        e(f"v_lshl_or_b32 v{40+u}, v{40+u}, 16, v{48+u}")
        e(f"buffer_store_dword v{40+u}, v52, s[36:39], s46 offen offset:{1024*u}" + K1SC)
    e("K1_B2:")
    e("s_mov_b64 exec, -1")
    e("s_waitcnt lgkmcnt(0)")
    e("s_barrier")
    e("s_mov_b64 exec, s[42:43]")
    e("s_cbranch_execz K1_B3")
    for u in range(4):
        e(f"ds_read_b32 v{36+u}, v{28+u} offset:1024")
    e("s_waitcnt lgkmcnt(0)")
    for u in range(4):
        e(f"v_add_u32 v{36+u}, v{36+u}, v{32+u}")
        e(f"v_lshlrev_b32 v{36+u}, 2, v{36+u}")
        e(f"ds_write_b32 v{36+u}, v{8+u} offset:2048")
    e("K1_B3:")
    e("s_mov_b64 exec, -1")
    e("s_waitcnt lgkmcnt(0)")
    e("s_barrier")
    e("s_mov_b64 exec, s[42:43]")
    e("s_cbranch_execz K1_END")
    e("ds_read_b128 v[40:43], v1 offset:2048")
    e("s_waitcnt lgkmcnt(0)")
    e("buffer_store_dwordx4 v[40:43], v1, s[32:35], s14 offen" + K1SC)
    if K1STAMP:
        e("s_waitcnt vmcnt(0)")
        e("s_memrealtime s[54:55]")
        e("s_lshl_b32 s56, s2, 4"); e(f"s_add_u32 s56, s56, {hex(WS_STAMP + 0x100000)}")
        e("v_cmp_eq_u32 vcc, 0, v0"); e("s_and_b64 exec, exec, vcc")
        e("s_waitcnt lgkmcnt(0)")
        e("v_mov_b32 v40, s52"); e("v_mov_b32 v41, s54"); e("v_mov_b32 v42, s56")
        e("buffer_store_dwordx2 v[40:41], v42, s[32:35], 0 offen")
    e("s_endpgm")
    e("K1_W:")
    e("s_load_dwordx8 s[16:23], s[0:1], 32")
    e("v_lshrrev_b32 v1, 6, v0")
    e("v_and_b32 v2, 63, v0")
    e("v_readfirstlane_b32 s3, v1")
    e("v_lshrrev_b32 v3, 4, v2")
    e("v_and_b32 v4, 15, v2")
    e("s_lshr_b32 s24, s3, 2")
    e("s_and_b32 s25, s3, 3")
    e("v_lshrrev_b32 v5, 2, v4")
    e("v_and_b32 v6, 3, v4")
    e("v_lshl_add_u32 v7, v5, 4, v6")
    e("s_lshl_b32 s26, s25, 2")
    e("s_lshl_b32 s27, s24, 2")
    e("v_add_u32 v8, s26, v7")
    e("v_add_u32 v9, s27, v7")
    e("v_lshlrev_b32 v10, 7, v8")
    e("v_lshl_add_u32 v10, v3, 4, v10")
    e("v_lshlrev_b32 v11, 7, v9")
    e("v_lshl_add_u32 v11, v3, 4, v11")
    e("s_waitcnt lgkmcnt(0)")
    srd(g, 28, 16, 17, 8192)
    srd(g, 32, 18, 19, 8192)
    srd(g, 36, 20, 21, 8192)
    srd(g, 40, 22, 23, 8192)
    srd(g, 44, 12, 13, 16384, add=hex(WS_WF))
    e("buffer_load_dwordx4 v[16:19], v10, s[28:31], 0 offen")
    e("buffer_load_dwordx4 v[20:23], v10, s[28:31], 0 offen offset:64")
    e("buffer_load_dwordx4 v[24:27], v11, s[32:35], 0 offen")
    e("buffer_load_dwordx4 v[28:31], v11, s[32:35], 0 offen offset:64")
    e("buffer_load_dwordx4 v[32:35], v10, s[36:39], 0 offen")
    e("buffer_load_dwordx4 v[36:39], v10, s[36:39], 0 offen offset:64")
    e("v_lshlrev_b32 v12, 10, v3")
    e("v_lshl_add_u32 v12, v9, 1, v12")
    e("s_movk_i32 s48, 0x1000")
    for sp in range(2):
        for j in range(8):
            off = (32 * sp + j) * 128
            so = "0"
            if off >= 4096:
                so = "s48"; off -= 4096
            e(f"buffer_load_ushort v{60 + sp*8 + j}, v12, s[40:43], {so} offen offset:{off}")
    for i in range(8): e(f"v_mov_b32 v{48+i}, 0")
    e("s_waitcnt vmcnt(0)")
    for r in range(8):
        e(f"v_lshl_or_b32 v{40+r}, v{61+2*r}, 16, v{60+2*r}")
    e("v_mfma_f32_16x16x32_bf16 v[48:51], v[16:19], v[24:27], v[48:51]")
    e("v_mfma_f32_16x16x32_bf16 v[52:55], v[32:35], v[40:43], v[52:55]")
    e("v_mfma_f32_16x16x32_bf16 v[48:51], v[20:23], v[28:31], v[48:51]")
    e("v_mfma_f32_16x16x32_bf16 v[52:55], v[36:39], v[44:47], v[52:55]")
    e("s_mov_b32 s49, 0x3e38aa3b")
    for b in range(4): e(f"v_mul_f32 v{48+b}, s49, v{48+b}")
    e("v_cvt_pk_bf16_f32 v56, v48, v49"); e("v_cvt_pk_bf16_f32 v57, v50, v51")
    e("v_cvt_pk_bf16_f32 v58, v52, v53"); e("v_cvt_pk_bf16_f32 v59, v54, v55")
    e("s_lshl_b32 s50, s24, 11")
    e("s_lshr_b32 s51, s25, 1"); e("s_lshl_b32 s51, s51, 10"); e("s_add_u32 s50, s50, s51")
    e("s_and_b32 s51, s25, 1"); e("s_lshl_b32 s51, s51, 3"); e("s_add_u32 s50, s50, s51")
    e("v_lshlrev_b32 v13, 4, v2")
    e("buffer_store_dwordx2 v[56:57], v13, s[44:47], s50 offen")
    e("s_add_u32 s50, s50, 8192")
    e("buffer_store_dwordx2 v[58:59], v13, s[44:47], s50 offen")
    e("K1_END:")
    e("s_endpgm")

def finish(g, launches, header_src):
    head = []
    for line in open(header_src).read().split("\n"):
        if line.startswith("; @launch") or line.startswith(".amdgcn_target"): break
        if line.startswith("; Override") or line.startswith("; grid=ceil"): continue
        head.append(line)
    out = head + launches + ['.amdgcn_target "amdgcn-amd-amdhsa--gfx950"', ".text"] + fix_hazards(g.L, True)
    return "\n".join(out) + "\n"
```

```python
from gen import *

PMAX = 80
NBLK = PMAX // 8
GSZ = PMAX * 16
NGRP = 13
TOKROW = 144
TOKNODE = 8 * TOKROW
L_TOK = 0
L_STREAM = 100 * TOKNODE
L_WF = L_STREAM + NGRP * GSZ + 512
L_KEY = L_WF + 16384
L_DUMMY = L_KEY + 512
L_NODEOF = L_DUMMY + 256
L_DEGOF = L_NODEOF + 512
L_INFO = L_DEGOF + 512
L_DISF = L_INFO + 512
L_SLOW = L_DISF + 512
P_LDS = L_SLOW + 64
RING = 16
TRYMAX = 200000
NHOPS = 7
GATE = False
GDELAY = 0
FORCESLOW = False
SLEEP = 2
PAT = None

sWS, sGI, sGO, sX, sDIS, sTAB, sOUT, sWR = 20, 24, 28, 32, 36, 40, 44, 48
sK, sP0, sEXIT, sTRY = 52, 53, 54, 55
sOFFJ = 56
sM800 = 60
sTMP = 62
sVALID = 70
sI1, sI2 = 72, 73
s128 = 74
sRET = 76
sSLOW = 75
vTID, vLANE, vL16, vIDXA = 0, 1, 2, 3
vA1, vA2, vAC1, vAC2 = 4, 8, 12, 16
vMAX, vT0, vT1 = 20, 21, 22
vIDX = 24
vRING = 40
vOFF = 104
vDIS1, vDIS2, vDIS3, vTOKA, vGOFF = 120, 121, 122, 123, 124
vF = 40

def tree(g, sreg, lo, hi, label):
    if lo == hi:
        g.e(f"s_branch {label(lo)}"); return
    mid = (lo + hi + 1) // 2
    l = g.lab("TR")
    g.e(f"s_cmp_ge_u32 s{sreg}, {mid}")
    g.e(f"s_cbranch_scc1 {l}")
    tree(g, sreg, lo, mid - 1, label)
    g.e(f"{l}:")
    tree(g, sreg, mid, hi, label)

def gen_p(g, dump=False, final=True, sc1=True, dbgstat=False):
    e = g.e
    SC = " sc1" if sc1 else ""
    kernel_header(g, "graph_kernel")
    e(f"s_cmp_ge_u32 s2, {NB}")
    e("s_cbranch_scc1 P_END")
    e("s_load_dwordx8 s[4:11], s[0:1], 0")
    e("s_load_dwordx2 s[12:13], s[0:1], 88")
    e("s_load_dwordx2 s[14:15], s[0:1], 72")
    e("s_load_dwordx2 s[16:17], s[0:1], 64")
    e("s_load_dwordx2 s[18:19], s[0:1], 80")
    if dbgstat: e("s_memrealtime s[90:91]")
    e(f"v_and_b32 v{vLANE}, 63, v0")
    e("v_lshrrev_b32 v40, 6, v0")
    e("v_readfirstlane_b32 s3, v40")
    e(f"s_movk_i32 s{s128}, 128")
    e("v_lshlrev_b32 v41, 2, v0")
    e("v_sub_u32 v42, 255, v0")
    e("s_movk_i32 s62, 100")
    e("v_cmp_gt_u32 vcc, s62, v0")
    e("v_cndmask_b32 v42, 0, v42, vcc")
    e("v_mov_b32 v43, 0")
    for r in range(4): e(f"v_mov_b32 v{124+r}, 0")
    e("s_movk_i32 s62, 128")
    e("v_cmp_gt_u32 vcc, s62, v0")
    e("s_and_saveexec_b64 s[64:65], vcc")
    e(f"ds_write_b32 v41, v42 offset:{L_KEY - 0}" if L_KEY < 65536 else
      f"v_add_u32 v44, {L_KEY}, v41\nds_write_b32 v44, v42\nds_write_b32 v44, v43 offset:{L_NODEOF-L_KEY}\nds_write_b32 v44, v43 offset:{L_DEGOF-L_KEY}\nds_write_b32 v44, v43 offset:{L_SLOW-L_KEY}" if False else
      f"v_add_u32 v44, {L_KEY}, v41\nds_write_b32 v44, v42\nds_write_b32 v44, v43 offset:{L_NODEOF-L_KEY}\nds_write_b32 v44, v43 offset:{L_DEGOF-L_KEY}")
    e("s_mov_b64 exec, s[64:65]")
    e("v_lshlrev_b32 v45, 4, v0")
    e("v_mov_b32 v48, -1"); e("v_mov_b32 v49, -1"); e("v_mov_b32 v50, -1"); e("v_mov_b32 v51, -1")
    e(f"v_add_u32 v46, {L_STREAM}, v45")
    e("ds_write_b128 v46, v[48:51]")
    nextra = (NGRP * GSZ + 512 - 16384) // 16
    e(f"v_cmp_gt_u32 vcc, {nextra}, v0" if nextra <= 64 else f"s_movk_i32 s62, {nextra}\nv_cmp_gt_u32 vcc, s62, v0")
    e("s_and_saveexec_b64 s[64:65], vcc")
    e("ds_write_b128 v46, v[48:51] offset:16384")
    e(f"v_mov_b32 v47, {L_SLOW}")
    e("ds_write_b32 v47, v43")
    e("ds_write_b128 v47, v[124:127] offset:16")
    e("s_mov_b64 exec, s[64:65]")
    e("s_movk_i32 s62, 800")
    e("v_cmp_gt_u32 vcc, s62, v0")
    e(f"s_mov_b64 s[{sM800}:{sM800+1}], vcc")
    e("s_waitcnt lgkmcnt(0)")
    srd(g, sWS, 12, 13, hex(WS_BYTES))
    srd(g, sX, 4, 5, 3200000)
    srd(g, sDIS, 10, 11, 50000)
    srd(g, sTAB, 12, 13, NB * 1024, add=hex(WS_TAB))
    srd(g, sOUT, 14, 15, 3200000)
    srd(g, sWR, 16, 17, 128)
    e("v_and_b32 v52, 0xfffffffc, v0")
    e("s_lshl_b32 s62, s2, 10")
    e(f"buffer_load_dword v53, v52, s[{sTAB}:{sTAB+3}], s62 offen")
    e("s_mul_i32 s63, s2, 12800")
    e(f"buffer_load_dwordx4 v[56:59], v45, s[{sX}:{sX+3}], s63 offen")
    e("v_lshlrev_b32 v54, 1, v0")
    e("s_mul_i32 s64, s2, 200")
    e(f"buffer_load_ushort v55, v54, s[{sDIS}:{sDIS+3}], s64 offen")
    e(f"s_mov_b32 s65, {hex(WS_WF)}")
    e(f"buffer_load_dwordx4 v[60:63], v45, s[{sWS}:{sWS+3}], s65 offen")
    e("v_lshrrev_b32 v64, 2, v0")
    e("v_and_b32 v65, 3, v0")
    e("s_movk_i32 s66, 12800")
    e("v_mul_u32_u24 v66, s66, v64")
    e("v_lshl_add_u32 v66, v65, 4, v66")
    e("s_movk_i32 s66, 1000")
    e("v_cmp_gt_u32 vcc, s66, v0")
    e("s_waitcnt vmcnt(3)")
    if dbgstat: e("s_memrealtime s[78:79]")
    e("v_cndmask_b32 v53, 0, v53, vcc")
    e("v_and_b32 v67, 0xffff, v53")
    e("v_lshrrev_b32 v68, 16, v53")
    e("v_lshl_add_u32 v66, v67, 2, v66")
    e("v_lshlrev_b32 v69, 2, v65")
    e("v_sub_u32 v69, v68, v69")
    R = 72
    O = 84
    e(f"buffer_load_dwordx4 v[{R}:{R+3}], v66, s[{sWS}:{sWS+3}], 0 offen")
    e("v_cmp_lt_i32 vcc, 16, v69")
    e(f"s_mov_b32 s{sI1}, 0"); e(f"s_mov_b32 s{sI2}, 0")
    e("s_cbranch_vccz P_NOI1")
    e(f"s_mov_b32 s{sI1}, 1")
    e(f"buffer_load_dwordx4 v[{R+4}:{R+7}], v66, s[{sWS}:{sWS+3}], 0 offen offset:64")
    e("v_cmp_lt_i32 vcc, 32, v69")
    e("s_cbranch_vccz P_NOI1")
    e(f"s_mov_b32 s{sI2}, 1")
    e(f"buffer_load_dwordx4 v[{R+8}:{R+11}], v66, s[{sWS}:{sWS+3}], 0 offen offset:128")
    e("P_NOI1:")
    e("v_cmp_lt_u32 vcc, 48, v68")
    e("s_mov_b64 s[66:67], vcc")
    e("s_waitcnt lgkmcnt(0)")
    e("s_barrier")
    e("s_and_saveexec_b64 s[64:65], vcc")
    e("v_mov_b32 v70, 1")
    e(f"v_mov_b32 v71, {L_SLOW}")
    e("ds_write_b32 v71, v70")
    e("s_mov_b64 exec, s[64:65]")
    if dbgstat: e("s_memrealtime s[80:81]")
    e("s_waitcnt vmcnt(0)")
    if dbgstat: e("s_memrealtime s[82:83]")
    e(f"s_mov_b64 exec, s[{sM800}:{sM800+1}]")
    e("s_cbranch_execz P_NOPOI")
    import gen as _gen
    PZ = 48
    if _gen.FREE:
        PZ = 116
        for r_ in range(4): e(f"v_mov_b32 v{PZ+r_}, 0")
    for k in range(2, 7):
        e(f"s_add_u32 s66, s63, {hex(WS_G + k * WS_GS)}")
        e(f"buffer_store_dwordx4 v[{PZ}:{PZ+3}], v45, s[{sWS}:{sWS+3}], s66 offen{SC}")
    e("v_lshrrev_b32 v70, 3, v0")
    e(f"v_mul_u32_u24 v70, {TOKNODE}, v70" if TOKNODE <= 64 else f"s_movk_i32 s66, {TOKNODE}\nv_mul_u32_u24 v70, s66, v70")
    e("v_and_b32 v71, 7, v0")
    e("v_lshl_add_u32 v70, v71, 4, v70")
    e("ds_write_b128 v70, v[56:59]")
    e("P_NOPOI:")
    e("s_mov_b64 exec, -1")
    e(f"v_add_u32 v70, {L_WF}, v45")
    e("ds_write_b128 v70, v[60:63]")
    e("s_movk_i32 s66, 100")
    e("v_cmp_gt_u32 vcc, s66, v0")
    e("s_and_saveexec_b64 s[64:65], vcc")
    e("v_lshlrev_b32 v55, 16, v55")
    e(f"v_add_u32 v70, {L_DISF}, v41")
    e("ds_write_b32 v70, v55")
    e("s_mov_b64 exec, s[64:65]")
    e(f"v_mov_b32 v70, {s128 and 128}")
    e(f"v_lshlrev_b32 v71, 2, v{vLANE}")
    e(f"v_add_u32 v71, {L_DUMMY}, v71")
    A = 96
    def atom(i):
        for u in range(4):
            r = R + 4 * i + u
            e(f"v_lshrrev_b32 v{A+4*i+u}, 16, v{r}")
            e(f"v_cmp_lt_i32 s[{sTMP + 2*(u%2)}:{sTMP + 2*(u%2) + 1}], {16*i+u}, v69")
            e(f"v_lshlrev_b32 v108, 2, v{A+4*i+u}")
            e(f"v_add_u32 v108, {L_KEY}, v108")
            e(f"v_cndmask_b32 v108, v71, v108, s[{sTMP + 2*(u%2)}:{sTMP + 2*(u%2) + 1}]")
            e(f"ds_add_rtn_u32 v{O+4*i+u}, v108, v70")
    atom(0)
    e(f"s_cmp_eq_u32 s{sI1}, 0"); e("s_cbranch_scc1 P_AT_D")
    atom(1)
    e(f"s_cmp_eq_u32 s{sI2}, 0"); e("s_cbranch_scc1 P_AT_D")
    atom(2)
    e("P_AT_D:")
    e("s_waitcnt lgkmcnt(0)")
    e("s_barrier")
    if dbgstat: e("s_memrealtime s[84:85]")
    e("v_lshrrev_b32 v108, 3, v0")
    e("v_and_b32 v109, 7, v0")
    e("v_lshlrev_b32 v110, 6, v109")
    e(f"v_add_u32 v110, {L_KEY}, v110")
    for q in range(4):
        e(f"ds_read_b128 v[{112+4*q}:{115+4*q}], v110 offset:{16*q}")
    e("v_lshlrev_b32 v111, 2, v108")
    e(f"v_add_u32 v111, {L_KEY}, v111")
    e("ds_read_b32 v109, v111")
    e("v_mov_b32 v110, 0")
    e("s_waitcnt lgkmcnt(0)")
    for q in range(4):
        for u in range(4):
            e(f"v_cmp_gt_u32 s[{sTMP+2*u}:{sTMP+2*u+1}], v{112+4*q+u}, v109")
        for u in range(4):
            e(f"v_addc_co_u32 v110, vcc, 0, v110, s[{sTMP+2*u}:{sTMP+2*u+1}]")
    e("v_add_u32_dpp v110, v110, v110 quad_perm:[1,0,3,2] row_mask:0xf bank_mask:0xf")
    e("v_add_u32_dpp v110, v110, v110 quad_perm:[2,3,0,1] row_mask:0xf bank_mask:0xf")
    e("v_add_u32_dpp v110, v110, v110 row_half_mirror row_mask:0xf bank_mask:0xf")
    e("v_lshrrev_b32 v112, 7, v109")
    e("v_add_u32 v112, -1, v112")
    e("v_and_b32 v113, 7, v0")
    e("v_cmp_eq_u32 vcc, 0, v113")
    e(f"s_and_b64 s[64:65], vcc, s[{sM800}:{sM800+1}]")
    e("s_mov_b64 exec, s[64:65]")
    e("v_lshlrev_b32 v113, 2, v110")
    e(f"v_add_u32 v113, {L_NODEOF}, v113")
    e("ds_write_b32 v113, v108")
    e(f"ds_write_b32 v113, v112 offset:{L_DEGOF - L_NODEOF}")
    e("s_mov_b64 exec, -1")
    e("s_waitcnt lgkmcnt(0)")
    e("s_barrier")
    e("s_mov_b64 exec, s[64:65]")
    e("v_and_b32 v113, 0xfffffff8, v110")
    e("v_lshlrev_b32 v113, 2, v113")
    e(f"v_add_u32 v113, {L_DEGOF}, v113")
    e("ds_read_b32 v114, v113")
    e("v_lshrrev_b32 v115, 3, v110")
    e(f"s_movk_i32 s66, {GSZ}")
    e("v_mul_u32_u24 v115, s66, v115")
    e("v_and_b32 v116, 7, v110")
    e("v_lshl_add_u32 v115, v116, 4, v115")
    e("s_waitcnt lgkmcnt(0)")
    e(f"v_cmp_lt_u32 vcc, {PMAX}, v114" if PMAX <= 64 else f"s_movk_i32 s66, {PMAX}\nv_cmp_lt_u32 vcc, s66, v114")
    e(f"v_sub_u32 v116, {PMAX}, v114")
    e("v_cndmask_b32 v116, v116, 0, vcc")
    e("v_lshl_or_b32 v115, v116, 16, v115")
    e(f"v_add_u32 v113, {L_INFO - L_KEY}, v111")
    e("ds_write_b32 v113, v115")
    e("s_and_b64 exec, exec, vcc")
    e("v_mov_b32 v116, 1")
    e(f"v_mov_b32 v117, {L_SLOW}")
    e("ds_write_b32 v117, v116")
    e("s_mov_b64 exec, -1")
    e("s_waitcnt lgkmcnt(0)")
    e("s_barrier")
    if dbgstat: e("s_memrealtime s[86:87]")
    def place(i):
        for u in range(4):
            e(f"v_lshlrev_b32 v108, 2, v{A+4*i+u}")
            e(f"v_add_u32 v108, {L_INFO}, v108")
            e(f"ds_read_b32 v{112+u}, v108")
        e("s_waitcnt lgkmcnt(0)")
        for u in range(4):
            m = sTMP + 2 * (u % 2)
            e(f"v_lshrrev_b32 v108, 7, v{O+4*i+u}")
            e(f"v_lshrrev_b32 v109, 16, v{112+u}")
            e("v_add3_u32 v108, v108, v109, -1")
            e(f"v_cmp_lt_i32 s[{m}:{m+1}], {16*i+u}, v69")
            e(f"s_movk_i32 s66, {PMAX}")
            e("v_cmp_gt_u32 vcc, s66, v108")
            e(f"s_and_b64 s[{m}:{m+1}], s[{m}:{m+1}], vcc")
            e(f"v_and_b32 v109, 0xffff, v{112+u}")
            e("v_lshrrev_b32 v110, 3, v108")
            e("v_lshl_add_u32 v109, v110, 7, v109")
            e("v_and_b32 v110, 7, v108")
            e("v_lshl_add_u32 v109, v110, 1, v109")
            e(f"v_add_u32 v109, {L_STREAM}, v109")
            e(f"v_cndmask_b32 v109, v71, v109, s[{m}:{m+1}]")
            e(f"ds_write_b16 v109, v{R+4*i+u}")
    place(0)
    e(f"s_cmp_eq_u32 s{sI1}, 0"); e("s_cbranch_scc1 P_PL_D")
    place(1)
    e(f"s_cmp_eq_u32 s{sI2}, 0"); e("s_cbranch_scc1 P_PL_D")
    place(2)
    e("P_PL_D:")
    e("s_waitcnt vmcnt(0) lgkmcnt(0)")
    e("s_barrier")
    if dbgstat: e("s_memrealtime s[88:89]")
    e(f"s_cmp_ge_u32 s3, {NGRP}")
    e("s_cbranch_scc1 P_END")
    if PAT:
        e(f"s_mul_i32 s62, s3, {GSZ}"); e(f"s_add_u32 s62, s62, {L_STREAM}")
        e(f"v_lshl_add_u32 v60, v{vLANE}, 2, s62")
        e(f"v_bfe_u32 v61, v{vLANE}, 2, 3")
        e(f"v_and_b32 v62, 3, v{vLANE}"); e("v_lshlrev_b32 v62, 1, v62")
        e(f"v_lshrrev_b32 v63, 5, v{vLANE}")
        e("s_mul_i32 s63, s2, 13"); e("s_add_u32 s63, s63, s3"); e("s_mul_i32 s63, s63, 296")
        for i in range(5):
            e(f"ds_read_b32 v64, v60 offset:{256*i}")
            e("s_waitcnt lgkmcnt(0)")
            e(f"v_add_u32 v65, {2*i}, v63"); e("v_lshl_add_u32 v65, v65, 3, v62")
            for h in range(2):
                e(f"v_bfe_u32 v{66+h}, v64, {16*h}, 16")
                e(f"v_add_u32 v68, {h}, v65")
                if PAT == "B":
                    e("v_and_b32 v69, 1, v68"); e("v_lshl_add_u32 v69, v61, 1, v69")
                    e(f"v_and_b32 v70, 0xfff0, v{66+h}"); e("v_or_b32 v70, v70, v69")
                elif PAT == "B2":
                    e("v_lshl_add_u32 v69, v61, 1, v68"); e("v_and_b32 v69, 15, v69")
                    e(f"v_and_b32 v70, 0xfff0, v{66+h}"); e("v_or_b32 v70, v70, v69")
                elif PAT == "B3":
                    e("v_add_u32 v69, v61, v68"); e("v_and_b32 v69, 7, v69")
                    e(f"v_and_b32 v70, 0xfff8, v{66+h}"); e("v_or_b32 v70, v70, v69")
                elif PAT == "C":
                    e("v_and_b32 v69, 15, v68")
                    e(f"v_and_b32 v70, 0xfff0, v{66+h}"); e("v_or_b32 v70, v70, v69")
                elif PAT == "C0":
                    e(f"v_and_b32 v70, 0xfff0, v{66+h}")
                elif PAT == "D":
                    e("v_lshl_add_u32 v69, v68, 3, v61"); e("v_add_u32 v70, s63, v69")
                    e("s_movk_i32 s64, 25000")
                    for _ in range(40):
                        pass
                    e("v_cvt_f32_u32 v71, v70"); e("v_mul_f32 v71, 0x3827c5ac, v71"); e("v_cvt_u32_f32 v71, v71")
                    e("v_mul_lo_u32 v71, v71, s64"); e("v_sub_u32 v70, v70, v71")
                    e("v_and_b32 v70, 0x7fff, v70")
                elif PAT == "S":
                    e("v_subrev_u32 v69, 44, v68"); e("v_max_i32 v69, 0, v69")
                    e("s_movk_i32 s64, 690"); e("v_mul_lo_u32 v69, v69, s64")
                    e(f"v_and_b32 v70, 511, v{66+h}"); e("v_add_u32 v70, v70, v69")
                elif PAT == "A":
                    e(f"v_mov_b32 v70, v{66+h}")
                e("v_mov_b32 v72, 0xffff")
                e(f"v_cmp_eq_u32 vcc, v72, v{66+h}")
                e(f"v_cndmask_b32 v{66+h}, v70, v72, vcc")
            e("v_lshl_or_b32 v64, v67, 16, v66")
            e(f"ds_write_b32 v60, v64 offset:{256*i}")
        e("s_waitcnt lgkmcnt(0)")
    e(f"v_mov_b32 v60, {L_SLOW}")
    e("ds_read_b32 v61, v60")
    e("s_lshl_b32 s62, s3, 5")
    e(f"s_add_u32 s63, s62, {L_DEGOF}")
    e("v_mov_b32 v62, s63")
    e("ds_read_b32 v63, v62")
    e(f"v_lshrrev_b32 v64, 4, v{vLANE}")
    e(f"v_bfe_u32 v65, v{vLANE}, 3, 1")
    e(f"v_and_b32 v66, 7, v{vLANE}")
    e(f"v_lshlrev_b32 v{vL16}, 4, v66")
    e("v_lshrrev_b32 v67, 1, v64")
    e("v_lshl_add_u32 v68, v67, 1, v65")
    e("v_and_b32 v69, 1, v64")
    e("v_lshl_add_u32 v69, v69, 2, v68")
    e(f"s_add_u32 s63, s62, {L_NODEOF}")
    e("v_lshl_add_u32 v70, v68, 2, s63")
    e("ds_read_b32 v71, v70")
    e("ds_read_b32 v72, v70 offset:16")
    e("v_lshl_add_u32 v70, v69, 2, s63")
    e("ds_read_b32 v73, v70")
    e("s_lshl_b32 s64, s3, 3")
    e("v_add_u32 v69, s64, v69")
    e("s_movk_i32 s66, 100")
    e("v_cmp_gt_u32 vcc, s66, v69")
    e(f"s_mov_b64 s[{sVALID}:{sVALID+1}], vcc")
    e(f"v_lshrrev_b32 v74, 3, v{vLANE}")
    e(f"s_mul_i32 s64, s3, {GSZ}")
    e(f"s_add_u32 s64, s64, {L_STREAM}")
    e(f"v_lshl_add_u32 v{vIDXA}, v74, 4, s64")
    e("s_waitcnt lgkmcnt(0)")
    e(f"v_readfirstlane_b32 s{sSLOW}, v61")
    e("v_readfirstlane_b32 s67, v63")
    for (n, d) in ((71, vDIS1), (72, vDIS2), (73, vDIS3)):
        e(f"v_lshlrev_b32 v70, 2, v{n}")
        e(f"v_add_u32 v70, {L_DISF}, v70")
        e(f"ds_read_b32 v{d}, v70")
    e(f"s_movk_i32 s64, {TOKNODE}")
    e(f"v_mul_u32_u24 v{vTOKA}, s64, v73")
    e(f"v_add_u32 v{vTOKA}, v{vTOKA}, v{vL16}")
    e("s_mul_i32 s64, s2, 100")
    e("v_add_u32 v73, s64, v73")
    e(f"v_lshl_add_u32 v{vGOFF}, v73, 7, v{vL16}")
    e("s_max_u32 s67, s67, 16")
    e(f"s_min_u32 s67, s67, {PMAX}")
    e(f"s_sub_u32 s{sP0}, {PMAX}, s67")
    e(f"s_add_u32 s{sEXIT}, s{sP0}, 15")
    e(f"s_lshr_b32 s64, s{sP0}, 3")
    for j in range(4):
        e(f"s_sub_u32 s65, {j}, s64"); e("s_and_b32 s65, s65, 3"); e("s_add_u32 s65, s65, s64")
        e(f"s_lshl_b32 s{sOFFJ+j}, s65, 7")
    e(f"v_and_b32 v64, 7, v{vLANE}")
    e("v_lshrrev_b32 v65, 1, v64")
    e("v_and_b32 v66, 1, v64")
    e("v_lshlrev_b32 v66, 4, v66")
    e("v_mov_b32 v67, 0x3f80")
    e("v_lshlrev_b32 v67, v66, v67")
    e(f"v_lshrrev_b32 v68, 4, v{vLANE}")
    e(f"v_bfe_u32 v69, v{vLANE}, 3, 1")
    e("v_add_u32 v70, 2, v69")
    e("v_cmp_eq_u32 s[62:63], v68, v69")
    e("v_cmp_eq_u32 s[64:65], v68, v70")
    for r in range(4):
        e(f"v_cmp_eq_u32 vcc, {r}, v65")
        e(f"s_and_b64 s[68:69], vcc, s[62:63]")
        e(f"v_cndmask_b32 v{vA1+r}, 0, v67, s[68:69]")
        e(f"s_and_b64 s[68:69], vcc, s[64:65]")
        e(f"v_cndmask_b32 v{vA2+r}, 0, v67, s[68:69]")
    if FORCESLOW:
        e("s_cmp_lt_u32 s2, 3"); e("s_cbranch_scc0 P_NOFS"); e(f"s_mov_b32 s{sSLOW}, 1"); e("P_NOFS:")
    for i in range(RING): e(f"v_mov_b32 v{vOFF+i}, 0x7ffffff0")
    e(f"s_mov_b32 s{sK}, 1")
    e(f"s_mov_b32 s{sGI+2}, 3200000"); e(f"s_mov_b32 s{sGI+3}, {SRD3}")
    e(f"s_mov_b32 s{sGO+2}, 3200000"); e(f"s_mov_b32 s{sGO+3}, {SRD3}")
    e(f"s_add_u32 s{sGO}, s12, {hex(WS_G)}"); e(f"s_addc_u32 s{sGO+1}, s13, 0")
    e("s_waitcnt lgkmcnt(0)")
    def stamp(idx, val, pre=None):
        if pre is None: e("s_memrealtime s[62:63]")
        else: e(f"s_mov_b32 s62, s{pre}")
        e("s_lshl_b32 s64, s2, 4"); e("s_add_u32 s64, s64, s3"); e("s_lshl_b32 s64, s64, 4")
        e(f"s_add_u32 s64, s64, {idx}"); e("s_lshl_b32 s64, s64, 3")
        e(f"s_add_u32 s64, s64, {hex(WS_STAMP)}")
        e("s_waitcnt lgkmcnt(0)")
        e("s_mov_b64 exec, 1")
        e(f"v_mov_b32 v{vF}, s62"); e(f"v_mov_b32 v{vF+1}, {val}"); e(f"v_mov_b32 v{vF+2}, s64")
        e(f"buffer_store_dwordx2 v[{vF}:{vF+1}], v{vF+2}, s[{sWS}:{sWS+3}], 0 offen")
        e("s_mov_b64 exec, -1")
    if dbgstat:
        stamp("0", f"s{sEXIT}")
        stamp("8", "0", pre=90)
        for i, r in enumerate((78, 80, 82, 84, 86, 88)): stamp(str(10 + i), "0", pre=r)
    e("P_HOP:")
    e(f"s_mov_b32 s{sGI}, s{sGO}"); e(f"s_mov_b32 s{sGI+1}, s{sGO+1}")
    e(f"s_add_u32 s{sGO}, s{sGO}, {hex(WS_GS)}"); e(f"s_addc_u32 s{sGO+1}, s{sGO+1}, 0")
    e(f"s_mov_b32 s{sTRY}, 0")
    if GATE:
        e(f"s_sub_u32 s62, s{sK}, 1")
        e(f"s_mul_i32 s62, s62, {NGRP}")
        e(f"v_mov_b32 v{vT1}, {L_SLOW + 16}")
        e("P_GATE:")
        e(f"ds_read_b32 v{vT0}, v{vT1}")
        e("s_waitcnt lgkmcnt(0)")
        e(f"v_readfirstlane_b32 s63, v{vT0}")
        e("s_cmp_ge_u32 s63, s62")
        e("s_cbranch_scc1 P_GATED")
        e("s_sleep 2")
        e("s_branch P_GATE")
        e("P_GATED:")
        if GDELAY: e(f"s_sleep {GDELAY}")
    e(f"s_cmp_lg_u32 s{sSLOW}, 0")
    e("s_cbranch_scc1 P_SLOWG")
    for j in range(4):
        e(f"v_add_u32 v{vT0}, s{sOFFJ+j}, v{vIDXA}")
        e(f"ds_read_b128 v[{vIDX+4*j}:{vIDX+4*j+3}], v{vT0}")
    for i in range(8): e(f"v_mov_b32 v{vAC1+i}, 0")
    e("s_waitcnt lgkmcnt(0)")
    tree(g, sP0, 0, PMAX - 16, lambda p: f"PA_{p}")
    def issue(p):
        blk = p // 8; r = vIDX + 4 * (blk % 4) + (p % 8) // 2
        t = vOFF + (p % RING)
        s = vRING + 4 * (p % RING)
        e(f"v_mad_u32_u16 v{t}, v{r}, s{s128}, v{vL16} op_sel:[{p%2},0,0,0]")
        e(f"buffer_load_dwordx4 v[{s}:{s+3}], v{t}, s[{sGI}:{sGI+3}], 0 offen{SC}")
    def check(sl):
        s = vRING + 4 * sl
        e(f"v_max3_u32 v{vT0}, v{s}, v{s+1}, v{s+2}")
        e(f"v_max_u32 v{vT0}, v{vT0}, v{s+3}")
        e(f"v_cmp_eq_u32 vcc, -1, v{vT0}")
    for p in range(PMAX):
        e(f"PA_{p}:")
        issue(p)
        if p >= 15:
            if p < PMAX - 1:
                e(f"s_cmp_eq_u32 s{sEXIT}, {p}")
                e(f"s_cbranch_scc1 PB_{p-15}")
            else:
                e(f"s_branch PB_{p-15}")
    for p in range(PMAX):
        e(f"PB_{p}:")
        if p % 8 == 0:
            e("s_waitcnt lgkmcnt(0)")
            nb = p // 8 + 3
            if nb < NBLK:
                e(f"ds_read_b128 v[{vIDX+4*(nb%4)}:{vIDX+4*(nb%4)+3}], v{vIDXA} offset:{nb*128}")
        s = vRING + 4 * (p % RING)
        e(f"s_waitcnt vmcnt({min(RING-1, PMAX-1-p)})")
        check(p % RING)
        e(f"s_cbranch_vccnz ST_{p}")
        e(f"RT_{p}:")
        e(f"v_mfma_f32_16x16x32_bf16 v[{vAC1}:{vAC1+3}], v[{vA1}:{vA1+3}], v[{s}:{s+3}], v[{vAC1}:{vAC1+3}]")
        e(f"v_mfma_f32_16x16x32_bf16 v[{vAC2}:{vAC2+3}], v[{vA2}:{vA2+3}], v[{s}:{s+3}], v[{vAC2}:{vAC2+3}]")
        if p + RING < PMAX:
            issue(p + RING)
    e("s_branch P_FLUSH")
    for p in range(PMAX):
        e(f"ST_{p}:")
        e(f"s_call_b64 s[{sRET}:{sRET+1}], POLL_{p % RING}")
        e(f"s_branch RT_{p}")
    for sl in range(RING):
        s = vRING + 4 * sl
        e(f"POLL_{sl}:")
        e(f"s_add_u32 s{sTRY}, s{sTRY}, 1")
        e(f"s_cmp_gt_u32 s{sTRY}, {TRYMAX}")
        e("s_cbranch_scc1 P_RET")
        if SLEEP: e(f"s_sleep {SLEEP}")
        e("s_mov_b64 exec, vcc")
        e(f"buffer_load_dwordx4 v[{s}:{s+3}], v{vOFF+sl}, s[{sGI}:{sGI+3}], 0 offen{SC}")
        e("s_mov_b64 exec, -1")
        e("s_waitcnt vmcnt(0)")
        check(sl)
        e(f"s_cbranch_vccnz POLL_{sl}")
        if sl < RING - 1: e("s_branch P_REFRESH")
    e("P_REFRESH:")
    for sl in range(RING):
        s = vRING + 4 * sl
        l = g.lab("RF")
        check(sl)
        e(f"s_cbranch_vccz {l}")
        e("s_mov_b64 exec, vcc")
        e(f"buffer_load_dwordx4 v[{s}:{s+3}], v{vOFF+sl}, s[{sGI}:{sGI+3}], 0 offen{SC}")
        e("s_mov_b64 exec, -1")
        e(f"{l}:")
    e("s_waitcnt vmcnt(0)")
    e("P_RET:")
    e(f"s_setpc_b64 s[{sRET}:{sRET+1}] ; @to " + " ".join(f"RT_{p}" for p in range(PMAX)))
    e("P_FLUSH:")
    if dbgstat:
        stamp(f"s{sK}", f"s{sTRY}")
    H = vF
    for b in range(4):
        e(f"v_mul_f32 v{vAC1+b}, v{vAC1+b}, v{vDIS1}")
        e(f"v_mul_f32 v{vAC2+b}, v{vAC2+b}, v{vDIS2}")
    e(f"v_cvt_pk_bf16_f32 v{H}, v{vAC1}, v{vAC1+1}")
    e(f"v_cvt_pk_bf16_f32 v{H+1}, v{vAC1+2}, v{vAC1+3}")
    e(f"v_cvt_pk_bf16_f32 v{H+2}, v{vAC2}, v{vAC2+1}")
    e(f"v_cvt_pk_bf16_f32 v{H+3}, v{vAC2+2}, v{vAC2+3}")
    e(f"v_permlane16_swap_b32 v{H}, v{H+2}")
    e(f"v_permlane16_swap_b32 v{H+1}, v{H+3}")
    e(f"s_mov_b64 exec, s[{sVALID}:{sVALID+1}]")
    e(f"s_cmp_eq_u32 s{sK}, 7")
    e("s_cbranch_scc1 P_NOG")
    G = vF + 4
    for r in range(4):
        e(f"v_lshlrev_b32 v{vF+8}, 16, v{H+r}")
        e(f"v_and_b32 v{vF+9}, 0xffff0000, v{H+r}")
        e(f"v_mul_f32 v{vF+8}, v{vF+8}, v{vDIS3}")
        e(f"v_mul_f32 v{vF+9}, v{vF+9}, v{vDIS3}")
        e(f"v_cvt_pk_bf16_f32 v{G+r}, v{vF+8}, v{vF+9}")
        e(f"v_min_u32 v{G+r}, -2, v{G+r}")
    e(f"buffer_store_dwordx4 v[{G}:{G+3}], v{vGOFF}, s[{sGO}:{sGO+3}], 0 offen{SC}")
    e("P_NOG:")
    if GATE:
        e("s_mov_b64 exec, 1")
        e(f"v_mov_b32 v{vF+11}, {L_SLOW + 16}")
        e(f"v_mov_b32 v{vF+12}, 1")
        e(f"ds_add_u32 v{vF+11}, v{vF+12}")
        e(f"s_mov_b64 exec, s[{sVALID}:{sVALID+1}]")
    e(f"s_mul_i32 s62, s{sK}, {TOKROW}")
    e(f"v_add_u32 v{vF+10}, s62, v{vTOKA}")
    e(f"ds_write_b128 v{vF+10}, v[{H}:{H+3}]")
    e("s_mov_b64 exec, -1")
    e(f"s_add_u32 s{sK}, s{sK}, 1")
    e(f"s_cmp_le_u32 s{sK}, {NHOPS}")
    e("s_cbranch_scc1 P_HOP")
    e("P_FINAL:")
    if dump:
        e("s_waitcnt lgkmcnt(0)")
        e(f"s_mov_b64 exec, s[{sVALID}:{sVALID+1}]")
        e(f"v_sub_u32 v{vT0}, v{vGOFF}, v{vL16}")
        e(f"v_lshlrev_b32 v{vT0}, 3, v{vT0}")
        e(f"v_add_u32 v{vT0}, v{vT0}, v{vL16}")
        e(f"s_mov_b32 s62, {hex(WS_DUMP)}")
        for k in range(8):
            e(f"ds_read_b128 v[{vRING}:{vRING+3}], v{vTOKA} offset:{k*TOKROW}")
            e("s_waitcnt lgkmcnt(0)")
            e(f"buffer_store_dwordx4 v[{vRING}:{vRING+3}], v{vT0}, s[{sWS}:{sWS+3}], s62 offen offset:{k*128}")
            e("s_nop 1")
        e("s_mov_b64 exec, -1")
    if final:
        from gen_final import gen_final
        gen_final(g)
    if dbgstat:
        stamp("9", "0")
    e("s_branch P_END")
    e("P_SLOWG:")
    e(f"v_lshrrev_b32 v{vT0}, 3, v{vLANE}")
    e("s_lshl_b32 s62, s3, 5")
    e(f"s_add_u32 s62, s62, {L_NODEOF}")
    e(f"v_lshl_add_u32 v{vT1}, v{vT0}, 2, s62")
    e(f"ds_read_b32 v40, v{vT1}")
    e("s_lshl_b32 s62, s3, 3")
    e(f"v_add_u32 v{vT0}, s62, v{vT0}")
    e("s_mul_i32 s62, s2, 100")
    e("s_movk_i32 s63, 100")
    e(f"v_cmp_gt_u32 vcc, s63, v{vT0}")
    for i in range(8): e(f"v_mov_b32 v{vAC1+i}, 0")
    e(f"v_lshlrev_b32 v41, 4, v{vLANE}")
    srd(g, 88, 6, 7, 3200000)
    srd(g, 92, 8, 9, 3200000)
    e("s_waitcnt lgkmcnt(0)")
    e("v_add_u32 v40, s62, v40")
    e("v_cndmask_b32 v40, -1, v40, vcc")
    e("s_mov_b32 s66, 0")
    e("SG_CHUNK:")
    e("buffer_load_dwordx4 v[44:47], v41, s[92:95], s66 offen")
    e("buffer_load_dwordx4 v[48:51], v41, s[88:91], s66 offen")
    e("s_waitcnt vmcnt(0)")
    for u in range(4):
        e("s_mov_b32 s67, 0")
        e(f"SG_R{u}:")
        e("v_readlane_b32 s68, v40, s67")
        e("s_mov_b64 s[62:63], 0xff")
        e("s_lshl_b64 s[62:63], s[62:63], s67")
        e(f"v_cmp_eq_u32 s[64:65], s68, v{44+u}")
        e(f"SG_E{u}:")
        e("s_cmp_eq_u64 s[64:65], 0")
        e(f"s_cbranch_scc1 SG_N{u}")
        e("s_ff1_i32_b64 s69, s[64:65]")
        e("s_bitset0_b64 s[64:65], s69")
        e(f"v_readlane_b32 s68, v{48+u}, s69")
        e("s_lshl_b32 s68, s68, 7")
        e(f"v_add_u32 v42, s68, v{vL16}")
        e("v_mov_b32 v43, 0x7ffffff0")
        e("v_cndmask_b32 v42, v43, v42, s[62:63]")
        e(f"SG_P{u}:")
        e(f"buffer_load_dwordx4 v[52:55], v42, s[{sGI}:{sGI+3}], 0 offen{SC}")
        e("s_waitcnt vmcnt(0)")
        e(f"v_max3_u32 v{vT0}, v52, v53, v54")
        e(f"v_max_u32 v{vT0}, v{vT0}, v55")
        e(f"v_cmp_eq_u32 vcc, -1, v{vT0}")
        e(f"s_cbranch_vccz SG_A{u}")
        e(f"s_add_u32 s{sTRY}, s{sTRY}, 1")
        e(f"s_cmp_gt_u32 s{sTRY}, {TRYMAX}")
        e(f"s_cbranch_scc1 SG_A{u}")
        e("s_sleep 8")
        e(f"s_branch SG_P{u}")
        e(f"SG_A{u}:")
        e(f"v_mfma_f32_16x16x32_bf16 v[{vAC1}:{vAC1+3}], v[{vA1}:{vA1+3}], v[52:55], v[{vAC1}:{vAC1+3}]")
        e(f"v_mfma_f32_16x16x32_bf16 v[{vAC2}:{vAC2+3}], v[{vA2}:{vA2+3}], v[52:55], v[{vAC2}:{vAC2+3}]")
        e(f"s_branch SG_E{u}")
        e(f"SG_N{u}:")
        e("s_add_u32 s67, s67, 8")
        e("s_cmp_lt_u32 s67, 64")
        e(f"s_cbranch_scc1 SG_R{u}")
    e("s_add_u32 s66, s66, 1024")
    e("s_cmp_lt_u32 s66, 3200000")
    e("s_cbranch_scc1 SG_CHUNK")
    e("s_branch P_FLUSH")
    e("P_END:")
    e("s_endpgm")

def build(path, **kw):
    g = Gen()
    gen_k1(g)
    gen_p(g, **kw)
    kernel_desc(g, "bin_kernel", 80, 64)
    kernel_desc(g, "graph_kernel", 128, 96)
    launches = [f"; @launch kernel=bin_kernel grid=({NB+1},1,1) block=(1024,1,1) lds={K1_LDS}",
                f"; @launch kernel=graph_kernel grid=({NB},1,1) block=(1024,1,1) lds={P_LDS}"]
    s = finish(g, launches, "gather_scatter__hybrid_graph_tf_nagphormer__graph.s.ref")
    open(path, "w").write(s)
    return s

if __name__ == "__main__":
    import argparse
    ap = argparse.ArgumentParser()
    ap.add_argument("out"); ap.add_argument("--dump", action="store_true"); ap.add_argument("--nofinal", action="store_true")
    ap.add_argument("--dbgstat", action="store_true"); ap.add_argument("--sleep", type=int, default=2); ap.add_argument("--nhops", type=int, default=7); ap.add_argument("--nosc1", action="store_true"); ap.add_argument("--forceslow", action="store_true"); ap.add_argument("--gate", action="store_true"); ap.add_argument("--gdelay", type=int, default=0); ap.add_argument("--free", action="store_true"); ap.add_argument("--pat", default=None); ap.add_argument("--k1delay", type=int, default=0); ap.add_argument("--k1sc", default="")
    a = ap.parse_args()
    import gen; gen.K1STAMP = a.dbgstat; gen.FREE = a.free; gen.K1DELAY = a.k1delay; gen.K1SC = (" " + a.k1sc.replace("+", " ")) if a.k1sc else ""
    SLEEP = a.sleep; NHOPS = a.nhops; FORCESLOW = a.forceslow; GATE = a.gate; GDELAY = a.gdelay; PAT = a.pat
    build(a.out, dump=a.dump, final=not a.nofinal, dbgstat=a.dbgstat, sc1=not a.nosc1)
    print("P_LDS", P_LDS)
```

```python
from gen import *

PMAX = 80
NBLK = PMAX // 8
GSZ = PMAX * 16
NGRP = 13
TOKROW = 144
TOKNODE = 8 * TOKROW
L_TOK = 0
L_STREAM = 100 * TOKNODE
L_WF = L_STREAM + NGRP * GSZ + 512
L_KEY = L_WF + 16384
L_DUMMY = L_KEY + 512
L_NODEOF = L_DUMMY + 256
L_DEGOF = L_NODEOF + 512
L_INFO = L_DEGOF + 512
L_DISF = L_INFO + 512
L_SLOW = L_DISF + 512
P_LDS = L_SLOW + 64
RING = 16
TRYMAX = 200000
NHOPS = 7
GATE = False
GDELAY = 0
FORCESLOW = False
SLEEP = 2
EXTRAK = 0
PAT = None

sWS, sGI, sGO, sX, sDIS, sTAB, sOUT, sWR = 20, 24, 28, 32, 36, 40, 44, 48
sK, sP0, sEXIT, sTRY = 52, 53, 54, 55
sOFFJ = 56
sM800 = 60
sTMP = 62
sVALID = 70
sI1, sI2 = 72, 73
s128 = 74
sRET = 76
sSLOW = 75
vTID, vLANE, vL16, vIDXA = 0, 1, 2, 3
vA1, vA2, vAC1, vAC2 = 4, 8, 12, 16
vMAX, vT0, vT1 = 20, 21, 22
vIDX = 24
vRING = 40
vOFF = 104
vDIS1, vDIS2, vDIS3, vTOKA, vGOFF = 120, 121, 122, 123, 124
vF = 40

def tree(g, sreg, lo, hi, label):
    if lo == hi:
        g.e(f"s_branch {label(lo)}"); return
    mid = (lo + hi + 1) // 2
    l = g.lab("TR")
    g.e(f"s_cmp_ge_u32 s{sreg}, {mid}")
    g.e(f"s_cbranch_scc1 {l}")
    tree(g, sreg, lo, mid - 1, label)
    g.e(f"{l}:")
    tree(g, sreg, mid, hi, label)

def gen_p(g, dump=False, final=True, sc1=True, dbgstat=False):
    e = g.e
    SC = " sc1" if sc1 else ""
    kernel_header(g, "graph_kernel")
    e(f"s_cmp_ge_u32 s2, {NB}")
    e("s_cbranch_scc1 P_END")
    e("s_load_dwordx8 s[4:11], s[0:1], 0")
    e("s_load_dwordx2 s[12:13], s[0:1], 88")
    e("s_load_dwordx2 s[14:15], s[0:1], 72")
    e("s_load_dwordx2 s[16:17], s[0:1], 64")
    e("s_load_dwordx2 s[18:19], s[0:1], 80")
    if dbgstat: e("s_memrealtime s[90:91]")
    e(f"v_and_b32 v{vLANE}, 63, v0")
    e("v_lshrrev_b32 v40, 6, v0")
    e("v_readfirstlane_b32 s3, v40")
    e(f"s_movk_i32 s{s128}, 128")
    e("v_lshlrev_b32 v41, 2, v0")
    e("v_sub_u32 v42, 255, v0")
    e("s_movk_i32 s62, 100")
    e("v_cmp_gt_u32 vcc, s62, v0")
    e("v_cndmask_b32 v42, 0, v42, vcc")
    e("v_mov_b32 v43, 0")
    for r in range(4): e(f"v_mov_b32 v{124+r}, 0")
    e("s_movk_i32 s62, 128")
    e("v_cmp_gt_u32 vcc, s62, v0")
    e("s_and_saveexec_b64 s[64:65], vcc")
    e(f"ds_write_b32 v41, v42 offset:{L_KEY - 0}" if L_KEY < 65536 else
      f"v_add_u32 v44, {L_KEY}, v41\nds_write_b32 v44, v42\nds_write_b32 v44, v43 offset:{L_NODEOF-L_KEY}\nds_write_b32 v44, v43 offset:{L_DEGOF-L_KEY}\nds_write_b32 v44, v43 offset:{L_SLOW-L_KEY}" if False else
      f"v_add_u32 v44, {L_KEY}, v41\nds_write_b32 v44, v42\nds_write_b32 v44, v43 offset:{L_NODEOF-L_KEY}\nds_write_b32 v44, v43 offset:{L_DEGOF-L_KEY}")
    e("s_mov_b64 exec, s[64:65]")
    e("v_lshlrev_b32 v45, 4, v0")
    e("v_mov_b32 v48, -1"); e("v_mov_b32 v49, -1"); e("v_mov_b32 v50, -1"); e("v_mov_b32 v51, -1")
    e(f"v_add_u32 v46, {L_STREAM}, v45")
    e("ds_write_b128 v46, v[48:51]")
    nextra = (NGRP * GSZ + 512 - 16384) // 16
    e(f"v_cmp_gt_u32 vcc, {nextra}, v0" if nextra <= 64 else f"s_movk_i32 s62, {nextra}\nv_cmp_gt_u32 vcc, s62, v0")
    e("s_and_saveexec_b64 s[64:65], vcc")
    e("ds_write_b128 v46, v[48:51] offset:16384")
    e(f"v_mov_b32 v47, {L_SLOW}")
    e("ds_write_b32 v47, v43")
    e("ds_write_b128 v47, v[124:127] offset:16")
    e("s_mov_b64 exec, s[64:65]")
    e("s_movk_i32 s62, 800")
    e("v_cmp_gt_u32 vcc, s62, v0")
    e(f"s_mov_b64 s[{sM800}:{sM800+1}], vcc")
    e("s_waitcnt lgkmcnt(0)")
    srd(g, sWS, 12, 13, hex(WS_BYTES))
    srd(g, sX, 4, 5, 3200000)
    srd(g, sDIS, 10, 11, 50000)
    srd(g, sTAB, 12, 13, NB * 1024, add=hex(WS_TAB))
    srd(g, sOUT, 14, 15, 3200000)
    srd(g, sWR, 16, 17, 128)
    e("v_and_b32 v52, 0xfffffffc, v0")
    e("s_lshl_b32 s62, s2, 10")
    e(f"buffer_load_dword v53, v52, s[{sTAB}:{sTAB+3}], s62 offen")
    e("s_mul_i32 s63, s2, 12800")
    e(f"buffer_load_dwordx4 v[56:59], v45, s[{sX}:{sX+3}], s63 offen")
    e("v_lshlrev_b32 v54, 1, v0")
    e("s_mul_i32 s64, s2, 200")
    e(f"buffer_load_ushort v55, v54, s[{sDIS}:{sDIS+3}], s64 offen")
    e(f"s_mov_b32 s65, {hex(WS_WF)}")
    e(f"buffer_load_dwordx4 v[60:63], v45, s[{sWS}:{sWS+3}], s65 offen")
    e("v_lshrrev_b32 v64, 2, v0")
    e("v_and_b32 v65, 3, v0")
    e("s_movk_i32 s66, 12800")
    e("v_mul_u32_u24 v66, s66, v64")
    e("v_lshl_add_u32 v66, v65, 4, v66")
    e("s_movk_i32 s66, 1000")
    e("v_cmp_gt_u32 vcc, s66, v0")
    e("s_waitcnt vmcnt(3)")
    if dbgstat: e("s_memrealtime s[78:79]")
    e("v_cndmask_b32 v53, 0, v53, vcc")
    e("v_and_b32 v67, 0xffff, v53")
    e("v_lshrrev_b32 v68, 16, v53")
    e("v_lshl_add_u32 v66, v67, 2, v66")
    e("v_lshlrev_b32 v69, 2, v65")
    e("v_sub_u32 v69, v68, v69")
    R = 72
    O = 84
    e(f"buffer_load_dwordx4 v[{R}:{R+3}], v66, s[{sWS}:{sWS+3}], 0 offen")
    e("v_cmp_lt_i32 vcc, 16, v69")
    e(f"s_mov_b32 s{sI1}, 0"); e(f"s_mov_b32 s{sI2}, 0")
    e("s_cbranch_vccz P_NOI1")
    e(f"s_mov_b32 s{sI1}, 1")
    e(f"buffer_load_dwordx4 v[{R+4}:{R+7}], v66, s[{sWS}:{sWS+3}], 0 offen offset:64")
    e("v_cmp_lt_i32 vcc, 32, v69")
    e("s_cbranch_vccz P_NOI1")
    e(f"s_mov_b32 s{sI2}, 1")
    e(f"buffer_load_dwordx4 v[{R+8}:{R+11}], v66, s[{sWS}:{sWS+3}], 0 offen offset:128")
    e("P_NOI1:")
    e("v_cmp_lt_u32 vcc, 48, v68")
    e("s_mov_b64 s[66:67], vcc")
    e("s_waitcnt lgkmcnt(0)")
    e("s_barrier")
    e("s_and_saveexec_b64 s[64:65], vcc")
    e("v_mov_b32 v70, 1")
    e(f"v_mov_b32 v71, {L_SLOW}")
    e("ds_write_b32 v71, v70")
    e("s_mov_b64 exec, s[64:65]")
    if dbgstat: e("s_memrealtime s[80:81]")
    e("s_waitcnt vmcnt(0)")
    if dbgstat: e("s_memrealtime s[82:83]")
    e(f"s_mov_b64 exec, s[{sM800}:{sM800+1}]")
    e("s_cbranch_execz P_NOPOI")
    import gen as _gen
    PZ = 48
    if _gen.FREE:
        PZ = 116
        for r_ in range(4): e(f"v_mov_b32 v{PZ+r_}, 0")
    for k in range(2, 7):
        e(f"s_add_u32 s66, s63, {hex(WS_G + k * WS_GS)}")
        e(f"buffer_store_dwordx4 v[{PZ}:{PZ+3}], v45, s[{sWS}:{sWS+3}], s66 offen{SC}")
    e("v_lshrrev_b32 v70, 3, v0")
    e(f"v_mul_u32_u24 v70, {TOKNODE}, v70" if TOKNODE <= 64 else f"s_movk_i32 s66, {TOKNODE}\nv_mul_u32_u24 v70, s66, v70")
    e("v_and_b32 v71, 7, v0")
    e("v_lshl_add_u32 v70, v71, 4, v70")
    e("ds_write_b128 v70, v[56:59]")
    e("P_NOPOI:")
    e("s_mov_b64 exec, -1")
    e(f"v_add_u32 v70, {L_WF}, v45")
    e("ds_write_b128 v70, v[60:63]")
    e("s_movk_i32 s66, 100")
    e("v_cmp_gt_u32 vcc, s66, v0")
    e("s_and_saveexec_b64 s[64:65], vcc")
    e("v_lshlrev_b32 v55, 16, v55")
    e(f"v_add_u32 v70, {L_DISF}, v41")
    e("ds_write_b32 v70, v55")
    e("s_mov_b64 exec, s[64:65]")
    e(f"v_mov_b32 v70, {s128 and 128}")
    e(f"v_lshlrev_b32 v71, 2, v{vLANE}")
    e(f"v_add_u32 v71, {L_DUMMY}, v71")
    A = 96
    def atom(i):
        for u in range(4):
            r = R + 4 * i + u
            e(f"v_lshrrev_b32 v{A+4*i+u}, 16, v{r}")
            e(f"v_cmp_lt_i32 s[{sTMP + 2*(u%2)}:{sTMP + 2*(u%2) + 1}], {16*i+u}, v69")
            e(f"v_lshlrev_b32 v108, 2, v{A+4*i+u}")
            e(f"v_add_u32 v108, {L_KEY}, v108")
            e(f"v_cndmask_b32 v108, v71, v108, s[{sTMP + 2*(u%2)}:{sTMP + 2*(u%2) + 1}]")
            e(f"ds_add_rtn_u32 v{O+4*i+u}, v108, v70")
    atom(0)
    e(f"s_cmp_eq_u32 s{sI1}, 0"); e("s_cbranch_scc1 P_AT_D")
    atom(1)
    e(f"s_cmp_eq_u32 s{sI2}, 0"); e("s_cbranch_scc1 P_AT_D")
    atom(2)
    e("P_AT_D:")
    e("s_waitcnt lgkmcnt(0)")
    e("s_barrier")
    if dbgstat: e("s_memrealtime s[84:85]")
    e("v_lshrrev_b32 v108, 3, v0")
    e("v_and_b32 v109, 7, v0")
    e("v_lshlrev_b32 v110, 6, v109")
    e(f"v_add_u32 v110, {L_KEY}, v110")
    for q in range(4):
        e(f"ds_read_b128 v[{112+4*q}:{115+4*q}], v110 offset:{16*q}")
    e("v_lshlrev_b32 v111, 2, v108")
    e(f"v_add_u32 v111, {L_KEY}, v111")
    e("ds_read_b32 v109, v111")
    e("v_mov_b32 v110, 0")
    e("s_waitcnt lgkmcnt(0)")
    for q in range(4):
        for u in range(4):
            e(f"v_cmp_gt_u32 s[{sTMP+2*u}:{sTMP+2*u+1}], v{112+4*q+u}, v109")
        for u in range(4):
            e(f"v_addc_co_u32 v110, vcc, 0, v110, s[{sTMP+2*u}:{sTMP+2*u+1}]")
    e("v_add_u32_dpp v110, v110, v110 quad_perm:[1,0,3,2] row_mask:0xf bank_mask:0xf")
    e("v_add_u32_dpp v110, v110, v110 quad_perm:[2,3,0,1] row_mask:0xf bank_mask:0xf")
    e("v_add_u32_dpp v110, v110, v110 row_half_mirror row_mask:0xf bank_mask:0xf")
    e("v_lshrrev_b32 v112, 7, v109")
    e("v_add_u32 v112, -1, v112")
    e("v_and_b32 v113, 7, v0")
    e("v_cmp_eq_u32 vcc, 0, v113")
    e(f"s_and_b64 s[64:65], vcc, s[{sM800}:{sM800+1}]")
    e("s_mov_b64 exec, s[64:65]")
    e("v_lshlrev_b32 v113, 2, v110")
    e(f"v_add_u32 v113, {L_NODEOF}, v113")
    e("ds_write_b32 v113, v108")
    e(f"ds_write_b32 v113, v112 offset:{L_DEGOF - L_NODEOF}")
    e("s_mov_b64 exec, -1")
    e("s_waitcnt lgkmcnt(0)")
    e("s_barrier")
    e("s_mov_b64 exec, s[64:65]")
    e("v_and_b32 v113, 0xfffffff8, v110")
    e("v_lshlrev_b32 v113, 2, v113")
    e(f"v_add_u32 v113, {L_DEGOF}, v113")
    e("ds_read_b32 v114, v113")
    e("v_lshrrev_b32 v115, 3, v110")
    e(f"s_movk_i32 s66, {GSZ}")
    e("v_mul_u32_u24 v115, s66, v115")
    e("v_and_b32 v116, 7, v110")
    e("v_lshl_add_u32 v115, v116, 4, v115")
    e("s_waitcnt lgkmcnt(0)")
    e(f"v_cmp_lt_u32 vcc, {PMAX}, v114" if PMAX <= 64 else f"s_movk_i32 s66, {PMAX}\nv_cmp_lt_u32 vcc, s66, v114")
    e(f"v_sub_u32 v116, {PMAX}, v114")
    e("v_cndmask_b32 v116, v116, 0, vcc")
    e("v_lshl_or_b32 v115, v116, 16, v115")
    e(f"v_add_u32 v113, {L_INFO - L_KEY}, v111")
    e("ds_write_b32 v113, v115")
    e("s_and_b64 exec, exec, vcc")
    e("v_mov_b32 v116, 1")
    e(f"v_mov_b32 v117, {L_SLOW}")
    e("ds_write_b32 v117, v116")
    e("s_mov_b64 exec, -1")
    e("s_waitcnt lgkmcnt(0)")
    e("s_barrier")
    if dbgstat: e("s_memrealtime s[86:87]")
    def place(i):
        for u in range(4):
            e(f"v_lshlrev_b32 v108, 2, v{A+4*i+u}")
            e(f"v_add_u32 v108, {L_INFO}, v108")
            e(f"ds_read_b32 v{112+u}, v108")
        e("s_waitcnt lgkmcnt(0)")
        for u in range(4):
            m = sTMP + 2 * (u % 2)
            e(f"v_lshrrev_b32 v108, 7, v{O+4*i+u}")
            e(f"v_lshrrev_b32 v109, 16, v{112+u}")
            e("v_add3_u32 v108, v108, v109, -1")
            e(f"v_cmp_lt_i32 s[{m}:{m+1}], {16*i+u}, v69")
            e(f"s_movk_i32 s66, {PMAX}")
            e("v_cmp_gt_u32 vcc, s66, v108")
            e(f"s_and_b64 s[{m}:{m+1}], s[{m}:{m+1}], vcc")
            e(f"v_and_b32 v109, 0xffff, v{112+u}")
            e("v_lshrrev_b32 v110, 3, v108")
            e("v_lshl_add_u32 v109, v110, 7, v109")
            e("v_and_b32 v110, 7, v108")
            e("v_lshl_add_u32 v109, v110, 1, v109")
            e(f"v_add_u32 v109, {L_STREAM}, v109")
            e(f"v_cndmask_b32 v109, v71, v109, s[{m}:{m+1}]")
            e(f"ds_write_b16 v109, v{R+4*i+u}")
    place(0)
    e(f"s_cmp_eq_u32 s{sI1}, 0"); e("s_cbranch_scc1 P_PL_D")
    place(1)
    e(f"s_cmp_eq_u32 s{sI2}, 0"); e("s_cbranch_scc1 P_PL_D")
    place(2)
    e("P_PL_D:")
    e("s_waitcnt vmcnt(0) lgkmcnt(0)")
    e("s_barrier")
    if dbgstat: e("s_memrealtime s[88:89]")
    e(f"s_cmp_ge_u32 s3, {NGRP}")
    e("s_cbranch_scc1 P_END")
    if PAT:
        e(f"s_mul_i32 s62, s3, {GSZ}"); e(f"s_add_u32 s62, s62, {L_STREAM}")
        e(f"v_lshl_add_u32 v60, v{vLANE}, 2, s62")
        e(f"v_bfe_u32 v61, v{vLANE}, 2, 3")
        e(f"v_and_b32 v62, 3, v{vLANE}"); e("v_lshlrev_b32 v62, 1, v62")
        e(f"v_lshrrev_b32 v63, 5, v{vLANE}")
        e("s_mul_i32 s63, s2, 13"); e("s_add_u32 s63, s63, s3"); e("s_mul_i32 s63, s63, 296")
        for i in range(5):
            e(f"ds_read_b32 v64, v60 offset:{256*i}")
            e("s_waitcnt lgkmcnt(0)")
            e(f"v_add_u32 v65, {2*i}, v63"); e("v_lshl_add_u32 v65, v65, 3, v62")
            for h in range(2):
                e(f"v_bfe_u32 v{66+h}, v64, {16*h}, 16")
                e(f"v_add_u32 v68, {h}, v65")
                if PAT == "B":
                    e("v_and_b32 v69, 1, v68"); e("v_lshl_add_u32 v69, v61, 1, v69")
                    e(f"v_and_b32 v70, 0xfff0, v{66+h}"); e("v_or_b32 v70, v70, v69")
                elif PAT == "B2":
                    e("v_lshl_add_u32 v69, v61, 1, v68"); e("v_and_b32 v69, 15, v69")
                    e(f"v_and_b32 v70, 0xfff0, v{66+h}"); e("v_or_b32 v70, v70, v69")
                elif PAT == "B3":
                    e("v_add_u32 v69, v61, v68"); e("v_and_b32 v69, 7, v69")
                    e(f"v_and_b32 v70, 0xfff8, v{66+h}"); e("v_or_b32 v70, v70, v69")
                elif PAT == "C":
                    e("v_and_b32 v69, 15, v68")
                    e(f"v_and_b32 v70, 0xfff0, v{66+h}"); e("v_or_b32 v70, v70, v69")
                elif PAT == "C0":
                    e(f"v_and_b32 v70, 0xfff0, v{66+h}")
                elif PAT == "D":
                    e("v_lshl_add_u32 v69, v68, 3, v61"); e("v_add_u32 v70, s63, v69")
                    e("s_movk_i32 s64, 25000")
                    for _ in range(40):
                        pass
                    e("v_cvt_f32_u32 v71, v70"); e("v_mul_f32 v71, 0x3827c5ac, v71"); e("v_cvt_u32_f32 v71, v71")
                    e("v_mul_lo_u32 v71, v71, s64"); e("v_sub_u32 v70, v70, v71")
                    e("v_and_b32 v70, 0x7fff, v70")
                elif PAT == "S":
                    e("v_subrev_u32 v69, 44, v68"); e("v_max_i32 v69, 0, v69")
                    e("s_movk_i32 s64, 690"); e("v_mul_lo_u32 v69, v69, s64")
                    e(f"v_and_b32 v70, 511, v{66+h}"); e("v_add_u32 v70, v70, v69")
                elif PAT == "A":
                    e(f"v_mov_b32 v70, v{66+h}")
                e("v_mov_b32 v72, 0xffff")
                e(f"v_cmp_eq_u32 vcc, v72, v{66+h}")
                e(f"v_cndmask_b32 v{66+h}, v70, v72, vcc")
            e("v_lshl_or_b32 v64, v67, 16, v66")
            e(f"ds_write_b32 v60, v64 offset:{256*i}")
        e("s_waitcnt lgkmcnt(0)")
    e(f"v_mov_b32 v60, {L_SLOW}")
    e("ds_read_b32 v61, v60")
    e("s_lshl_b32 s62, s3, 5")
    e(f"s_add_u32 s63, s62, {L_DEGOF}")
    e("v_mov_b32 v62, s63")
    e("ds_read_b32 v63, v62")
    e(f"v_lshrrev_b32 v64, 4, v{vLANE}")
    e(f"v_bfe_u32 v65, v{vLANE}, 3, 1")
    e(f"v_and_b32 v66, 7, v{vLANE}")
    e(f"v_lshlrev_b32 v{vL16}, 4, v66")
    e("v_lshrrev_b32 v67, 1, v64")
    e("v_lshl_add_u32 v68, v67, 1, v65")
    e("v_and_b32 v69, 1, v64")
    e("v_lshl_add_u32 v69, v69, 2, v68")
    e(f"s_add_u32 s63, s62, {L_NODEOF}")
    e("v_lshl_add_u32 v70, v68, 2, s63")
    e("ds_read_b32 v71, v70")
    e("ds_read_b32 v72, v70 offset:16")
    e("v_lshl_add_u32 v70, v69, 2, s63")
    e("ds_read_b32 v73, v70")
    e("s_lshl_b32 s64, s3, 3")
    e("v_add_u32 v69, s64, v69")
    e("s_movk_i32 s66, 100")
    e("v_cmp_gt_u32 vcc, s66, v69")
    e(f"s_mov_b64 s[{sVALID}:{sVALID+1}], vcc")
    e(f"v_lshrrev_b32 v74, 3, v{vLANE}")
    e(f"s_mul_i32 s64, s3, {GSZ}")
    e(f"s_add_u32 s64, s64, {L_STREAM}")
    e(f"v_lshl_add_u32 v{vIDXA}, v74, 4, s64")
    e("s_waitcnt lgkmcnt(0)")
    e(f"v_readfirstlane_b32 s{sSLOW}, v61")
    e("v_readfirstlane_b32 s67, v63")
    for (n, d) in ((71, vDIS1), (72, vDIS2), (73, vDIS3)):
        e(f"v_lshlrev_b32 v70, 2, v{n}")
        e(f"v_add_u32 v70, {L_DISF}, v70")
        e(f"ds_read_b32 v{d}, v70")
    e(f"s_movk_i32 s64, {TOKNODE}")
    e(f"v_mul_u32_u24 v{vTOKA}, s64, v73")
    e(f"v_add_u32 v{vTOKA}, v{vTOKA}, v{vL16}")
    e("s_mul_i32 s64, s2, 100")
    e("v_add_u32 v73, s64, v73")
    e(f"v_lshl_add_u32 v{vGOFF}, v73, 7, v{vL16}")
    e("s_max_u32 s67, s67, 16")
    e(f"s_min_u32 s67, s67, {PMAX}")
    e(f"s_sub_u32 s{sP0}, {PMAX}, s67")
    e(f"s_add_u32 s{sEXIT}, s{sP0}, 15")
    e(f"s_lshr_b32 s64, s{sP0}, 3")
    for j in range(4):
        e(f"s_sub_u32 s65, {j}, s64"); e("s_and_b32 s65, s65, 3"); e("s_add_u32 s65, s65, s64")
        e(f"s_lshl_b32 s{sOFFJ+j}, s65, 7")
    e(f"v_and_b32 v64, 7, v{vLANE}")
    e("v_lshrrev_b32 v65, 1, v64")
    e("v_and_b32 v66, 1, v64")
    e("v_lshlrev_b32 v66, 4, v66")
    e("v_mov_b32 v67, 0x3f80")
    e("v_lshlrev_b32 v67, v66, v67")
    e(f"v_lshrrev_b32 v68, 4, v{vLANE}")
    e(f"v_bfe_u32 v69, v{vLANE}, 3, 1")
    e("v_add_u32 v70, 2, v69")
    e("v_cmp_eq_u32 s[62:63], v68, v69")
    e("v_cmp_eq_u32 s[64:65], v68, v70")
    for r in range(4):
        e(f"v_cmp_eq_u32 vcc, {r}, v65")
        e(f"s_and_b64 s[68:69], vcc, s[62:63]")
        e(f"v_cndmask_b32 v{vA1+r}, 0, v67, s[68:69]")
        e(f"s_and_b64 s[68:69], vcc, s[64:65]")
        e(f"v_cndmask_b32 v{vA2+r}, 0, v67, s[68:69]")
    if FORCESLOW:
        e("s_cmp_lt_u32 s2, 3"); e("s_cbranch_scc0 P_NOFS"); e(f"s_mov_b32 s{sSLOW}, 1"); e("P_NOFS:")
    for i in range(RING): e(f"v_mov_b32 v{vOFF+i}, 0x7ffffff0")
    e(f"s_mov_b32 s{sK}, 1")
    e(f"s_mov_b32 s{sGI+2}, 3200000"); e(f"s_mov_b32 s{sGI+3}, {SRD3}")
    e(f"s_mov_b32 s{sGO+2}, 3200000"); e(f"s_mov_b32 s{sGO+3}, {SRD3}")
    e(f"s_add_u32 s{sGO}, s12, {hex(WS_G)}"); e(f"s_addc_u32 s{sGO+1}, s13, 0")
    e("s_waitcnt lgkmcnt(0)")
    def stamp(idx, val, pre=None):
        if pre is None: e("s_memrealtime s[62:63]")
        else: e(f"s_mov_b32 s62, s{pre}")
        e("s_lshl_b32 s64, s2, 4"); e("s_add_u32 s64, s64, s3"); e("s_lshl_b32 s64, s64, 4")
        e(f"s_add_u32 s64, s64, {idx}"); e("s_lshl_b32 s64, s64, 3")
        e(f"s_add_u32 s64, s64, {hex(WS_STAMP)}")
        e("s_waitcnt lgkmcnt(0)")
        e("s_mov_b64 exec, 1")
        e(f"v_mov_b32 v{vF}, s62"); e(f"v_mov_b32 v{vF+1}, {val}"); e(f"v_mov_b32 v{vF+2}, s64")
        e(f"buffer_store_dwordx2 v[{vF}:{vF+1}], v{vF+2}, s[{sWS}:{sWS+3}], 0 offen")
        e("s_mov_b64 exec, -1")
    if dbgstat:
        stamp("0", f"s{sEXIT}")
        stamp("8", "0", pre=90)
        for i, r in enumerate((78, 80, 82, 84, 86, 88)): stamp(str(10 + i), "0", pre=r)
    e("P_HOP:")
    e(f"s_mov_b32 s{sGI}, s{sGO}"); e(f"s_mov_b32 s{sGI+1}, s{sGO+1}")
    e(f"s_add_u32 s{sGO}, s{sGO}, {hex(WS_GS)}"); e(f"s_addc_u32 s{sGO+1}, s{sGO+1}, 0")
    e(f"s_mov_b32 s{sTRY}, 0")
    if GATE:
        e(f"s_sub_u32 s62, s{sK}, 1")
        e(f"s_mul_i32 s62, s62, {NGRP}")
        e(f"v_mov_b32 v{vT1}, {L_SLOW + 16}")
        e("P_GATE:")
        e(f"ds_read_b32 v{vT0}, v{vT1}")
        e("s_waitcnt lgkmcnt(0)")
        e(f"v_readfirstlane_b32 s63, v{vT0}")
        e("s_cmp_ge_u32 s63, s62")
        e("s_cbranch_scc1 P_GATED")
        e("s_sleep 2")
        e("s_branch P_GATE")
        e("P_GATED:")
        if GDELAY: e(f"s_sleep {GDELAY}")
    e(f"s_cmp_lg_u32 s{sSLOW}, 0")
    e("s_cbranch_scc1 P_SLOWG")
    for j in range(4):
        e(f"v_add_u32 v{vT0}, s{sOFFJ+j}, v{vIDXA}")
        e(f"ds_read_b128 v[{vIDX+4*j}:{vIDX+4*j+3}], v{vT0}")
    for i in range(8): e(f"v_mov_b32 v{vAC1+i}, 0")
    e("s_waitcnt lgkmcnt(0)")
    tree(g, sP0, 0, PMAX - 16, lambda p: f"PA_{p}")
    def issue(p):
        blk = p // 8; r = vIDX + 4 * (blk % 4) + (p % 8) // 2
        t = vOFF + (p % RING)
        s = vRING + 4 * (p % RING)
        e(f"v_mad_u32_u16 v{t}, v{r}, s{s128}, v{vL16} op_sel:[{p%2},0,0,0]")
        e(f"buffer_load_dwordx4 v[{s}:{s+3}], v{t}, s[{sGI}:{sGI+3}], 0 offen{SC}")
    def check(sl):
        s = vRING + 4 * sl
        e(f"v_max3_u32 v{vT0}, v{s}, v{s+1}, v{s+2}")
        e(f"v_max_u32 v{vT0}, v{vT0}, v{s+3}")
        e(f"v_cmp_eq_u32 vcc, -1, v{vT0}")
    for p in range(PMAX):
        e(f"PA_{p}:")
        issue(p)
        if p >= 15:
            if p < PMAX - 1:
                e(f"s_cmp_eq_u32 s{sEXIT}, {p}")
                e(f"s_cbranch_scc1 PB_{p-15}")
            else:
                e(f"s_branch PB_{p-15}")
    for p in range(PMAX):
        e(f"PB_{p}:")
        if p % 8 == 0:
            e("s_waitcnt lgkmcnt(0)")
            nb = p // 8 + 3
            if nb < NBLK:
                e(f"ds_read_b128 v[{vIDX+4*(nb%4)}:{vIDX+4*(nb%4)+3}], v{vIDXA} offset:{nb*128}")
        s = vRING + 4 * (p % RING)
        e(f"s_waitcnt vmcnt({min(RING-1, PMAX-1-p)})")
        check(p % RING)
        e(f"s_cbranch_vccnz ST_{p}")
        e(f"RT_{p}:")
        e(f"v_mfma_f32_16x16x32_bf16 v[{vAC1}:{vAC1+3}], v[{vA1}:{vA1+3}], v[{s}:{s+3}], v[{vAC1}:{vAC1+3}]")
        e(f"v_mfma_f32_16x16x32_bf16 v[{vAC2}:{vAC2+3}], v[{vA2}:{vA2+3}], v[{s}:{s+3}], v[{vAC2}:{vAC2+3}]")
        if p + RING < PMAX:
            issue(p + RING)
    e("s_branch P_FLUSH")
    for p in range(PMAX):
        e(f"ST_{p}:")
        e(f"s_call_b64 s[{sRET}:{sRET+1}], POLL_{p % RING}")
        e(f"s_branch RT_{p}")
    for sl in range(RING):
        s = vRING + 4 * sl
        e(f"POLL_{sl}:")
        e(f"s_add_u32 s{sTRY}, s{sTRY}, 1")
        e(f"s_cmp_gt_u32 s{sTRY}, {TRYMAX}")
        e("s_cbranch_scc1 P_RET")
        if SLEEP: e(f"s_sleep {SLEEP}")
        e("s_mov_b64 exec, vcc")
        e(f"buffer_load_dwordx4 v[{s}:{s+3}], v{vOFF+sl}, s[{sGI}:{sGI+3}], 0 offen{SC}")
        e("s_mov_b64 exec, -1")
        e("s_waitcnt vmcnt(0)")
        check(sl)
        e(f"s_cbranch_vccnz POLL_{sl}")
        if sl < RING - 1: e("s_branch P_REFRESH")
    e("P_REFRESH:")
    for sl in range(RING):
        s = vRING + 4 * sl
        l = g.lab("RF")
        check(sl)
        e(f"s_cbranch_vccz {l}")
        e("s_mov_b64 exec, vcc")
        e(f"buffer_load_dwordx4 v[{s}:{s+3}], v{vOFF+sl}, s[{sGI}:{sGI+3}], 0 offen{SC}")
        e("s_mov_b64 exec, -1")
        e(f"{l}:")
    e("s_waitcnt vmcnt(0)")
    e("P_RET:")
    e(f"s_setpc_b64 s[{sRET}:{sRET+1}] ; @to " + " ".join(f"RT_{p}" for p in range(PMAX)))
    e("P_FLUSH:")
    if dbgstat:
        stamp(f"s{sK}", f"s{sTRY}")
    H = vF
    for b in range(4):
        e(f"v_mul_f32 v{vAC1+b}, v{vAC1+b}, v{vDIS1}")
        e(f"v_mul_f32 v{vAC2+b}, v{vAC2+b}, v{vDIS2}")
    e(f"v_cvt_pk_bf16_f32 v{H}, v{vAC1}, v{vAC1+1}")
    e(f"v_cvt_pk_bf16_f32 v{H+1}, v{vAC1+2}, v{vAC1+3}")
    e(f"v_cvt_pk_bf16_f32 v{H+2}, v{vAC2}, v{vAC2+1}")
    e(f"v_cvt_pk_bf16_f32 v{H+3}, v{vAC2+2}, v{vAC2+3}")
    e(f"v_permlane16_swap_b32 v{H}, v{H+2}")
    e(f"v_permlane16_swap_b32 v{H+1}, v{H+3}")
    e(f"s_mov_b64 exec, s[{sVALID}:{sVALID+1}]")
    e(f"s_cmp_eq_u32 s{sK}, 7")
    e("s_cbranch_scc1 P_NOG")
    G = vF + 4
    for r in range(4):
        e(f"v_lshlrev_b32 v{vF+8}, 16, v{H+r}")
        e(f"v_and_b32 v{vF+9}, 0xffff0000, v{H+r}")
        e(f"v_mul_f32 v{vF+8}, v{vF+8}, v{vDIS3}")
        e(f"v_mul_f32 v{vF+9}, v{vF+9}, v{vDIS3}")
        e(f"v_cvt_pk_bf16_f32 v{G+r}, v{vF+8}, v{vF+9}")
        e(f"v_min_u32 v{G+r}, -2, v{G+r}")
    e(f"buffer_store_dwordx4 v[{G}:{G+3}], v{vGOFF}, s[{sGO}:{sGO+3}], 0 offen{SC}")
    e("P_NOG:")
    if GATE:
        e("s_mov_b64 exec, 1")
        e(f"v_mov_b32 v{vF+11}, {L_SLOW + 16}")
        e(f"v_mov_b32 v{vF+12}, 1")
        e(f"ds_add_u32 v{vF+11}, v{vF+12}")
        e(f"s_mov_b64 exec, s[{sVALID}:{sVALID+1}]")
    e(f"s_mul_i32 s62, s{sK}, {TOKROW}")
    e(f"v_add_u32 v{vF+10}, s62, v{vTOKA}")
    e(f"ds_write_b128 v{vF+10}, v[{H}:{H+3}]")
    e("s_mov_b64 exec, -1")
    e(f"s_add_u32 s{sK}, s{sK}, 1")
    e(f"s_cmp_le_u32 s{sK}, {NHOPS}")
    e("s_cbranch_scc1 P_HOP")
    e("P_FINAL:")
    if dump:
        e("s_waitcnt lgkmcnt(0)")
        e(f"s_mov_b64 exec, s[{sVALID}:{sVALID+1}]")
        e(f"v_sub_u32 v{vT0}, v{vGOFF}, v{vL16}")
        e(f"v_lshlrev_b32 v{vT0}, 3, v{vT0}")
        e(f"v_add_u32 v{vT0}, v{vT0}, v{vL16}")
        e(f"s_mov_b32 s62, {hex(WS_DUMP)}")
        for k in range(8):
            e(f"ds_read_b128 v[{vRING}:{vRING+3}], v{vTOKA} offset:{k*TOKROW}")
            e("s_waitcnt lgkmcnt(0)")
            e(f"buffer_store_dwordx4 v[{vRING}:{vRING+3}], v{vT0}, s[{sWS}:{sWS+3}], s62 offen offset:{k*128}")
            e("s_nop 1")
        e("s_mov_b64 exec, -1")
    if final:
        from gen_final import gen_final
        gen_final(g)
    if dbgstat:
        stamp("9", "0")
    e("s_branch P_END")
    e("P_SLOWG:")
    e(f"v_lshrrev_b32 v{vT0}, 3, v{vLANE}")
    e("s_lshl_b32 s62, s3, 5")
    e(f"s_add_u32 s62, s62, {L_NODEOF}")
    e(f"v_lshl_add_u32 v{vT1}, v{vT0}, 2, s62")
    e(f"ds_read_b32 v40, v{vT1}")
    e("s_lshl_b32 s62, s3, 3")
    e(f"v_add_u32 v{vT0}, s62, v{vT0}")
    e("s_mul_i32 s62, s2, 100")
    e("s_movk_i32 s63, 100")
    e(f"v_cmp_gt_u32 vcc, s63, v{vT0}")
    for i in range(8): e(f"v_mov_b32 v{vAC1+i}, 0")
    e(f"v_lshlrev_b32 v41, 4, v{vLANE}")
    srd(g, 88, 6, 7, 3200000)
    srd(g, 92, 8, 9, 3200000)
    e("s_waitcnt lgkmcnt(0)")
    e("v_add_u32 v40, s62, v40")
    e("v_cndmask_b32 v40, -1, v40, vcc")
    e("s_mov_b32 s66, 0")
    e("SG_CHUNK:")
    e("buffer_load_dwordx4 v[44:47], v41, s[92:95], s66 offen")
    e("buffer_load_dwordx4 v[48:51], v41, s[88:91], s66 offen")
    e("s_waitcnt vmcnt(0)")
    for u in range(4):
        e("s_mov_b32 s67, 0")
        e(f"SG_R{u}:")
        e("v_readlane_b32 s68, v40, s67")
        e("s_mov_b64 s[62:63], 0xff")
        e("s_lshl_b64 s[62:63], s[62:63], s67")
        e(f"v_cmp_eq_u32 s[64:65], s68, v{44+u}")
        e(f"SG_E{u}:")
        e("s_cmp_eq_u64 s[64:65], 0")
        e(f"s_cbranch_scc1 SG_N{u}")
        e("s_ff1_i32_b64 s69, s[64:65]")
        e("s_bitset0_b64 s[64:65], s69")
        e(f"v_readlane_b32 s68, v{48+u}, s69")
        e("s_lshl_b32 s68, s68, 7")
        e(f"v_add_u32 v42, s68, v{vL16}")
        e("v_mov_b32 v43, 0x7ffffff0")
        e("v_cndmask_b32 v42, v43, v42, s[62:63]")
        e(f"SG_P{u}:")
        e(f"buffer_load_dwordx4 v[52:55], v42, s[{sGI}:{sGI+3}], 0 offen{SC}")
        e("s_waitcnt vmcnt(0)")
        e(f"v_max3_u32 v{vT0}, v52, v53, v54")
        e(f"v_max_u32 v{vT0}, v{vT0}, v55")
        e(f"v_cmp_eq_u32 vcc, -1, v{vT0}")
        e(f"s_cbranch_vccz SG_A{u}")
        e(f"s_add_u32 s{sTRY}, s{sTRY}, 1")
        e(f"s_cmp_gt_u32 s{sTRY}, {TRYMAX}")
        e(f"s_cbranch_scc1 SG_A{u}")
        e("s_sleep 8")
        e(f"s_branch SG_P{u}")
        e(f"SG_A{u}:")
        e(f"v_mfma_f32_16x16x32_bf16 v[{vAC1}:{vAC1+3}], v[{vA1}:{vA1+3}], v[52:55], v[{vAC1}:{vAC1+3}]")
        e(f"v_mfma_f32_16x16x32_bf16 v[{vAC2}:{vAC2+3}], v[{vA2}:{vA2+3}], v[52:55], v[{vAC2}:{vAC2+3}]")
        e(f"s_branch SG_E{u}")
        e(f"SG_N{u}:")
        e("s_add_u32 s67, s67, 8")
        e("s_cmp_lt_u32 s67, 64")
        e(f"s_cbranch_scc1 SG_R{u}")
    e("s_add_u32 s66, s66, 1024")
    e("s_cmp_lt_u32 s66, 3200000")
    e("s_cbranch_scc1 SG_CHUNK")
    e("s_branch P_FLUSH")
    e("P_END:")
    e("s_endpgm")

def build(path, **kw):
    g = Gen()
    gen_k1(g)
    gen_p(g, **kw)
    kernel_desc(g, "bin_kernel", 80, 64)
    kernel_desc(g, "graph_kernel", 128, 96)
    launches = [f"; @launch kernel=bin_kernel grid=({NB+1},1,1) block=(1024,1,1) lds={K1_LDS}",
                f"; @launch kernel=graph_kernel grid=({NB},1,1) block=(1024,1,1) lds={P_LDS}"]
    if EXTRAK:
        kernel_header(g, "nop_kernel"); g.e("s_endpgm"); kernel_desc(g, "nop_kernel", 8, 16)
        l = f"; @launch kernel=nop_kernel grid=(250,1,1) block=(64,1,1) lds=0"
        launches = launches[:1] + [l] * EXTRAK + launches[1:]
    s = finish(g, launches, "gather_scatter__hybrid_graph_tf_nagphormer__graph.s.ref")
    open(path, "w").write(s)
    return s

if __name__ == "__main__":
    import argparse
    ap = argparse.ArgumentParser()
    ap.add_argument("out"); ap.add_argument("--dump", action="store_true"); ap.add_argument("--nofinal", action="store_true")
    ap.add_argument("--dbgstat", action="store_true"); ap.add_argument("--sleep", type=int, default=2); ap.add_argument("--nhops", type=int, default=7); ap.add_argument("--nosc1", action="store_true"); ap.add_argument("--forceslow", action="store_true"); ap.add_argument("--gate", action="store_true"); ap.add_argument("--gdelay", type=int, default=0); ap.add_argument("--free", action="store_true"); ap.add_argument("--pat", default=None); ap.add_argument("--extrak", type=int, default=0); ap.add_argument("--k1delay", type=int, default=0); ap.add_argument("--k1sc", default="")
    a = ap.parse_args()
    import gen; gen.K1STAMP = a.dbgstat; gen.FREE = a.free; gen.K1DELAY = a.k1delay; gen.K1SC = (" " + a.k1sc.replace("+", " ")) if a.k1sc else ""
    SLEEP = a.sleep; NHOPS = a.nhops; FORCESLOW = a.forceslow; GATE = a.gate; GDELAY = a.gdelay; EXTRAK = a.extrak; PAT = a.pat
    build(a.out, dump=a.dump, final=not a.nofinal, dbgstat=a.dbgstat, sc1=not a.nosc1)
    print("P_LDS", P_LDS)
```

```python
import sys, os
sys.path.insert(0, os.path.dirname(os.path.abspath(__file__)))
from asmlib import fix_hazards
from gen import Gen, srd, kernel_header, kernel_desc, finish, NB, NPB, CH, WS_REC, WS_TAB, WS_G, WS_GS, WS_WF, WS_DUMP, WS_STAMP, WS_BYTES, SRD3

class Opt:
    dbgstat = False; dump = False; final = True; forceslow = False; free = False
    sleep = 2; gsleep = 1; nhops = 7; gq = 2
    prio = None
    nogate = False
    onegate = False
    pat = None
    ptab1 = None
    hit = False
    revcls = False
    only = 0
    seq = 0
    nomfma = False; nocheck = False; ld = " sc1"
    ptab = None
    thr = (30, 35)
    perm = None
O = Opt()
import struct
def bf16bits(x):
    u = struct.unpack("<I", struct.pack("<f", x))[0]
    return (u + 0x7FFF + ((u >> 16) & 1)) >> 16
def thr_bits(d):
    return bf16bits((d + 1.0) ** -0.5)

PMAX = 80
NODEB = PMAX * 2
GSZ = 8 * NODEB
NGRP = 13
TOKROW = 144
TOKNODE = 8 * TOKROW
L_STREAM = 0
L_CNT = 104 * NODEB + 64
L_INFO = L_CNT + 1024
L_NODEOF = L_INFO + 1024
L_GINFO = L_NODEOF + 512
L_DISF = L_GINFO + 256
L_FLAG = L_DISF + 512
L_WF = L_FLAG + 64
L_TOK = L_WF + 16384
P_LDS = L_TOK + 100 * TOKNODE
RING = 16
TRYMAX = 200000
NCLS = (4, 4, 5)

sWS, sGI, sGO, sX, sDIS, sTAB, sOUT, sWR = 20, 24, 28, 32, 36, 40, 44, 48
sK, sP0, sG1, sG2, sT0, sT1, sT2, sPOI = 52, 53, 54, 55, 56, 57, 58, 59
sM800 = 60
sTMP = 62
sVALID = 70
sI1, sI2 = 72, 73
sCLSA, sTRY = 72, 73
s128, sSLOW, sRET, sRET2 = 74, 75, 76, 78
sGa, sGb, sGc, sTa, sTb, sTc, sGAD, sI16, sS0, sGREL, sEXS, sGSL, sCUR = range(80, 93)
sN0, sPRI, sPRI2 = 94, 97, 98
vTID, vLANE, vL16, vIDXA = 0, 1, 2, 3
vA1, vA2, vAC1, vAC2 = 4, 8, 12, 16
vIP, vT0, vT1 = 20, 21, 22
vX, vY = 24, 28
vRING = 40
vOFF = 104
vDIS1, vDIS2, vDIS3, vTOKA, vGOFF = 120, 121, 122, 123, 124
vF = 40

K1_LDS = 2048 + 12800

def gen_k1(g):
    e = g.e
    kernel_header(g, "bin_kernel")
    e(f"s_cmp_gt_u32 s2, {NB}")
    e("s_cbranch_scc1 K1_END")
    e("s_load_dwordx8 s[4:11], s[0:1], 0")
    e("s_load_dwordx2 s[12:13], s[0:1], 88")
    if O.dbgstat: e("s_memrealtime s[52:53]")
    e(f"s_cmp_eq_u32 s2, {NB}")
    e("s_cbranch_scc1 K1_W")
    e("v_lshlrev_b32 v1, 4, v0")
    e("v_lshlrev_b32 v2, 2, v0")
    e("v_mov_b32 v3, 0")
    e("s_movk_i32 s14, 0x100")
    e("v_cmp_gt_u32 vcc, s14, v0")
    e("s_and_saveexec_b64 s[40:41], vcc")
    e("ds_write_b32 v2, v3")
    e("s_mov_b64 exec, s[40:41]")
    e("s_movk_i32 s14, 800")
    e("v_cmp_gt_u32 vcc, s14, v0")
    e("s_mov_b64 s[42:43], vcc")
    e("s_mul_i32 s14, s2, 12800")
    e("s_mul_i32 s15, s2, 200")
    e("v_lshrrev_b32 v4, 3, v0")
    e("v_lshlrev_b32 v4, 1, v4")
    e("s_waitcnt lgkmcnt(0)")
    srd(g, 16, 6, 7, 3200000)
    srd(g, 20, 8, 9, 3200000)
    srd(g, 24, 4, 5, 3200000)
    srd(g, 28, 10, 11, 50000)
    srd(g, 32, 12, 13, hex(WS_BYTES))
    e("s_mov_b64 exec, s[42:43]")
    e("s_cbranch_execz K1_NOLD")
    e("buffer_load_dwordx4 v[8:11], v1, s[20:23], s14 offen")
    e("buffer_load_dwordx4 v[12:15], v1, s[16:19], s14 offen")
    e("buffer_load_dwordx4 v[16:19], v1, s[24:27], s14 offen")
    e("buffer_load_ushort v20, v4, s[28:31], s15 offen")
    for r_ in range(4): e(f"v_mov_b32 v{24+r_}, {0 if O.free else -1}")
    e(f"s_add_u32 s44, s14, {hex(WS_G + WS_GS)}")
    e("buffer_store_dwordx4 v[24:27], v1, s[32:35], s44 offen")
    e("K1_NOLD:")
    e("s_mov_b64 exec, -1")
    e("s_waitcnt lgkmcnt(0)")
    e("s_barrier")
    e("s_mov_b64 exec, s[42:43]")
    e("s_cbranch_execz K1_B1")
    e("s_waitcnt vmcnt(4)")
    e("s_movk_i32 s45, 5243")
    e("s_movk_i32 s46, -100")
    e("v_mov_b32 v21, 1")
    for u in range(4):
        d = 8 + u
        e(f"v_mul_u32_u24 v{28+u}, s45, v{d}")
        e(f"v_lshrrev_b32 v{28+u}, 19, v{28+u}")
        e(f"v_mad_i32_i24 v{d}, v{28+u}, s46, v{d}")
        e(f"v_lshrrev_b32 v22, 1, v{28+u}")
        e(f"v_and_b32 v22, 0x7c, v22")
        e(f"v_and_b32 v{28+u}, 7, v{28+u}")
        e(f"v_lshl_or_b32 v{28+u}, v{28+u}, 7, v22")
        e(f"ds_add_rtn_u32 v{32+u}, v{28+u}, v21")
    e("s_waitcnt vmcnt(3)")
    for u in range(4):
        e(f"v_lshlrev_b32 v{52+u}, 1, v{12+u}")
        e(f"buffer_load_ushort v{56+u}, v{52+u}, s[28:31], 0 offen")
    for u in range(4):
        e(f"v_lshl_or_b32 v{8+u}, v{8+u}, 19, v{12+u}")
    e("s_waitcnt vmcnt(5)")
    e("v_lshlrev_b32 v20, 16, v20")
    for r in range(4):
        e(f"v_lshlrev_b32 v22, 16, v{16+r}")
        e(f"v_and_b32 v23, 0xffff0000, v{16+r}")
        e("v_mul_f32 v22, v22, v20")
        e("v_mul_f32 v23, v23, v20")
        e(f"v_cvt_pk_bf16_f32 v{16+r}, v22, v23")
    e(f"s_add_u32 s44, s14, {hex(WS_G)}")
    e("buffer_store_dwordx4 v[16:19], v1, s[32:35], s44 offen")
    e("K1_B1:")
    e("s_mov_b64 exec, -1")
    e("s_waitcnt lgkmcnt(0)")
    e("s_barrier")
    e("v_cmp_gt_u32 vcc, 64, v0")
    e("s_and_saveexec_b64 s[40:41], vcc")
    e("s_cbranch_execz K1_B2")
    e("ds_read_b128 v[40:43], v1")
    e("s_waitcnt lgkmcnt(0)")
    e("v_add_u32 v44, v40, v41")
    e("v_add_u32 v45, v44, v42")
    e("v_add_u32 v46, v45, v43")
    e("v_mov_b32 v47, v46")
    for sh in (1, 2, 4, 8):
        e(f"v_add_u32_dpp v47, v47, v47 row_shr:{sh} row_mask:0xf bank_mask:0xf bound_ctrl:0")
    e("v_add_u32_dpp v47, v47, v47 row_bcast:15 row_mask:0xa bank_mask:0xf")
    e("v_add_u32_dpp v47, v47, v47 row_bcast:31 row_mask:0xc bank_mask:0xf")
    e("v_sub_u32 v48, v47, v46")
    e("v_add_u32 v49, v48, v40")
    e("v_add_u32 v50, v48, v44")
    e("v_add_u32 v51, v48, v45")
    e("ds_write_b128 v1, v[48:51] offset:1024")
    e("s_lshl_b32 s46, s2, 10")
    e(f"s_add_u32 s46, s46, {hex(WS_TAB)}")
    for u in range(4):
        e(f"v_lshl_or_b32 v{40+u}, v{40+u}, 16, v{48+u}")
    e("buffer_store_dwordx4 v[40:43], v1, s[32:35], s46 offen")
    e("K1_B2:")
    e("s_mov_b64 exec, -1")
    e("s_waitcnt lgkmcnt(0)")
    e("s_barrier")
    e("s_mov_b64 exec, s[42:43]")
    e("s_cbranch_execz K1_B3")
    for u in range(4):
        e(f"ds_read_b32 v{36+u}, v{28+u} offset:1024")
    e(f"s_movk_i32 s47, {hex(thr_bits(O.thr[0]))}")
    e(f"s_movk_i32 s48, {hex(thr_bits(O.thr[1]))}")
    e("v_bfrev_b32 v60, 2")
    e("v_bfrev_b32 v61, 1")
    e("s_waitcnt vmcnt(1)")
    for u in range(4):
        e(f"v_cmp_gt_u32 vcc, s47, v{56+u}")
        e(f"v_cndmask_b32 v22, v61, v60, vcc" if O.revcls else f"v_cndmask_b32 v22, 0, v60, vcc")
        e(f"v_cmp_gt_u32 vcc, s48, v{56+u}")
        e(f"v_cndmask_b32 v22, v22, 0, vcc" if O.revcls else f"v_cndmask_b32 v22, v22, v61, vcc")
        e(f"v_or_b32 v{8+u}, v{8+u}, v22")
    e("s_waitcnt lgkmcnt(0)")
    for u in range(4):
        e(f"v_add_lshl_u32 v{36+u}, v{36+u}, v{32+u}, 2")
        e(f"ds_write_b32 v{36+u}, v{8+u} offset:2048")
    e("K1_B3:")
    e("s_mov_b64 exec, -1")
    e("s_waitcnt lgkmcnt(0)")
    e("s_barrier")
    e("s_mov_b64 exec, s[42:43]")
    e("s_cbranch_execz K1_END")
    e("ds_read_b128 v[40:43], v1 offset:2048")
    e("s_waitcnt lgkmcnt(0)")
    e("buffer_store_dwordx4 v[40:43], v1, s[32:35], s14 offen")
    if O.dbgstat:
        e("s_waitcnt vmcnt(0)")
        e("s_memrealtime s[54:55]")
        e("s_lshl_b32 s56, s2, 4"); e(f"s_add_u32 s56, s56, {hex(WS_STAMP + 0x100000)}")
        e("v_cmp_eq_u32 vcc, 0, v0"); e("s_and_b64 exec, exec, vcc")
        e("s_waitcnt lgkmcnt(0)")
        e("v_mov_b32 v40, s52"); e("v_mov_b32 v41, s54"); e("v_mov_b32 v42, s56")
        e("buffer_store_dwordx2 v[40:41], v42, s[32:35], 0 offen")
    e("s_endpgm")
    e("K1_W:")
    e("s_load_dwordx8 s[16:23], s[0:1], 32")
    e("v_lshrrev_b32 v1, 6, v0")
    e("v_and_b32 v2, 63, v0")
    e("v_readfirstlane_b32 s3, v1")
    e("v_lshrrev_b32 v3, 4, v2")
    e("v_and_b32 v4, 15, v2")
    e("s_lshr_b32 s24, s3, 2")
    e("s_and_b32 s25, s3, 3")
    e("v_lshrrev_b32 v5, 2, v4")
    e("v_and_b32 v6, 3, v4")
    e("v_lshl_add_u32 v7, v5, 4, v6")
    e("s_lshl_b32 s26, s25, 2")
    e("s_lshl_b32 s27, s24, 2")
    e("v_add_u32 v8, s26, v7")
    e("v_add_u32 v9, s27, v7")
    e("v_lshlrev_b32 v10, 7, v8")
    e("v_lshl_add_u32 v10, v3, 4, v10")
    e("v_lshlrev_b32 v11, 7, v9")
    e("v_lshl_add_u32 v11, v3, 4, v11")
    e("s_waitcnt lgkmcnt(0)")
    srd(g, 28, 16, 17, 8192)
    srd(g, 32, 18, 19, 8192)
    srd(g, 36, 20, 21, 8192)
    srd(g, 40, 22, 23, 8192)
    srd(g, 44, 12, 13, 16384, add=hex(WS_WF))
    e("buffer_load_dwordx4 v[16:19], v10, s[28:31], 0 offen")
    e("buffer_load_dwordx4 v[20:23], v10, s[28:31], 0 offen offset:64")
    e("buffer_load_dwordx4 v[24:27], v11, s[32:35], 0 offen")
    e("buffer_load_dwordx4 v[28:31], v11, s[32:35], 0 offen offset:64")
    e("buffer_load_dwordx4 v[32:35], v10, s[36:39], 0 offen")
    e("buffer_load_dwordx4 v[36:39], v10, s[36:39], 0 offen offset:64")
    e("v_lshlrev_b32 v12, 10, v3")
    e("v_lshl_add_u32 v12, v9, 1, v12")
    e("s_movk_i32 s48, 0x1000")
    for sp in range(2):
        for j in range(8):
            off = (32 * sp + j) * 128
            so = "0"
            if off >= 4096:
                so = "s48"; off -= 4096
            e(f"buffer_load_ushort v{60 + sp*8 + j}, v12, s[40:43], {so} offen offset:{off}")
    for i in range(8): e(f"v_mov_b32 v{48+i}, 0")
    e("s_waitcnt vmcnt(0)")
    for r in range(8):
        e(f"v_lshl_or_b32 v{40+r}, v{61+2*r}, 16, v{60+2*r}")
    e("v_mfma_f32_16x16x32_bf16 v[48:51], v[16:19], v[24:27], v[48:51]")
    e("v_mfma_f32_16x16x32_bf16 v[52:55], v[32:35], v[40:43], v[52:55]")
    e("v_mfma_f32_16x16x32_bf16 v[48:51], v[20:23], v[28:31], v[48:51]")
    e("v_mfma_f32_16x16x32_bf16 v[52:55], v[36:39], v[44:47], v[52:55]")
    e("s_mov_b32 s49, 0x3e38aa3b")
    for b in range(4): e(f"v_mul_f32 v{48+b}, s49, v{48+b}")
    e("v_cvt_pk_bf16_f32 v56, v48, v49"); e("v_cvt_pk_bf16_f32 v57, v50, v51")
    e("v_cvt_pk_bf16_f32 v58, v52, v53"); e("v_cvt_pk_bf16_f32 v59, v54, v55")
    e("s_lshl_b32 s50, s24, 11")
    e("s_lshr_b32 s51, s25, 1"); e("s_lshl_b32 s51, s51, 10"); e("s_add_u32 s50, s50, s51")
    e("s_and_b32 s51, s25, 1"); e("s_lshl_b32 s51, s51, 3"); e("s_add_u32 s50, s50, s51")
    e("v_lshlrev_b32 v13, 4, v2")
    e("buffer_store_dwordx2 v[56:57], v13, s[44:47], s50 offen")
    e("s_add_u32 s50, s50, 8192")
    e("buffer_store_dwordx2 v[58:59], v13, s[44:47], s50 offen")
    e("K1_END:")
    e("s_endpgm")

def tree(g, sreg, vals, label):
    if len(vals) == 1:
        g.e(f"s_branch {label(vals[0])}"); return
    mid = len(vals) // 2
    l = g.lab("TR")
    g.e(f"s_cmp_ge_u32 s{sreg}, {vals[mid]}")
    g.e(f"s_cbranch_scc1 {l}")
    tree(g, sreg, vals[:mid], label)
    g.e(f"{l}:")
    tree(g, sreg, vals[mid:], label)

def gen_p(g):
    e = g.e
    SC = " sc1"
    dbg = O.dbgstat
    GQ = O.gq
    kernel_header(g, "graph_kernel")
    e(f"s_cmp_ge_u32 s2, {NB}")
    e("s_cbranch_scc1 P_END")
    e("s_load_dwordx8 s[4:11], s[0:1], 0")
    e("s_load_dwordx2 s[12:13], s[0:1], 88")
    e("s_load_dwordx2 s[14:15], s[0:1], 72")
    e("s_load_dwordx2 s[16:17], s[0:1], 64")
    if dbg: e("s_memrealtime s[90:91]")
    e(f"v_and_b32 v{vLANE}, 63, v0")
    e("v_lshrrev_b32 v40, 6, v0")
    e("v_lshlrev_b32 v45, 4, v0")
    e("v_readfirstlane_b32 s3, v40")
    e(f"s_movk_i32 s{s128}, 128")
    e("s_lshr_b32 s62, s2, 1"); e("s_and_b32 s62, s62, 0x7c"); e("s_and_b32 s63, s2, 7"); e("s_lshl_b32 s63, s63, 7"); e("s_or_b32 s62, s62, s63")
    e("v_and_b32 v52, 0xfffffffc, v0")
    e("v_lshlrev_b32 v52, 8, v52")
    e("s_waitcnt lgkmcnt(0)")
    srd(g, sTAB, 12, 13, NB * 1024, add=hex(WS_TAB))
    e(f"buffer_load_dword v53, v52, s[{sTAB}:{sTAB+3}], s62 offen")
    srd(g, sWS, 12, 13, hex(WS_BYTES))
    srd(g, sX, 4, 5, 3200000)
    srd(g, sDIS, 10, 11, 50000)
    e("s_mul_i32 s63, s2, 12800")
    e(f"buffer_load_dwordx4 v[56:59], v45, s[{sX}:{sX+3}], s63 offen")
    e("v_lshlrev_b32 v54, 1, v0")
    e("s_mul_i32 s64, s2, 200")
    e(f"buffer_load_ushort v55, v54, s[{sDIS}:{sDIS+3}], s64 offen")
    e(f"s_mov_b32 s65, {hex(WS_WF)}")
    e(f"buffer_load_dwordx4 v[60:63], v45, s[{sWS}:{sWS+3}], s65 offen")
    srd(g, sOUT, 14, 15, 3200000)
    srd(g, sWR, 16, 17, 128)
    for r in range(4): e(f"v_mov_b32 v{48+r}, -1")
    for r in range(4): e(f"v_mov_b32 v{124+r}, 0")
    e("ds_write_b128 v45, v[48:51]")
    nextra = (L_CNT - 16384) // 16
    e(f"v_cmp_gt_u32 vcc, {nextra}, v0")
    e("s_and_saveexec_b64 s[64:65], vcc")
    e("ds_write_b128 v45, v[48:51] offset:16384")
    e("s_mov_b64 exec, s[64:65]")
    nz = (L_WF - L_CNT) // 16
    e(f"s_movk_i32 s62, {nz}")
    e("v_cmp_gt_u32 vcc, s62, v0")
    e("s_and_saveexec_b64 s[64:65], vcc")
    e(f"ds_write_b128 v45, v[124:127] offset:{L_CNT}")
    e("s_mov_b64 exec, s[64:65]")
    e("s_movk_i32 s62, 800")
    e("v_cmp_gt_u32 vcc, s62, v0")
    e(f"s_mov_b64 s[{sM800}:{sM800+1}], vcc")
    e("v_lshrrev_b32 v64, 2, v0")
    e("v_and_b32 v65, 3, v0")
    e("s_movk_i32 s66, 12800")
    e("v_mul_u32_u24 v66, s66, v64")
    e("v_lshl_add_u32 v66, v65, 4, v66")
    e("v_lshlrev_b32 v69, 2, v65")
    e("s_waitcnt vmcnt(3)")
    if dbg: e("s_memrealtime s[78:79]")
    e("v_and_b32 v67, 0xffff, v53")
    e("v_lshrrev_b32 v68, 16, v53")
    e("v_lshl_add_u32 v66, v67, 2, v66")
    e("v_sub_u32 v69, v68, v69")
    R = 72
    OLD = 84
    e(f"buffer_load_dwordx4 v[{R}:{R+3}], v66, s[{sWS}:{sWS+3}], 0 offen")
    e("v_cmp_lt_i32 vcc, 16, v69")
    e(f"s_mov_b32 s{sI1}, 0"); e(f"s_mov_b32 s{sI2}, 0")
    e("s_cbranch_vccz P_NOI1")
    e(f"s_mov_b32 s{sI1}, 1")
    e(f"buffer_load_dwordx4 v[{R+4}:{R+7}], v66, s[{sWS}:{sWS+3}], 0 offen offset:64")
    e("v_cmp_lt_i32 vcc, 32, v69")
    e("s_cbranch_vccz P_NOI1")
    e(f"s_mov_b32 s{sI2}, 1")
    e(f"buffer_load_dwordx4 v[{R+8}:{R+11}], v66, s[{sWS}:{sWS+3}], 0 offen offset:128")
    e("P_NOI1:")
    e("v_cmp_lt_u32 vcc, 48, v68")
    e("s_waitcnt lgkmcnt(0)")
    e("s_barrier")
    e("s_and_saveexec_b64 s[64:65], vcc")
    e("v_mov_b32 v70, 1")
    e(f"v_mov_b32 v71, {L_FLAG}")
    e("ds_write_b32 v71, v70")
    e("s_mov_b64 exec, s[64:65]")
    if dbg: e("s_memrealtime s[80:81]")
    e("v_mov_b32 v70, 2"); e("v_mov_b32 v71, 0")
    e("s_waitcnt vmcnt(0)")
    if dbg: e("s_memrealtime s[82:83]")
    def atom(i):
        for u in range(4):
            r = R + 4 * i + u; o = OLD + 2 * (4 * i + u)
            e(f"v_cmpx_lt_i32 vcc, {16*i+u}, v69")
            e(f"v_lshrrev_b32 v108, 26, v{r}")
            e(f"v_bfe_u32 v109, v{r}, 16, 10")
            e(f"v_lshlrev_b64 v[110:111], v108, v[70:71]")
            e(f"ds_add_rtn_u64 v[{o}:{o+1}], v109, v[110:111] offset:{L_CNT}")
    atom(0)
    e(f"s_cmp_eq_u32 s{sI1}, 0"); e("s_cbranch_scc1 P_AT_D")
    atom(1)
    e(f"s_cmp_eq_u32 s{sI2}, 0"); e("s_cbranch_scc1 P_AT_D")
    atom(2)
    e("P_AT_D:")
    e(f"s_mov_b64 exec, s[{sM800}:{sM800+1}]")
    e("v_lshrrev_b32 v112, 3, v0")
    e(f"s_movk_i32 s66, {TOKNODE}")
    e("v_mul_u32_u24 v112, s66, v112")
    e("v_and_b32 v113, 7, v0")
    e("v_lshl_add_u32 v112, v113, 4, v112")
    e(f"ds_write_b128 v112, v[56:59] offset:{L_TOK}")
    e("s_mov_b64 exec, -1")
    e(f"ds_write_b128 v45, v[60:63] offset:{L_WF}")
    e("s_movk_i32 s66, 100")
    e("v_cmp_gt_u32 vcc, s66, v0")
    e("s_and_saveexec_b64 s[64:65], vcc")
    e("v_lshlrev_b32 v55, 16, v55")
    e("v_lshlrev_b32 v112, 2, v0")
    e(f"ds_write_b32 v112, v55 offset:{L_DISF}")
    e("s_mov_b64 exec, s[64:65]")
    e("v_lshrrev_b32 v112, 3, v0")
    e("v_and_b32 v113, 7, v0")
    e("v_mul_u32_u24 v116, 13, v113")
    e("v_lshlrev_b32 v117, 3, v116")
    e("v_lshlrev_b32 v118, 3, v112")
    e("v_sub_u32 v119, 127, v116")
    e("v_sub_u32 v120, 127, v112")
    e("v_lshlrev_b32 v114, 2, v112")
    e("s_mov_b32 s67, 0x10001")
    e(f"v_add_u32 v117, {L_CNT}, v117")
    e("s_waitcnt lgkmcnt(0)")
    e("s_barrier")
    if dbg: e("s_memrealtime s[84:85]")
    e(f"ds_read_b64 v[56:57], v118 offset:{L_CNT}")
    CB = 4
    for u in range(6):
        e(f"ds_read2_b64 v[{CB+4*u}:{CB+4*u+3}], v117 offset0:{2*u} offset1:{2*u+1}")
    e(f"ds_read_b64 v[{CB+24}:{CB+25}], v117 offset:96")
    e(f"ds_read_b32 v115, v114 offset:{L_DISF}")
    e("v_mov_b32 v121, 0")
    e("s_waitcnt lgkmcnt(8)")
    e("v_dot2_u32_u16 v58, v56, s67, v57")
    e("v_lshl_add_u32 v120, v58, 7, v120")
    e("s_waitcnt lgkmcnt(1)")
    for u in range(13):
        lo = CB + 2 * u
        e(f"v_dot2_u32_u16 v{lo}, v{lo}, s67, v{lo+1}")
        e(f"v_lshl_add_u32 v{lo}, v{lo}, 7, v119")
        e(f"v_add_u32 v{lo+1}, {u}, v120")
    for u0 in range(0, 13, 4):
        us = list(range(u0, min(u0 + 4, 13)))
        for i, u in enumerate(us):
            lo = CB + 2 * u
            e(f"v_cmp_gt_u32 s[{sTMP+2*i}:{sTMP+2*i+1}], v{lo}, v{lo+1}")
        for i, u in enumerate(us):
            e(f"v_addc_co_u32 v121, s[{sTMP+2*i}:{sTMP+2*i+1}], 0, v121, s[{sTMP+2*i}:{sTMP+2*i+1}]")
    e("v_add_u32_dpp v121, v121, v121 quad_perm:[1,0,3,2] row_mask:0xf bank_mask:0xf")
    e("v_add_u32_dpp v121, v121, v121 quad_perm:[2,3,0,1] row_mask:0xf bank_mask:0xf")
    e("v_add_u32_dpp v121, v121, v121 row_half_mirror row_mask:0xf bank_mask:0xf")
    e("s_movk_i32 s66, 100")
    e("v_cmp_gt_u32 s[62:63], s66, v112")
    e("v_cmp_eq_u32 vcc, 0, v113")
    e("s_waitcnt lgkmcnt(0)")
    e("s_and_b64 exec, vcc, s[62:63]")
    e("s_cbranch_execz P_RK_D")
    e("v_mov_b32 v60, v112")
    e(f"s_mov_b32 s66, {hex(thr_bits(O.thr[0]) << 16)}")
    e(f"s_mov_b32 s67, {hex(thr_bits(O.thr[1]) << 16)}")
    e(f"v_mov_b32 v114, {0 if O.revcls else 2}")
    e("v_cmp_gt_u32 vcc, s66, v115")
    e("v_cndmask_b32 v114, v114, 1, vcc")
    e("v_cmp_gt_u32 vcc, s67, v115")
    e(f"v_cndmask_b32 v114, v114, {2 if O.revcls else 0}, vcc")
    e(f"s_movk_i32 s66, {NODEB}")
    e(f"v_mov_b32 v62, {L_STREAM + NODEB - 2}")
    e("v_mad_u32_u24 v62, v121, s66, v62")
    e("v_sub_u32 v63, v62, v57")
    e("v_lshrrev_b32 v64, 16, v56")
    e("v_sub_u32 v65, v63, v64")
    e("v_and_b32 v65, 0xffff, v65")
    e("v_lshl_or_b32 v60+0, v60, 0, v60" if False else "v_lshl_or_b32 v66, v63, 16, v65")
    e("v_mov_b32 v67, v62")
    e(f"ds_write_b64 v118, v[66:67] offset:{L_INFO}")
    e("v_lshlrev_b32 v63, 2, v121")
    e(f"ds_write_b32 v63, v60 offset:{L_NODEOF}")
    e("v_lshrrev_b32 v63, 3, v121")
    e("v_lshlrev_b32 v63, 4, v63")
    e("v_add_u32 v64, v64, v57")
    e(f"ds_max_u32 v63, v58 offset:{L_GINFO}")
    e(f"ds_max_u32 v63, v64 offset:{L_GINFO+4}")
    e(f"ds_max_u32 v63, v57 offset:{L_GINFO+8}")
    e(f"ds_max_u32 v63, v114 offset:{L_GINFO+12}")
    e(f"s_movk_i32 s66, {2*PMAX}")
    e("v_cmp_lt_u32 vcc, s66, v58")
    e("s_and_b64 exec, exec, vcc")
    e("v_mov_b32 v63, 1")
    e(f"v_mov_b32 v64, {L_FLAG}")
    e("ds_write_b32 v64, v63")
    e("P_RK_D:")
    e("s_mov_b64 exec, -1")
    e(f"v_mov_b32 v60, {L_FLAG}")
    e("s_waitcnt lgkmcnt(0)")
    e("s_barrier")
    if dbg: e("s_memrealtime s[86:87]")
    e("ds_read_b32 v61, v60")
    def place_rd(i):
        for u in range(4):
            r = R + 4 * i + u
            e(f"v_bfe_u32 v109, v{r}, 16, 10")
            e(f"ds_read_b64 v[{112+2*u}:{113+2*u}], v109 offset:{L_INFO}")
    def place(i):
        for u in range(4):
            r = R + 4 * i + u; o = OLD + 2 * (4 * i + u)
            e(f"v_lshrrev_b32 v108, 26, v{r}")
            e(f"v_lshrrev_b64 v[{o}:{o+1}], v108, v[{o}:{o+1}]")
            e(f"v_lshrrev_b64 v[{112+2*u}:{113+2*u}], v108, v[{112+2*u}:{113+2*u}]")
            e(f"v_cmpx_lt_i32 vcc, {16*i+u}, v69")
            e(f"v_sub_u32_sdwa v109, v{112+2*u}, v{o} dst_sel:DWORD dst_unused:UNUSED_PAD src0_sel:WORD_0 src1_sel:WORD_0")
            e(f"ds_write_b16 v109, v{r}")
    place_rd(0)
    e("s_waitcnt lgkmcnt(4)")
    e(f"v_readfirstlane_b32 s{sSLOW}, v61")
    if O.forceslow:
        e("s_cmp_lt_u32 s2, 3"); e("s_cbranch_scc0 P_NOFS"); e(f"s_mov_b32 s{sSLOW}, 1"); e("P_NOFS:")
    e(f"s_cmp_lg_u32 s{sSLOW}, 0"); e("s_cbranch_scc1 P_PL_D")
    e("s_waitcnt lgkmcnt(0)")
    place(0)
    e(f"s_cmp_eq_u32 s{sI1}, 0"); e("s_cbranch_scc1 P_PL_D")
    place_rd(1); e("s_waitcnt lgkmcnt(0)"); place(1)
    e(f"s_cmp_eq_u32 s{sI2}, 0"); e("s_cbranch_scc1 P_PL_D")
    place_rd(2); e("s_waitcnt lgkmcnt(0)"); place(2)
    e("P_PL_D:")
    e("s_mov_b64 exec, -1")
    e("s_waitcnt lgkmcnt(0)")
    e("s_barrier")
    if dbg: e("s_memrealtime s[88:89]")
    e(f"s_cmp_ge_u32 s3, {NGRP}")
    e("s_cbranch_scc1 P_END")
    if O.perm:
        pk = 0
        for w, gidx in enumerate(O.perm): pk |= gidx << (4 * w)
        e(f"s_mov_b32 s62, {hex(pk & 0xffffffff)}"); e(f"s_mov_b32 s63, {hex(pk >> 32)}")
        e("s_lshl_b32 s64, s3, 2"); e("s_lshr_b64 s[62:63], s[62:63], s64"); e("s_and_b32 s3, s62, 15")
    e("s_lshl_b32 s62, s3, 4")
    e(f"s_add_u32 s63, s62, {L_GINFO}")
    e("v_mov_b32 v62, s63")
    e("ds_read_b128 v[64:67], v62")
    e(f"v_lshlrev_b32 v62, 4, v{vLANE}")
    e(f"ds_read_b32 v63, v62 offset:{L_GINFO+12}")
    e(f"v_lshrrev_b32 v68, 4, v{vLANE}")
    e(f"v_bfe_u32 v69, v{vLANE}, 3, 1")
    e(f"v_and_b32 v70, 7, v{vLANE}")
    e(f"v_lshlrev_b32 v{vL16}, 4, v70")
    e("v_lshrrev_b32 v71, 1, v68")
    e("v_lshl_add_u32 v72, v71, 1, v69")
    e("v_and_b32 v73, 1, v68")
    e("v_lshl_add_u32 v73, v73, 2, v72")
    e("s_lshl_b32 s62, s3, 5")
    e(f"s_add_u32 s63, s62, {L_NODEOF}")
    e("v_lshl_add_u32 v74, v72, 2, s63")
    e("ds_read_b32 v75, v74")
    e("ds_read_b32 v76, v74 offset:16")
    e("v_lshl_add_u32 v74, v73, 2, s63")
    e("ds_read_b32 v77, v74")
    e("s_lshl_b32 s64, s3, 3")
    e("v_add_u32 v73, s64, v73")
    e("s_movk_i32 s66, 100")
    e("v_cmp_gt_u32 vcc, s66, v73")
    e(f"s_mov_b64 s[{sVALID}:{sVALID+1}], vcc")
    e(f"v_lshrrev_b32 v78, 3, v{vLANE}")
    e("v_add_u32 v78, s64, v78")
    e(f"s_movk_i32 s65, {NODEB}")
    e(f"v_mul_u32_u24 v{vIDXA}, s65, v78")
    if L_STREAM: e(f"v_add_u32 v{vIDXA}, {L_STREAM}, v{vIDXA}")
    e("s_waitcnt lgkmcnt(0)")
    for (n, d) in ((75, vDIS1), (76, vDIS2), (77, vDIS3)):
        e(f"v_lshlrev_b32 v74, 2, v{n}")
        e(f"ds_read_b32 v{d}, v74 offset:{L_DISF}")
    e("v_readfirstlane_b32 s65, v64")
    e("v_readfirstlane_b32 s66, v65")
    e("v_readfirstlane_b32 s67, v66")
    e("v_readfirstlane_b32 s68, v67")
    for c in range(3):
        e(f"v_cmp_eq_u32 vcc, {2-c}, v63")
        e(f"s_and_b32 s62, vcc_lo, 0x1fff")
        e(f"s_bcnt1_i32_b32 s{sN0+c}, s62")
    e(f"s_sub_u32 s68, 2, s68")
    e(f"s_lshl_b32 s69, s68, 2")
    e(f"s_add_u32 s{sCLSA}, s69, {L_FLAG + 16}")
    if O.ptab:
        for tab, dst in ((O.ptab, sPRI2), (O.ptab1, sPRI)):
            pk = [sum(tab[c][g_] << (2 * g_) for g_ in range(3)) for c in range(3)]
            e(f"s_mov_b32 s62, {pk[0] | pk[1] << 8 | pk[2] << 16}")
            e(f"s_lshl_b32 s69, s68, 3")
            e(f"s_lshr_b32 s{dst}, s62, s69")
            e(f"s_and_b32 s{dst}, s{dst}, 0xff")
    e(f"s_movk_i32 s64, {TOKNODE}")
    e(f"v_mul_u32_u24 v{vTOKA}, s64, v77")
    e(f"v_add_u32 v{vTOKA}, v{vTOKA}, v{vL16}")
    e(f"v_add_u32 v{vTOKA}, {L_TOK}, v{vTOKA}")
    e("s_mul_i32 s64, s2, 100")
    e("v_add_u32 v77, s64, v77")
    e(f"v_lshl_add_u32 v{vGOFF}, v77, 7, v{vL16}")
    for src, dst in ((65, sP0), (66, sG1), (67, sG2)):
        e(f"s_lshr_b32 s{src}, s{src}, 1")
        if dst == sP0: e(f"s_max_u32 s{src}, s{src}, 2")
        e(f"s_min_u32 s{src}, s{src}, {PMAX}")
        e(f"s_sub_u32 s{dst}, {PMAX}, s{src}")
        e(f"s_andn2_b32 s{dst}, s{dst}, {GQ-1}")
    e(f"s_max_u32 s{sG1}, s{sG1}, s{sP0}")
    e(f"s_max_u32 s{sG2}, s{sG2}, s{sG1}")
    if O.onegate:
        e(f"s_mov_b32 s{sG1}, s{sP0}"); e(f"s_mov_b32 s{sG2}, s{sP0}")
    e(f"v_and_b32 v64, 7, v{vLANE}")
    e("v_lshrrev_b32 v65, 1, v64")
    e("v_and_b32 v66, 1, v64")
    e("v_lshlrev_b32 v66, 4, v66")
    e("v_mov_b32 v67, 0x3f80")
    e("v_lshlrev_b32 v67, v66, v67")
    e(f"v_lshrrev_b32 v68, 4, v{vLANE}")
    e(f"v_bfe_u32 v69, v{vLANE}, 3, 1")
    e("v_add_u32 v70, 2, v69")
    e("v_cmp_eq_u32 s[62:63], v68, v69")
    e("v_cmp_eq_u32 s[64:65], v68, v70")
    for r in range(4):
        e(f"v_cmp_eq_u32 vcc, {r}, v65")
        e(f"s_and_b64 s[68:69], vcc, s[62:63]")
        e(f"v_cndmask_b32 v{vA1+r}, 0, v67, s[68:69]")
        e(f"s_and_b64 s[68:69], vcc, s[64:65]")
        e(f"v_cndmask_b32 v{vA2+r}, 0, v67, s[68:69]")
    for i in range(RING): e(f"v_mov_b32 v{vOFF+i}, 0x7ffffff0")
    e(f"s_mov_b32 s{sK}, 1")
    e(f"s_mov_b32 s{sT0}, 0"); e(f"s_mov_b32 s{sT1}, 0"); e(f"s_mov_b32 s{sT2}, 0")
    e(f"s_mov_b32 s{sGI+2}, 3200000"); e(f"s_mov_b32 s{sGI+3}, {SRD3}")
    e(f"s_mov_b32 s{sGO+2}, 3200000"); e(f"s_mov_b32 s{sGO+3}, {SRD3}")
    e(f"s_add_u32 s{sGO}, s12, {hex(WS_G)}"); e(f"s_addc_u32 s{sGO+1}, s13, 0")
    PV = 0 if O.free else -1
    e(f"s_mov_b32 s{sPOI}, {hex(WS_G + 2 * WS_GS)}")
    for r in range(4): e(f"v_mov_b32 v{vX+r}, {PV}")
    e(f"s_mov_b64 exec, s[{sVALID}:{sVALID+1}]")
    e(f"buffer_store_dwordx4 v[{vX}:{vX+3}], v{vGOFF}, s[{sWS}:{sWS+3}], s{sPOI} offen{SC}")
    e("s_mov_b64 exec, -1")
    e(f"s_add_u32 s{sPOI}, s{sPOI}, {hex(WS_GS)}")
    e("s_waitcnt lgkmcnt(0)")
    def stamp(idx, val, pre=None):
        if pre is None: e("s_memrealtime s[62:63]")
        else: e(f"s_mov_b32 s62, s{pre}")
        e("s_lshl_b32 s64, s2, 4"); e("s_add_u32 s64, s64, s3"); e("s_lshl_b32 s64, s64, 5")
        e(f"s_add_u32 s64, s64, {idx}"); e("s_lshl_b32 s64, s64, 3")
        e(f"s_add_u32 s64, s64, {hex(WS_STAMP)}")
        e("s_waitcnt lgkmcnt(0)")
        e("s_mov_b64 exec, 1")
        e(f"v_mov_b32 v32, s62"); e(f"v_mov_b32 v33, {val}"); e(f"v_mov_b32 v34, s64")
        e(f"buffer_store_dwordx2 v[32:33], v34, s[{sWS}:{sWS+3}], 0 offen")
        e("s_mov_b64 exec, -1")
    if dbg:
        e("s_memtime s[66:67]"); e("s_waitcnt lgkmcnt(0)")
        stamp("20", "s66")
        stamp("0", f"s{sP0}")
        stamp("8", f"s{sG1}", pre=90)
        for i, r in enumerate((78, 80, 82, 84, 86, 88)): stamp(str(10 + i), f"s{sG2}", pre=r)
    if O.seq:
        e("s_lshl_b32 s62, s2, 4"); e("s_add_u32 s62, s62, s3"); e("s_mul_i32 s62, s62, 53248")
        e(f"v_lshlrev_b32 v33, 4, v{vLANE}")
        if O.seq == 3:
            e(f"v_lshrrev_b32 v33, 2, v{vLANE}"); e("v_lshlrev_b32 v33, 7, v33"); e(f"v_and_b32 v34, 3, v{vLANE}"); e("v_lshl_add_u32 v33, v34, 4, v33")
        if O.seq == 4:
            e(f"v_and_b32 v33, 15, v{vLANE}"); e("v_lshlrev_b32 v33, 4, v33")
        if O.seq == 5:
            e(f"v_and_b32 v33, 31, v{vLANE}"); e("v_lshlrev_b32 v33, 4, v33")
        if O.seq == 6:
            e(f"v_lshlrev_b32 v33, 7, v{vLANE}")
        e("v_add_u32 v32, s62, v33"); e("v_and_b32 v32, 0x1fffff, v32")
    if O.only:
        e(f"s_cmp_ge_u32 s2, {O.only}"); e("s_cbranch_scc1 P_END")
    e("P_HOP:")
    if O.hit:
        e(f"s_add_u32 s{sGI}, s12, {hex(WS_G)}"); e(f"s_addc_u32 s{sGI+1}, s13, 0")
    else:
        e(f"s_mov_b32 s{sGI}, s{sGO}"); e(f"s_mov_b32 s{sGI+1}, s{sGO+1}")
    e(f"s_add_u32 s{sGO}, s{sGO}, {hex(WS_GS)}"); e(f"s_addc_u32 s{sGO+1}, s{sGO+1}, 0")
    e(f"s_mov_b32 s{sTRY}, 0")
    e("s_mov_b32 s93, 0")
    e(f"s_cmp_lg_u32 s{sSLOW}, 0")
    e("s_cbranch_scc1 P_SLOWG")
    for i in range(8): e(f"v_mov_b32 v{vAC1+i}, 0")
    e(f"s_mov_b32 s{sGa}, s{sP0}"); e(f"s_mov_b32 s{sGb}, s{sG1}"); e(f"s_mov_b32 s{sGc}, s{sG2}")
    e(f"s_mov_b32 s{sTa}, s{sT0}"); e(f"s_mov_b32 s{sTb}, s{sT1}"); e(f"s_mov_b32 s{sTc}, s{sT2}")
    e(f"s_movk_i32 s{sGAD}, {L_FLAG + 16}")
    def rotate():
        e(f"s_mov_b32 s{sGa}, s{sGb}"); e(f"s_mov_b32 s{sGb}, s{sGc}"); e(f"s_movk_i32 s{sGc}, 255")
        e(f"s_mov_b32 s{sTa}, s{sTb}"); e(f"s_mov_b32 s{sTb}, s{sTc}")
        e(f"s_add_u32 s{sGAD}, s{sGAD}, 4")
    def rdcnt():
        e(f"v_mov_b32 v{vT1}, s{sGAD}")
        e(f"ds_read_b32 v{vT0}, v{vT1}")
        e("s_waitcnt lgkmcnt(0)")
        e(f"v_readfirstlane_b32 s62, v{vT0}")
        e(f"s_cmp_ge_u32 s62, s{sTa}")
    def setprio(tag):
        e(f"s_sub_u32 s62, s{sGAD}, {L_FLAG + 20}"); e("s_lshr_b32 s62, s62, 1")
        e(f"s_lshr_b32 s62, s{sPRI}, s62"); e("s_and_b32 s62, s62, 3")
        e("s_cmp_ge_u32 s62, 2"); e(f"s_cbranch_scc1 SP{tag}_H")
        e("s_cmp_eq_u32 s62, 1"); e(f"s_cbranch_scc1 SP{tag}_1")
        e("s_setprio 0"); e(f"s_branch SP{tag}_D")
        e(f"SP{tag}_1:"); e("s_setprio 1"); e(f"s_branch SP{tag}_D")
        e(f"SP{tag}_H:"); e("s_cmp_eq_u32 s62, 3"); e(f"s_cbranch_scc1 SP{tag}_3")
        e("s_setprio 2"); e(f"s_branch SP{tag}_D")
        e(f"SP{tag}_3:"); e("s_setprio 3")
        e(f"SP{tag}_D:")
    e("GW:")
    e(f"s_mov_b32 s{sCUR}, s{sGa}")
    e("GW1:")
    rdcnt()
    e("s_cbranch_scc1 GW2")
    e("s_add_u32 s93, s93, 1")
    e(f"s_cmp_gt_u32 s93, {TRYMAX*4}")
    e("s_cbranch_scc1 GW2")
    if O.gsleep: e(f"s_sleep {O.gsleep}")
    e("s_branch GW1")
    e("GW2:")
    if dbg:
        e(f"s_sub_u32 s65, s{sGAD}, {L_FLAG + 16}"); e("s_lshr_b32 s65, s65, 2"); e("s_add_u32 s65, s65, 16")
        e(f"s_cmp_eq_u32 s{sK}, 4"); e("s_cbranch_scc0 GW2b")
        stamp("s65", f"s{sCUR}")
        e("GW2b:")
    rotate()
    e(f"s_cmp_eq_u32 s{sGa}, s{sCUR}")
    e("s_cbranch_scc1 GW1")
    if O.ptab: setprio("W")
    e(f"s_andn2_b32 s{sI16}, s{sCUR}, 15")
    e(f"s_and_b32 s{sS0}, s{sCUR}, 15")
    e(f"s_sub_u32 s{sGREL}, s{sGa}, s{sI16}")
    e(f"s_add_u32 s{sEXS}, s{sS0}, 15"); e(f"s_and_b32 s{sEXS}, s{sEXS}, 15")
    e(f"s_lshl_b32 s63, s{sI16}, 1")
    e(f"v_add_u32 v{vIP}, s63, v{vIDXA}")
    e(f"s_lshr_b32 s64, s{sS0}, 3"); e("s_lshl_b32 s64, s64, 5")
    e(f"v_add_u32 v{vT0}, s64, v{vIP}")
    e(f"ds_read_b128 v[{vX}:{vX+3}], v{vT0}")
    e(f"ds_read_b128 v[{vY}:{vY+3}], v{vIP} offset:16")
    e("s_waitcnt lgkmcnt(0)")
    tree(g, sS0, list(range(0, 16, GQ)), lambda s: f"PA_{s}")
    def idxld(s):
        if s == 0:
            e("s_waitcnt lgkmcnt(0)"); e(f"ds_read_b128 v[{vY}:{vY+3}], v{vIP} offset:16")
        elif s == 8:
            e("s_waitcnt lgkmcnt(0)"); e(f"ds_read_b128 v[{vX}:{vX+3}], v{vIP} offset:32")
    def issue(s):
        r = (vX if s < 8 else vY) + (s % 8) // 2
        t = vOFF + s; d = vRING + 4 * s
        if O.seq in (1, 3, 4, 5, 6):
            e(f"v_add_u32 v32, {dict([(1,1024),(3,2048),(4,256),(5,512),(6,8192)])[O.seq]}, v32"); e(f"v_and_b32 v32, 0x1fffff, v32"); e(f"v_mov_b32 v{t}, v32")
        elif O.seq == 2:
            e(f"v_mad_u32_u16 v{t}, v{r}, s{s128}, v{vL16} op_sel:[{s%2},0,0,0]")
            e(f"v_readfirstlane_b32 s62, v{t}")
            e(f"s_and_b32 s62, s62, 0x3ffc00")
            e(f"v_add_u32 v{t}, s62, v33")
        else:
            e(f"v_mad_u32_u16 v{t}, v{r}, s{s128}, v{vL16} op_sel:[{s%2},0,0,0]")
        e(f"buffer_load_dwordx4 v[{d}:{d+3}], v{t}, s[{sGI}:{sGI+3}], 0 offen{O.ld}")
    def check(sl):
        s = vRING + 4 * sl
        if O.nocheck:
            e("s_mov_b64 vcc, 0"); return
        e(f"v_max3_u32 v{vT0}, v{s}, v{s+1}, v{s+2}")
        e(f"v_max_u32 v{vT0}, v{vT0}, v{s+3}")
        e(f"v_cmp_eq_u32 vcc, -1, v{vT0}")
    def mfmas(sl):
        s = vRING + 4 * sl
        if O.nomfma: return
        e(f"v_mfma_f32_16x16x32_bf16 v[{vAC1}:{vAC1+3}], v[{vA1}:{vA1+3}], v[{s}:{s+3}], v[{vAC1}:{vAC1+3}]")
        e(f"v_mfma_f32_16x16x32_bf16 v[{vAC2}:{vAC2+3}], v[{vA2}:{vA2+3}], v[{s}:{s+3}], v[{vAC2}:{vAC2+3}]")
    def wrap():
        e(f"s_add_u32 s{sI16}, s{sI16}, 16")
        e(f"s_sub_u32 s{sGREL}, s{sGREL}, 16")
        e(f"v_add_u32 v{vIP}, 32, v{vIP}")
    for s in range(16):
        e(f"PA_{s}:")
        if s % GQ == 0:
            e(f"s_cmp_eq_u32 s{sGREL}, {s}"); e(f"s_cbranch_scc1 GA_{s}")
            e(f"GAR_{s}:")
        idxld(s)
        issue(s)
        if s < 15:
            e(f"s_cmp_eq_u32 s{sEXS}, {s}"); e(f"s_cbranch_scc1 PB_{s+1}")
        else:
            e(f"s_cmp_eq_u32 s{sI16}, {PMAX-16}"); e("s_cbranch_scc1 PA_END")
            wrap()
            e(f"s_cmp_eq_u32 s{sEXS}, 15"); e("s_cbranch_scc0 PA_0")
    for s in range(16):
        e(f"PB_{s}:")
        e("s_waitcnt vmcnt(15)")
        check(s)
        e(f"s_cbranch_vccnz STB_{s}")
        e(f"RTB_{s}:")
        mfmas(s)
        if s % GQ == 0:
            e(f"s_cmp_eq_u32 s{sGREL}, {s}"); e(f"s_cbranch_scc1 GB_{s}")
            e(f"GBR_{s}:")
        idxld(s)
        issue(s)
    wrap()
    e(f"s_cmp_lt_u32 s{sI16}, {PMAX}"); e("s_cbranch_scc1 PB_0")
    for s in range(16):
        e(f"PD_{s}:")
        e(f"s_waitcnt vmcnt({15-s})")
        check(s)
        e(f"s_cbranch_vccnz STD_{s}")
        e(f"RTD_{s}:")
        mfmas(s)
    e("s_branch P_FLUSH")
    e("PA_END:")
    tree(g, sS0, list(range(0, 16, GQ)), lambda s: f"PD_{s}")
    for s in range(16):
        e(f"PC_{s}:")
        check(s)
        e(f"s_cbranch_vccnz STC_{s}")
        e(f"RTC_{s}:")
        mfmas(s)
        if (s + 1) % GQ == 0:
            e(f"s_cmp_eq_u32 s{sGSL}, {(s+1)%16}"); e("s_cbranch_scc1 GW")
    e("s_branch PC_0")
    for s in range(0, 16, GQ):
        e(f"GA_{s}:")
        e(f"s_call_b64 s[{sRET2}:{sRET2+1}], GT")
        e(f"s_cbranch_scc1 GAR_{s}")
        e("s_branch GA_CLOSED")
        e(f"GB_{s}:")
        e(f"s_call_b64 s[{sRET2}:{sRET2+1}], GT")
        e(f"s_cbranch_scc1 GBR_{s}")
        e("s_waitcnt vmcnt(0)")
        e(f"s_branch PC_{(s+1)%16}")
    e("GA_CLOSED:")
    e("s_waitcnt vmcnt(0)")
    tree(g, sS0, list(range(0, 16, GQ)), lambda s: f"PC_{s}")
    e("GT:")
    e(f"s_mov_b32 s{sCUR}, s{sGa}")
    e("GT1:")
    rdcnt()
    e(f"s_and_b32 s{sGSL}, s{sGa}, 15")
    e(f"s_cmp_ge_u32 s62, s{sTa}")
    e("s_cbranch_scc0 GT_RET")
    rotate()
    e(f"s_cmp_eq_u32 s{sGa}, s{sCUR}")
    e("s_cbranch_scc1 GT1")
    if O.ptab: setprio("T")
    e(f"s_sub_u32 s{sGREL}, s{sGa}, s{sI16}")
    e("s_cmp_eq_u32 s62, s62")
    e("GT_RET:")
    e(f"s_setpc_b64 s[{sRET2}:{sRET2+1}] ; @to " + " ".join(f"GAX_{s} GBX_{s}" for s in range(0, 16, GQ)))
    for s in range(16):
        for t in "BDC":
            e(f"ST{t}_{s}:")
            e(f"s_call_b64 s[{sRET}:{sRET+1}], POLL_{s}")
            e(f"s_branch RT{t}_{s}")
    for sl in range(RING):
        s = vRING + 4 * sl
        e(f"POLL_{sl}:")
        e(f"s_add_u32 s{sTRY}, s{sTRY}, 1")
        e(f"s_cmp_gt_u32 s{sTRY}, {TRYMAX}")
        e("s_cbranch_scc1 P_RET")
        if O.sleep: e(f"s_sleep {O.sleep}")
        e("s_mov_b64 exec, vcc")
        e(f"buffer_load_dwordx4 v[{s}:{s+3}], v{vOFF+sl}, s[{sGI}:{sGI+3}], 0 offen{SC}")
        e("s_mov_b64 exec, -1")
        e("s_waitcnt vmcnt(0)")
        check(sl)
        e(f"s_cbranch_vccnz POLL_{sl}")
        if sl < RING - 1: e("s_branch P_REFRESH")
    e("P_REFRESH:")
    for sl in range(RING):
        s = vRING + 4 * sl
        l = g.lab("RF")
        check(sl)
        e(f"s_cbranch_vccz {l}")
        e("s_mov_b64 exec, vcc")
        e(f"buffer_load_dwordx4 v[{s}:{s+3}], v{vOFF+sl}, s[{sGI}:{sGI+3}], 0 offen{SC}")
        e("s_mov_b64 exec, -1")
        e(f"{l}:")
    e("s_waitcnt vmcnt(0)")
    e("P_RET:")
    e(f"s_setpc_b64 s[{sRET}:{sRET+1}] ; @to " + " ".join(f"RT{t}_{p}" for t in "BDC" for p in range(16)))
    e("P_FLUSH:")
    if dbg:
        stamp(f"s{sK}", f"s{sTRY}")
    H = vF
    for b in range(4):
        e(f"v_mul_f32 v{vAC1+b}, v{vAC1+b}, v{vDIS1}")
        e(f"v_mul_f32 v{vAC2+b}, v{vAC2+b}, v{vDIS2}")
    e(f"v_cvt_pk_bf16_f32 v{H}, v{vAC1}, v{vAC1+1}")
    e(f"v_cvt_pk_bf16_f32 v{H+1}, v{vAC1+2}, v{vAC1+3}")
    e(f"v_cvt_pk_bf16_f32 v{H+2}, v{vAC2}, v{vAC2+1}")
    e(f"v_cvt_pk_bf16_f32 v{H+3}, v{vAC2+2}, v{vAC2+3}")
    e(f"v_permlane16_swap_b32 v{H}, v{H+2}")
    e(f"v_permlane16_swap_b32 v{H+1}, v{H+3}")
    e(f"s_mov_b64 exec, s[{sVALID}:{sVALID+1}]")
    e(f"s_cmp_eq_u32 s{sK}, 7")
    e("s_cbranch_scc1 P_NOG")
    G = vF + 4
    for r in range(4):
        e(f"v_lshlrev_b32 v{vF+8}, 16, v{H+r}")
        e(f"v_and_b32 v{vF+9}, 0xffff0000, v{H+r}")
        e(f"v_mul_f32 v{vF+8}, v{vF+8}, v{vDIS3}")
        e(f"v_mul_f32 v{vF+9}, v{vF+9}, v{vDIS3}")
        e(f"v_cvt_pk_bf16_f32 v{G+r}, v{vF+8}, v{vF+9}")
        e(f"v_min_u32 v{G+r}, -2, v{G+r}")
    e(f"buffer_store_dwordx4 v[{G}:{G+3}], v{vGOFF}, s[{sGO}:{sGO+3}], 0 offen{SC}")
    e("s_mov_b64 exec, 1")
    e(f"v_mov_b32 v{vF+11}, s{sCLSA}")
    e(f"v_mov_b32 v{vF+12}, 1")
    e(f"ds_add_u32 v{vF+11}, v{vF+12}")
    e(f"s_mov_b64 exec, s[{sVALID}:{sVALID+1}]")
    e(f"s_cmp_gt_u32 s{sK}, 4")
    e("s_cbranch_scc1 P_NOG")
    for r in range(4): e(f"v_mov_b32 v{vX+r}, {PV}")
    e(f"buffer_store_dwordx4 v[{vX}:{vX+3}], v{vGOFF}, s[{sWS}:{sWS+3}], s{sPOI} offen{SC}")
    e(f"s_add_u32 s{sPOI}, s{sPOI}, {hex(WS_GS)}")
    e("P_NOG:")
    e(f"s_mul_i32 s62, s{sK}, {TOKROW}")
    e(f"v_add_u32 v{vF+10}, s62, v{vTOKA}")
    e(f"ds_write_b128 v{vF+10}, v[{H}:{H+3}]")
    e("s_mov_b64 exec, -1")
    if not O.nogate:
        for c in range(3): e(f"s_add_u32 s{sT0+c}, s{sT0+c}, s{sN0+c}")
    if O.ptab: e(f"s_mov_b32 s{sPRI}, s{sPRI2}")
    e(f"s_add_u32 s{sK}, s{sK}, 1")
    e(f"s_cmp_le_u32 s{sK}, {O.nhops}")
    e("s_cbranch_scc1 P_HOP")
    e("P_FINAL:")
    if O.ptab: e("s_setprio 0")
    if O.dump:
        e("s_waitcnt lgkmcnt(0)")
        e(f"s_mov_b64 exec, s[{sVALID}:{sVALID+1}]")
        e(f"v_sub_u32 v{vT0}, v{vGOFF}, v{vL16}")
        e(f"v_lshlrev_b32 v{vT0}, 3, v{vT0}")
        e(f"v_add_u32 v{vT0}, v{vT0}, v{vL16}")
        e(f"s_mov_b32 s62, {hex(WS_DUMP)}")
        for k in range(8):
            e(f"ds_read_b128 v[{vRING}:{vRING+3}], v{vTOKA} offset:{k*TOKROW}")
            e("s_waitcnt lgkmcnt(0)")
            e(f"buffer_store_dwordx4 v[{vRING}:{vRING+3}], v{vT0}, s[{sWS}:{sWS+3}], s62 offen offset:{k*128}")
            e("s_nop 1")
        e("s_mov_b64 exec, -1")
    if O.final:
        import gen_final
        gen_final.P = sys.modules[__name__]
        gen_final.gen_final(g)
    if dbg:
        e("s_memtime s[66:67]"); e("s_waitcnt lgkmcnt(0)")
        stamp("21", "s66")
        stamp("9", "0")
    e("s_branch P_END")
    e("P_SLOWG:")
    e(f"v_lshrrev_b32 v{vT0}, 3, v{vLANE}")
    e("s_lshl_b32 s62, s3, 5")
    e(f"s_add_u32 s62, s62, {L_NODEOF}")
    e(f"v_lshl_add_u32 v{vT1}, v{vT0}, 2, s62")
    e(f"ds_read_b32 v40, v{vT1}")
    e("s_lshl_b32 s62, s3, 3")
    e(f"v_add_u32 v{vT0}, s62, v{vT0}")
    e("s_mul_i32 s62, s2, 100")
    e("s_movk_i32 s63, 100")
    e(f"v_cmp_gt_u32 vcc, s63, v{vT0}")
    for i in range(8): e(f"v_mov_b32 v{vAC1+i}, 0")
    e(f"v_lshlrev_b32 v41, 4, v{vLANE}")
    srd(g, 88, 6, 7, 3200000)
    srd(g, 92, 8, 9, 3200000)
    e("s_waitcnt lgkmcnt(0)")
    e("v_add_u32 v40, s62, v40")
    e("v_cndmask_b32 v40, -1, v40, vcc")
    e("s_mov_b32 s66, 0")
    e("SG_CHUNK:")
    e("buffer_load_dwordx4 v[44:47], v41, s[92:95], s66 offen")
    e("buffer_load_dwordx4 v[48:51], v41, s[88:91], s66 offen")
    e("s_waitcnt vmcnt(0)")
    for u in range(4):
        e("s_mov_b32 s67, 0")
        e(f"SG_R{u}:")
        e("v_readlane_b32 s68, v40, s67")
        e("s_mov_b64 s[62:63], 0xff")
        e("s_lshl_b64 s[62:63], s[62:63], s67")
        e(f"v_cmp_eq_u32 s[64:65], s68, v{44+u}")
        e(f"SG_E{u}:")
        e("s_cmp_eq_u64 s[64:65], 0")
        e(f"s_cbranch_scc1 SG_N{u}")
        e("s_ff1_i32_b64 s69, s[64:65]")
        e("s_bitset0_b64 s[64:65], s69")
        e(f"v_readlane_b32 s68, v{48+u}, s69")
        e("s_lshl_b32 s68, s68, 7")
        e(f"v_add_u32 v42, s68, v{vL16}")
        e("v_mov_b32 v43, 0x7ffffff0")
        e("v_cndmask_b32 v42, v43, v42, s[62:63]")
        e(f"SG_P{u}:")
        e(f"buffer_load_dwordx4 v[52:55], v42, s[{sGI}:{sGI+3}], 0 offen{SC}")
        e("s_waitcnt vmcnt(0)")
        e(f"v_max3_u32 v{vT0}, v52, v53, v54")
        e(f"v_max_u32 v{vT0}, v{vT0}, v55")
        e(f"v_cmp_eq_u32 vcc, -1, v{vT0}")
        e(f"s_cbranch_vccz SG_A{u}")
        e(f"s_add_u32 s{sTRY}, s{sTRY}, 1")
        e(f"s_cmp_gt_u32 s{sTRY}, {TRYMAX}")
        e(f"s_cbranch_scc1 SG_A{u}")
        e("s_sleep 8")
        e(f"s_branch SG_P{u}")
        e(f"SG_A{u}:")
        e(f"v_mfma_f32_16x16x32_bf16 v[{vAC1}:{vAC1+3}], v[{vA1}:{vA1+3}], v[52:55], v[{vAC1}:{vAC1+3}]")
        e(f"v_mfma_f32_16x16x32_bf16 v[{vAC2}:{vAC2+3}], v[{vA2}:{vA2+3}], v[52:55], v[{vAC2}:{vAC2+3}]")
        e(f"s_branch SG_E{u}")
        e(f"SG_N{u}:")
        e("s_add_u32 s67, s67, 8")
        e("s_cmp_lt_u32 s67, 64")
        e(f"s_cbranch_scc1 SG_R{u}")
    e("s_add_u32 s66, s66, 1024")
    e("s_cmp_lt_u32 s66, 3200000")
    e("s_cbranch_scc1 SG_CHUNK")
    e("s_branch P_FLUSH")
    e("P_END:")
    e("s_endpgm")

def build(path):
    g = Gen()
    gen_k1(g)
    gen_p(g)
    L = []
    for line in g.L:
        L.append(line)
    out = []; cur = None
    for line in L:
        out.append(line)
        if line.startswith("GA_") and line.endswith(":") and line[3:-1].isdigit(): cur = "GAX_" + line[3:-1]
        elif line.startswith("GB_") and line.endswith(":") and line[3:-1].isdigit(): cur = "GBX_" + line[3:-1]
        if line.startswith("s_call_b64") and line.endswith("GT"):
            out.append(cur + ":")
    g.L = out
    kernel_desc(g, "bin_kernel", 80, 64)
    kernel_desc(g, "graph_kernel", 128, 100)
    launches = [f"; @launch kernel=bin_kernel grid=({NB+1},1,1) block=(1024,1,1) lds={K1_LDS}",
                f"; @launch kernel=graph_kernel grid=({NB},1,1) block=(1024,1,1) lds={P_LDS}"]
    s = finish(g, launches, "gather_scatter__hybrid_graph_tf_nagphormer__graph.s.ref")
    open(path, "w").write(s)
    return s

if __name__ == "__main__":
    import argparse
    ap = argparse.ArgumentParser()
    ap.add_argument("out")
    for f in ("dump", "nofinal", "dbgstat", "forceslow", "free", "nogate", "onegate", "hit", "nomfma", "nocheck", "revcls"): ap.add_argument("--" + f, action="store_true")
    ap.add_argument("--sleep", type=int, default=2); ap.add_argument("--gsleep", type=int, default=1)
    ap.add_argument("--nhops", type=int, default=7); ap.add_argument("--gq", type=int, default=2)
    ap.add_argument("--ptab", default=None); ap.add_argument("--ld", default="sc1"); ap.add_argument("--only", type=int, default=0); ap.add_argument("--seq", type=int, default=0); ap.add_argument("--ptab1", default=None); ap.add_argument("--thr", default="30,35"); ap.add_argument("--perm", default=None)
    a = ap.parse_args()
    O.dump = a.dump; O.final = not a.nofinal; O.dbgstat = a.dbgstat; O.forceslow = a.forceslow; O.free = a.free
    O.nogate = a.nogate; O.onegate = a.onegate; O.sleep = a.sleep; O.gsleep = a.gsleep; O.nhops = a.nhops; O.gq = a.gq
    O.pat = None; O.hit = a.hit; O.revcls = a.revcls; O.only = a.only; O.seq = a.seq; O.nomfma = a.nomfma; O.nocheck = a.nocheck; O.ld = {"sc1": " sc1", "plain": "", "nt": " nt", "sc0": " sc0", "sc01": " sc0 sc1", "sc1nt": " sc1 nt"}[a.ld]
    O.ptab = [[int(c) for c in r] for r in a.ptab.split(",")] if a.ptab else None
    O.ptab1 = [[int(c)] * 3 for c in a.ptab1] if a.ptab1 else O.ptab
    O.thr = tuple(int(x) for x in a.thr.split(","))
    O.perm = [int(x) for x in a.perm.split(",")] if a.perm else None
    build(a.out)
    print("P_LDS", P_LDS)
```

```python
import sys, os
sys.path.insert(0, os.path.dirname(os.path.abspath(__file__)))
from asmlib import fix_hazards
from gen import Gen, srd, kernel_header, kernel_desc, finish, NB, NPB, CH, WS_REC, WS_TAB, WS_G, WS_GS, WS_WF, WS_DUMP, WS_STAMP, WS_BYTES, SRD3

class Opt:
    dbgstat = False; dump = False; final = True; forceslow = False; free = False
    sleep = 2; gsleep = 1; nhops = 7; gq = 2
    prio = None
    nogate = False
    onegate = False
    pat = None
    ptab1 = None
    hit = False
    revcls = False
    only = 0
    seq = 0
    nomfma = False; nocheck = False; ld = " sc1"
    ptab = None
    thr = (30, 35)
    perm = None
    amp = None
O = Opt()
import struct
def bf16bits(x):
    u = struct.unpack("<I", struct.pack("<f", x))[0]
    return (u + 0x7FFF + ((u >> 16) & 1)) >> 16
def thr_bits(d):
    return bf16bits((d + 1.0) ** -0.5)

PMAX = 80
NODEB = PMAX * 2
GSZ = 8 * NODEB
NGRP = 13
TOKROW = 144
TOKNODE = 8 * TOKROW
L_STREAM = 0
L_CNT = 104 * NODEB + 64
L_INFO = L_CNT + 1024
L_NODEOF = L_INFO + 1024
L_GINFO = L_NODEOF + 512
L_DISF = L_GINFO + 256
L_FLAG = L_DISF + 512
L_WF = L_FLAG + 64
L_TOK = L_WF + 16384
P_LDS = L_TOK + 100 * TOKNODE
RING = 16
TRYMAX = 200000
NCLS = (4, 4, 5)

sWS, sGI, sGO, sX, sDIS, sTAB, sOUT, sWR = 20, 24, 28, 32, 36, 40, 44, 48
sK, sP0, sG1, sG2, sT0, sT1, sT2, sPOI = 52, 53, 54, 55, 56, 57, 58, 59
sM800 = 60
sTMP = 62
sVALID = 70
sI1, sI2 = 72, 73
sCLSA, sTRY = 72, 73
s128, sSLOW, sRET, sRET2 = 74, 75, 76, 78
sGa, sGb, sGc, sTa, sTb, sTc, sGAD, sI16, sS0, sGREL, sEXS, sGSL, sCUR = range(80, 93)
sN0, sPRI, sPRI2 = 94, 97, 98
vTID, vLANE, vL16, vIDXA = 0, 1, 2, 3
vA1, vA2, vAC1, vAC2 = 4, 8, 12, 16
vIP, vT0, vT1 = 20, 21, 22
vX, vY = 24, 28
vRING = 40
vOFF = 104
vDIS1, vDIS2, vDIS3, vTOKA, vGOFF = 120, 121, 122, 123, 124
vF = 40

K1_LDS = 2048 + 12800

def gen_k1(g):
    e = g.e
    kernel_header(g, "bin_kernel")
    e(f"s_cmp_gt_u32 s2, {NB}")
    e("s_cbranch_scc1 K1_END")
    e("s_load_dwordx8 s[4:11], s[0:1], 0")
    e("s_load_dwordx2 s[12:13], s[0:1], 88")
    if O.dbgstat: e("s_memrealtime s[52:53]")
    e(f"s_cmp_eq_u32 s2, {NB}")
    e("s_cbranch_scc1 K1_W")
    e("v_lshlrev_b32 v1, 4, v0")
    e("v_lshlrev_b32 v2, 2, v0")
    e("v_mov_b32 v3, 0")
    e("s_movk_i32 s14, 0x100")
    e("v_cmp_gt_u32 vcc, s14, v0")
    e("s_and_saveexec_b64 s[40:41], vcc")
    e("ds_write_b32 v2, v3")
    e("s_mov_b64 exec, s[40:41]")
    e("s_movk_i32 s14, 800")
    e("v_cmp_gt_u32 vcc, s14, v0")
    e("s_mov_b64 s[42:43], vcc")
    e("s_mul_i32 s14, s2, 12800")
    e("s_mul_i32 s15, s2, 200")
    e("v_lshrrev_b32 v4, 3, v0")
    e("v_lshlrev_b32 v4, 1, v4")
    e("s_waitcnt lgkmcnt(0)")
    srd(g, 16, 6, 7, 3200000)
    srd(g, 20, 8, 9, 3200000)
    srd(g, 24, 4, 5, 3200000)
    srd(g, 28, 10, 11, 50000)
    srd(g, 32, 12, 13, hex(WS_BYTES))
    e("s_mov_b64 exec, s[42:43]")
    e("s_cbranch_execz K1_NOLD")
    e("buffer_load_dwordx4 v[8:11], v1, s[20:23], s14 offen")
    e("buffer_load_dwordx4 v[12:15], v1, s[16:19], s14 offen")
    e("buffer_load_dwordx4 v[16:19], v1, s[24:27], s14 offen")
    e("buffer_load_ushort v20, v4, s[28:31], s15 offen")
    for r_ in range(4): e(f"v_mov_b32 v{24+r_}, {0 if O.free else -1}")
    e(f"s_add_u32 s44, s14, {hex(WS_G + WS_GS)}")
    e("buffer_store_dwordx4 v[24:27], v1, s[32:35], s44 offen")
    e("K1_NOLD:")
    e("s_mov_b64 exec, -1")
    e("s_waitcnt lgkmcnt(0)")
    e("s_barrier")
    e("s_mov_b64 exec, s[42:43]")
    e("s_cbranch_execz K1_B1")
    e("s_waitcnt vmcnt(4)")
    e("s_movk_i32 s45, 5243")
    e("s_movk_i32 s46, -100")
    e("v_mov_b32 v21, 1")
    for u in range(4):
        d = 8 + u
        e(f"v_mul_u32_u24 v{28+u}, s45, v{d}")
        e(f"v_lshrrev_b32 v{28+u}, 19, v{28+u}")
        e(f"v_mad_i32_i24 v{d}, v{28+u}, s46, v{d}")
        e(f"v_lshrrev_b32 v22, 1, v{28+u}")
        e(f"v_and_b32 v22, 0x7c, v22")
        e(f"v_and_b32 v{28+u}, 7, v{28+u}")
        e(f"v_lshl_or_b32 v{28+u}, v{28+u}, 7, v22")
        e(f"ds_add_rtn_u32 v{32+u}, v{28+u}, v21")
    e("s_waitcnt vmcnt(3)")
    for u in range(4):
        e(f"v_lshlrev_b32 v{52+u}, 1, v{12+u}")
        e(f"buffer_load_ushort v{56+u}, v{52+u}, s[28:31], 0 offen")
    for u in range(4):
        e(f"v_lshl_or_b32 v{8+u}, v{8+u}, 19, v{12+u}")
    e("s_waitcnt vmcnt(5)")
    e("v_lshlrev_b32 v20, 16, v20")
    for r in range(4):
        e(f"v_lshlrev_b32 v22, 16, v{16+r}")
        e(f"v_and_b32 v23, 0xffff0000, v{16+r}")
        e("v_mul_f32 v22, v22, v20")
        e("v_mul_f32 v23, v23, v20")
        e(f"v_cvt_pk_bf16_f32 v{16+r}, v22, v23")
    e(f"s_add_u32 s44, s14, {hex(WS_G)}")
    e("buffer_store_dwordx4 v[16:19], v1, s[32:35], s44 offen")
    e("K1_B1:")
    e("s_mov_b64 exec, -1")
    e("s_waitcnt lgkmcnt(0)")
    e("s_barrier")
    e("v_cmp_gt_u32 vcc, 64, v0")
    e("s_and_saveexec_b64 s[40:41], vcc")
    e("s_cbranch_execz K1_B2")
    e("ds_read_b128 v[40:43], v1")
    e("s_waitcnt lgkmcnt(0)")
    e("v_add_u32 v44, v40, v41")
    e("v_add_u32 v45, v44, v42")
    e("v_add_u32 v46, v45, v43")
    e("v_mov_b32 v47, v46")
    for sh in (1, 2, 4, 8):
        e(f"v_add_u32_dpp v47, v47, v47 row_shr:{sh} row_mask:0xf bank_mask:0xf bound_ctrl:0")
    e("v_add_u32_dpp v47, v47, v47 row_bcast:15 row_mask:0xa bank_mask:0xf")
    e("v_add_u32_dpp v47, v47, v47 row_bcast:31 row_mask:0xc bank_mask:0xf")
    e("v_sub_u32 v48, v47, v46")
    e("v_add_u32 v49, v48, v40")
    e("v_add_u32 v50, v48, v44")
    e("v_add_u32 v51, v48, v45")
    e("ds_write_b128 v1, v[48:51] offset:1024")
    e("s_lshl_b32 s46, s2, 10")
    e(f"s_add_u32 s46, s46, {hex(WS_TAB)}")
    for u in range(4):
        e(f"v_lshl_or_b32 v{40+u}, v{40+u}, 16, v{48+u}")
    e("buffer_store_dwordx4 v[40:43], v1, s[32:35], s46 offen")
    e("K1_B2:")
    e("s_mov_b64 exec, -1")
    e("s_waitcnt lgkmcnt(0)")
    e("s_barrier")
    e("s_mov_b64 exec, s[42:43]")
    e("s_cbranch_execz K1_B3")
    for u in range(4):
        e(f"ds_read_b32 v{36+u}, v{28+u} offset:1024")
    e(f"s_movk_i32 s47, {hex(thr_bits(O.thr[0]))}")
    e(f"s_movk_i32 s48, {hex(thr_bits(O.thr[1]))}")
    e("v_bfrev_b32 v60, 2")
    e("v_bfrev_b32 v61, 1")
    e("s_waitcnt vmcnt(1)")
    for u in range(4):
        e(f"v_cmp_gt_u32 vcc, s47, v{56+u}")
        e(f"v_cndmask_b32 v22, v61, v60, vcc" if O.revcls else f"v_cndmask_b32 v22, 0, v60, vcc")
        e(f"v_cmp_gt_u32 vcc, s48, v{56+u}")
        e(f"v_cndmask_b32 v22, v22, 0, vcc" if O.revcls else f"v_cndmask_b32 v22, v22, v61, vcc")
        e(f"v_or_b32 v{8+u}, v{8+u}, v22")
    e("s_waitcnt lgkmcnt(0)")
    for u in range(4):
        e(f"v_add_lshl_u32 v{36+u}, v{36+u}, v{32+u}, 2")
        e(f"ds_write_b32 v{36+u}, v{8+u} offset:2048")
    e("K1_B3:")
    e("s_mov_b64 exec, -1")
    e("s_waitcnt lgkmcnt(0)")
    e("s_barrier")
    e("s_mov_b64 exec, s[42:43]")
    e("s_cbranch_execz K1_END")
    e("ds_read_b128 v[40:43], v1 offset:2048")
    e("s_waitcnt lgkmcnt(0)")
    e("buffer_store_dwordx4 v[40:43], v1, s[32:35], s14 offen")
    if O.dbgstat:
        e("s_waitcnt vmcnt(0)")
        e("s_memrealtime s[54:55]")
        e("s_lshl_b32 s56, s2, 4"); e(f"s_add_u32 s56, s56, {hex(WS_STAMP + 0x100000)}")
        e("v_cmp_eq_u32 vcc, 0, v0"); e("s_and_b64 exec, exec, vcc")
        e("s_waitcnt lgkmcnt(0)")
        e("v_mov_b32 v40, s52"); e("v_mov_b32 v41, s54"); e("v_mov_b32 v42, s56")
        e("buffer_store_dwordx2 v[40:41], v42, s[32:35], 0 offen")
    e("s_endpgm")
    e("K1_W:")
    e("s_load_dwordx8 s[16:23], s[0:1], 32")
    e("v_lshrrev_b32 v1, 6, v0")
    e("v_and_b32 v2, 63, v0")
    e("v_readfirstlane_b32 s3, v1")
    e("v_lshrrev_b32 v3, 4, v2")
    e("v_and_b32 v4, 15, v2")
    e("s_lshr_b32 s24, s3, 2")
    e("s_and_b32 s25, s3, 3")
    e("v_lshrrev_b32 v5, 2, v4")
    e("v_and_b32 v6, 3, v4")
    e("v_lshl_add_u32 v7, v5, 4, v6")
    e("s_lshl_b32 s26, s25, 2")
    e("s_lshl_b32 s27, s24, 2")
    e("v_add_u32 v8, s26, v7")
    e("v_add_u32 v9, s27, v7")
    e("v_lshlrev_b32 v10, 7, v8")
    e("v_lshl_add_u32 v10, v3, 4, v10")
    e("v_lshlrev_b32 v11, 7, v9")
    e("v_lshl_add_u32 v11, v3, 4, v11")
    e("s_waitcnt lgkmcnt(0)")
    srd(g, 28, 16, 17, 8192)
    srd(g, 32, 18, 19, 8192)
    srd(g, 36, 20, 21, 8192)
    srd(g, 40, 22, 23, 8192)
    srd(g, 44, 12, 13, 16384, add=hex(WS_WF))
    e("buffer_load_dwordx4 v[16:19], v10, s[28:31], 0 offen")
    e("buffer_load_dwordx4 v[20:23], v10, s[28:31], 0 offen offset:64")
    e("buffer_load_dwordx4 v[24:27], v11, s[32:35], 0 offen")
    e("buffer_load_dwordx4 v[28:31], v11, s[32:35], 0 offen offset:64")
    e("buffer_load_dwordx4 v[32:35], v10, s[36:39], 0 offen")
    e("buffer_load_dwordx4 v[36:39], v10, s[36:39], 0 offen offset:64")
    e("v_lshlrev_b32 v12, 10, v3")
    e("v_lshl_add_u32 v12, v9, 1, v12")
    e("s_movk_i32 s48, 0x1000")
    for sp in range(2):
        for j in range(8):
            off = (32 * sp + j) * 128
            so = "0"
            if off >= 4096:
                so = "s48"; off -= 4096
            e(f"buffer_load_ushort v{60 + sp*8 + j}, v12, s[40:43], {so} offen offset:{off}")
    for i in range(8): e(f"v_mov_b32 v{48+i}, 0")
    e("s_waitcnt vmcnt(0)")
    for r in range(8):
        e(f"v_lshl_or_b32 v{40+r}, v{61+2*r}, 16, v{60+2*r}")
    e("v_mfma_f32_16x16x32_bf16 v[48:51], v[16:19], v[24:27], v[48:51]")
    e("v_mfma_f32_16x16x32_bf16 v[52:55], v[32:35], v[40:43], v[52:55]")
    e("v_mfma_f32_16x16x32_bf16 v[48:51], v[20:23], v[28:31], v[48:51]")
    e("v_mfma_f32_16x16x32_bf16 v[52:55], v[36:39], v[44:47], v[52:55]")
    e("s_mov_b32 s49, 0x3e38aa3b")
    for b in range(4): e(f"v_mul_f32 v{48+b}, s49, v{48+b}")
    e("v_cvt_pk_bf16_f32 v56, v48, v49"); e("v_cvt_pk_bf16_f32 v57, v50, v51")
    e("v_cvt_pk_bf16_f32 v58, v52, v53"); e("v_cvt_pk_bf16_f32 v59, v54, v55")
    e("s_lshl_b32 s50, s24, 11")
    e("s_lshr_b32 s51, s25, 1"); e("s_lshl_b32 s51, s51, 10"); e("s_add_u32 s50, s50, s51")
    e("s_and_b32 s51, s25, 1"); e("s_lshl_b32 s51, s51, 3"); e("s_add_u32 s50, s50, s51")
    e("v_lshlrev_b32 v13, 4, v2")
    e("buffer_store_dwordx2 v[56:57], v13, s[44:47], s50 offen")
    e("s_add_u32 s50, s50, 8192")
    e("buffer_store_dwordx2 v[58:59], v13, s[44:47], s50 offen")
    e("K1_END:")
    e("s_endpgm")

def tree(g, sreg, vals, label):
    if len(vals) == 1:
        g.e(f"s_branch {label(vals[0])}"); return
    mid = len(vals) // 2
    l = g.lab("TR")
    g.e(f"s_cmp_ge_u32 s{sreg}, {vals[mid]}")
    g.e(f"s_cbranch_scc1 {l}")
    tree(g, sreg, vals[:mid], label)
    g.e(f"{l}:")
    tree(g, sreg, vals[mid:], label)

def gen_p(g):
    e = g.e
    SC = " sc1"
    dbg = O.dbgstat
    GQ = O.gq
    kernel_header(g, "graph_kernel")
    e(f"s_cmp_ge_u32 s2, {NB}")
    e("s_cbranch_scc1 P_END")
    e("s_load_dwordx8 s[4:11], s[0:1], 0")
    e("s_load_dwordx2 s[12:13], s[0:1], 88")
    e("s_load_dwordx2 s[14:15], s[0:1], 72")
    e("s_load_dwordx2 s[16:17], s[0:1], 64")
    if dbg: e("s_memrealtime s[90:91]")
    e(f"v_and_b32 v{vLANE}, 63, v0")
    e("v_lshrrev_b32 v40, 6, v0")
    e("v_lshlrev_b32 v45, 4, v0")
    e("v_readfirstlane_b32 s3, v40")
    e(f"s_movk_i32 s{s128}, 128")
    e("s_lshr_b32 s62, s2, 1"); e("s_and_b32 s62, s62, 0x7c"); e("s_and_b32 s63, s2, 7"); e("s_lshl_b32 s63, s63, 7"); e("s_or_b32 s62, s62, s63")
    e("v_and_b32 v52, 0xfffffffc, v0")
    e("v_lshlrev_b32 v52, 8, v52")
    e("s_waitcnt lgkmcnt(0)")
    srd(g, sTAB, 12, 13, NB * 1024, add=hex(WS_TAB))
    e(f"buffer_load_dword v53, v52, s[{sTAB}:{sTAB+3}], s62 offen")
    srd(g, sWS, 12, 13, hex(WS_BYTES))
    srd(g, sX, 4, 5, 3200000)
    srd(g, sDIS, 10, 11, 50000)
    e("s_mul_i32 s63, s2, 12800")
    e(f"buffer_load_dwordx4 v[56:59], v45, s[{sX}:{sX+3}], s63 offen")
    e("v_lshlrev_b32 v54, 1, v0")
    e("s_mul_i32 s64, s2, 200")
    e(f"buffer_load_ushort v55, v54, s[{sDIS}:{sDIS+3}], s64 offen")
    e(f"s_mov_b32 s65, {hex(WS_WF)}")
    e(f"buffer_load_dwordx4 v[60:63], v45, s[{sWS}:{sWS+3}], s65 offen")
    srd(g, sOUT, 14, 15, 3200000)
    srd(g, sWR, 16, 17, 128)
    for r in range(4): e(f"v_mov_b32 v{48+r}, -1")
    for r in range(4): e(f"v_mov_b32 v{124+r}, 0")
    e("ds_write_b128 v45, v[48:51]")
    nextra = (L_CNT - 16384) // 16
    e(f"v_cmp_gt_u32 vcc, {nextra}, v0")
    e("s_and_saveexec_b64 s[64:65], vcc")
    e("ds_write_b128 v45, v[48:51] offset:16384")
    e("s_mov_b64 exec, s[64:65]")
    nz = (L_WF - L_CNT) // 16
    e(f"s_movk_i32 s62, {nz}")
    e("v_cmp_gt_u32 vcc, s62, v0")
    e("s_and_saveexec_b64 s[64:65], vcc")
    e(f"ds_write_b128 v45, v[124:127] offset:{L_CNT}")
    e("s_mov_b64 exec, s[64:65]")
    e("s_movk_i32 s62, 800")
    e("v_cmp_gt_u32 vcc, s62, v0")
    e(f"s_mov_b64 s[{sM800}:{sM800+1}], vcc")
    e("v_lshrrev_b32 v64, 2, v0")
    e("v_and_b32 v65, 3, v0")
    e("s_movk_i32 s66, 12800")
    e("v_mul_u32_u24 v66, s66, v64")
    e("v_lshl_add_u32 v66, v65, 4, v66")
    e("v_lshlrev_b32 v69, 2, v65")
    e("s_waitcnt vmcnt(3)")
    if dbg: e("s_memrealtime s[78:79]")
    e("v_and_b32 v67, 0xffff, v53")
    e("v_lshrrev_b32 v68, 16, v53")
    e("v_lshl_add_u32 v66, v67, 2, v66")
    e("v_sub_u32 v69, v68, v69")
    R = 72
    OLD = 84
    e(f"buffer_load_dwordx4 v[{R}:{R+3}], v66, s[{sWS}:{sWS+3}], 0 offen")
    e("v_cmp_lt_i32 vcc, 16, v69")
    e(f"s_mov_b32 s{sI1}, 0"); e(f"s_mov_b32 s{sI2}, 0")
    e("s_cbranch_vccz P_NOI1")
    e(f"s_mov_b32 s{sI1}, 1")
    e(f"buffer_load_dwordx4 v[{R+4}:{R+7}], v66, s[{sWS}:{sWS+3}], 0 offen offset:64")
    e("v_cmp_lt_i32 vcc, 32, v69")
    e("s_cbranch_vccz P_NOI1")
    e(f"s_mov_b32 s{sI2}, 1")
    e(f"buffer_load_dwordx4 v[{R+8}:{R+11}], v66, s[{sWS}:{sWS+3}], 0 offen offset:128")
    e("P_NOI1:")
    e("v_cmp_lt_u32 vcc, 48, v68")
    e("s_waitcnt lgkmcnt(0)")
    e("s_barrier")
    e("s_and_saveexec_b64 s[64:65], vcc")
    e("v_mov_b32 v70, 1")
    e(f"v_mov_b32 v71, {L_FLAG}")
    e("ds_write_b32 v71, v70")
    e("s_mov_b64 exec, s[64:65]")
    if dbg: e("s_memrealtime s[80:81]")
    e("v_mov_b32 v70, 2"); e("v_mov_b32 v71, 0")
    e("s_waitcnt vmcnt(0)")
    if dbg: e("s_memrealtime s[82:83]")
    def atom(i):
        for u in range(4):
            r = R + 4 * i + u; o = OLD + 2 * (4 * i + u)
            e(f"v_cmpx_lt_i32 vcc, {16*i+u}, v69")
            e(f"v_lshrrev_b32 v108, 26, v{r}")
            e(f"v_bfe_u32 v109, v{r}, 16, 10")
            e(f"v_lshlrev_b64 v[110:111], v108, v[70:71]")
            e(f"ds_add_rtn_u64 v[{o}:{o+1}], v109, v[110:111] offset:{L_CNT}")
    atom(0)
    e(f"s_cmp_eq_u32 s{sI1}, 0"); e("s_cbranch_scc1 P_AT_D")
    atom(1)
    e(f"s_cmp_eq_u32 s{sI2}, 0"); e("s_cbranch_scc1 P_AT_D")
    atom(2)
    e("P_AT_D:")
    e(f"s_mov_b64 exec, s[{sM800}:{sM800+1}]")
    e("v_lshrrev_b32 v112, 3, v0")
    e(f"s_movk_i32 s66, {TOKNODE}")
    e("v_mul_u32_u24 v112, s66, v112")
    e("v_and_b32 v113, 7, v0")
    e("v_lshl_add_u32 v112, v113, 4, v112")
    e(f"ds_write_b128 v112, v[56:59] offset:{L_TOK}")
    e("s_mov_b64 exec, -1")
    e(f"ds_write_b128 v45, v[60:63] offset:{L_WF}")
    e("s_movk_i32 s66, 100")
    e("v_cmp_gt_u32 vcc, s66, v0")
    e("s_and_saveexec_b64 s[64:65], vcc")
    e("v_lshlrev_b32 v55, 16, v55")
    e("v_lshlrev_b32 v112, 2, v0")
    e(f"ds_write_b32 v112, v55 offset:{L_DISF}")
    e("s_mov_b64 exec, s[64:65]")
    e("v_lshrrev_b32 v112, 3, v0")
    e("v_and_b32 v113, 7, v0")
    e("v_mul_u32_u24 v116, 13, v113")
    e("v_lshlrev_b32 v117, 3, v116")
    e("v_lshlrev_b32 v118, 3, v112")
    e("v_sub_u32 v119, 127, v116")
    e("v_sub_u32 v120, 127, v112")
    e("v_lshlrev_b32 v114, 2, v112")
    e("s_mov_b32 s67, 0x10001")
    e(f"v_add_u32 v117, {L_CNT}, v117")
    e("s_waitcnt lgkmcnt(0)")
    e("s_barrier")
    if dbg: e("s_memrealtime s[84:85]")
    e(f"ds_read_b64 v[56:57], v118 offset:{L_CNT}")
    CB = 4
    for u in range(6):
        e(f"ds_read2_b64 v[{CB+4*u}:{CB+4*u+3}], v117 offset0:{2*u} offset1:{2*u+1}")
    e(f"ds_read_b64 v[{CB+24}:{CB+25}], v117 offset:96")
    e(f"ds_read_b32 v115, v114 offset:{L_DISF}")
    e("v_mov_b32 v121, 0")
    e("s_waitcnt lgkmcnt(8)")
    e("v_dot2_u32_u16 v58, v56, s67, v57")
    e("v_lshl_add_u32 v120, v58, 7, v120")
    e("s_waitcnt lgkmcnt(1)")
    for u in range(13):
        lo = CB + 2 * u
        e(f"v_dot2_u32_u16 v{lo}, v{lo}, s67, v{lo+1}")
        e(f"v_lshl_add_u32 v{lo}, v{lo}, 7, v119")
        e(f"v_add_u32 v{lo+1}, {u}, v120")
    for u0 in range(0, 13, 4):
        us = list(range(u0, min(u0 + 4, 13)))
        for i, u in enumerate(us):
            lo = CB + 2 * u
            e(f"v_cmp_gt_u32 s[{sTMP+2*i}:{sTMP+2*i+1}], v{lo}, v{lo+1}")
        for i, u in enumerate(us):
            e(f"v_addc_co_u32 v121, s[{sTMP+2*i}:{sTMP+2*i+1}], 0, v121, s[{sTMP+2*i}:{sTMP+2*i+1}]")
    e("v_add_u32_dpp v121, v121, v121 quad_perm:[1,0,3,2] row_mask:0xf bank_mask:0xf")
    e("v_add_u32_dpp v121, v121, v121 quad_perm:[2,3,0,1] row_mask:0xf bank_mask:0xf")
    e("v_add_u32_dpp v121, v121, v121 row_half_mirror row_mask:0xf bank_mask:0xf")
    e("s_movk_i32 s66, 100")
    e("v_cmp_gt_u32 s[62:63], s66, v112")
    e("v_cmp_eq_u32 vcc, 0, v113")
    e("s_waitcnt lgkmcnt(0)")
    e("s_and_b64 exec, vcc, s[62:63]")
    e("s_cbranch_execz P_RK_D")
    e("v_mov_b32 v60, v112")
    e(f"s_mov_b32 s66, {hex(thr_bits(O.thr[0]) << 16)}")
    e(f"s_mov_b32 s67, {hex(thr_bits(O.thr[1]) << 16)}")
    e(f"v_mov_b32 v114, {0 if O.revcls else 2}")
    e("v_cmp_gt_u32 vcc, s66, v115")
    e("v_cndmask_b32 v114, v114, 1, vcc")
    e("v_cmp_gt_u32 vcc, s67, v115")
    e(f"v_cndmask_b32 v114, v114, {2 if O.revcls else 0}, vcc")
    e(f"s_movk_i32 s66, {NODEB}")
    e(f"v_mov_b32 v62, {L_STREAM + NODEB - 2}")
    e("v_mad_u32_u24 v62, v121, s66, v62")
    e("v_sub_u32 v63, v62, v57")
    e("v_lshrrev_b32 v64, 16, v56")
    e("v_sub_u32 v65, v63, v64")
    e("v_and_b32 v65, 0xffff, v65")
    e("v_lshl_or_b32 v60+0, v60, 0, v60" if False else "v_lshl_or_b32 v66, v63, 16, v65")
    e("v_mov_b32 v67, v62")
    e(f"ds_write_b64 v118, v[66:67] offset:{L_INFO}")
    e("v_lshlrev_b32 v63, 2, v121")
    e(f"ds_write_b32 v63, v60 offset:{L_NODEOF}")
    e("v_lshrrev_b32 v63, 3, v121")
    e("v_lshlrev_b32 v63, 4, v63")
    e("v_add_u32 v64, v64, v57")
    e(f"ds_max_u32 v63, v58 offset:{L_GINFO}")
    e(f"ds_max_u32 v63, v64 offset:{L_GINFO+4}")
    e(f"ds_max_u32 v63, v57 offset:{L_GINFO+8}")
    e(f"ds_max_u32 v63, v114 offset:{L_GINFO+12}")
    e(f"s_movk_i32 s66, {2*PMAX}")
    e("v_cmp_lt_u32 vcc, s66, v58")
    e("s_and_b64 exec, exec, vcc")
    e("v_mov_b32 v63, 1")
    e(f"v_mov_b32 v64, {L_FLAG}")
    e("ds_write_b32 v64, v63")
    e("P_RK_D:")
    e("s_mov_b64 exec, -1")
    e(f"v_mov_b32 v60, {L_FLAG}")
    e("s_waitcnt lgkmcnt(0)")
    e("s_barrier")
    if dbg: e("s_memrealtime s[86:87]")
    e("ds_read_b32 v61, v60")
    def place_rd(i):
        for u in range(4):
            r = R + 4 * i + u
            e(f"v_bfe_u32 v109, v{r}, 16, 10")
            e(f"ds_read_b64 v[{112+2*u}:{113+2*u}], v109 offset:{L_INFO}")
    def place(i):
        for u in range(4):
            r = R + 4 * i + u; o = OLD + 2 * (4 * i + u)
            e(f"v_lshrrev_b32 v108, 26, v{r}")
            e(f"v_lshrrev_b64 v[{o}:{o+1}], v108, v[{o}:{o+1}]")
            e(f"v_lshrrev_b64 v[{112+2*u}:{113+2*u}], v108, v[{112+2*u}:{113+2*u}]")
            e(f"v_cmpx_lt_i32 vcc, {16*i+u}, v69")
            e(f"v_sub_u32_sdwa v109, v{112+2*u}, v{o} dst_sel:DWORD dst_unused:UNUSED_PAD src0_sel:WORD_0 src1_sel:WORD_0")
            e(f"ds_write_b16 v109, v{r}")
    place_rd(0)
    e("s_waitcnt lgkmcnt(4)")
    e(f"v_readfirstlane_b32 s{sSLOW}, v61")
    if O.forceslow:
        e("s_cmp_lt_u32 s2, 3"); e("s_cbranch_scc0 P_NOFS"); e(f"s_mov_b32 s{sSLOW}, 1"); e("P_NOFS:")
    e(f"s_cmp_lg_u32 s{sSLOW}, 0"); e("s_cbranch_scc1 P_PL_D")
    e("s_waitcnt lgkmcnt(0)")
    place(0)
    e(f"s_cmp_eq_u32 s{sI1}, 0"); e("s_cbranch_scc1 P_PL_D")
    place_rd(1); e("s_waitcnt lgkmcnt(0)"); place(1)
    e(f"s_cmp_eq_u32 s{sI2}, 0"); e("s_cbranch_scc1 P_PL_D")
    place_rd(2); e("s_waitcnt lgkmcnt(0)"); place(2)
    e("P_PL_D:")
    e("s_mov_b64 exec, -1")
    e("s_waitcnt lgkmcnt(0)")
    e("s_barrier")
    if dbg: e("s_memrealtime s[88:89]")
    e(f"s_cmp_ge_u32 s3, {NGRP}")
    e("s_cbranch_scc1 P_END")
    if O.perm:
        pk = 0
        for w, gidx in enumerate(O.perm): pk |= gidx << (4 * w)
        e(f"s_mov_b32 s62, {hex(pk & 0xffffffff)}"); e(f"s_mov_b32 s63, {hex(pk >> 32)}")
        e("s_lshl_b32 s64, s3, 2"); e("s_lshr_b64 s[62:63], s[62:63], s64"); e("s_and_b32 s3, s62, 15")
    e("s_lshl_b32 s62, s3, 4")
    e(f"s_add_u32 s63, s62, {L_GINFO}")
    e("v_mov_b32 v62, s63")
    e("ds_read_b128 v[64:67], v62")
    e(f"v_lshlrev_b32 v62, 4, v{vLANE}")
    e(f"ds_read_b32 v63, v62 offset:{L_GINFO+12}")
    e(f"v_lshrrev_b32 v68, 4, v{vLANE}")
    e(f"v_bfe_u32 v69, v{vLANE}, 3, 1")
    e(f"v_and_b32 v70, 7, v{vLANE}")
    e(f"v_lshlrev_b32 v{vL16}, 4, v70")
    e("v_lshrrev_b32 v71, 1, v68")
    e("v_lshl_add_u32 v72, v71, 1, v69")
    e("v_and_b32 v73, 1, v68")
    e("v_lshl_add_u32 v73, v73, 2, v72")
    e("s_lshl_b32 s62, s3, 5")
    e(f"s_add_u32 s63, s62, {L_NODEOF}")
    e("v_lshl_add_u32 v74, v72, 2, s63")
    e("ds_read_b32 v75, v74")
    e("ds_read_b32 v76, v74 offset:16")
    e("v_lshl_add_u32 v74, v73, 2, s63")
    e("ds_read_b32 v77, v74")
    e("s_lshl_b32 s64, s3, 3")
    e("v_add_u32 v73, s64, v73")
    e("s_movk_i32 s66, 100")
    e("v_cmp_gt_u32 vcc, s66, v73")
    e(f"s_mov_b64 s[{sVALID}:{sVALID+1}], vcc")
    e(f"v_lshrrev_b32 v78, 3, v{vLANE}")
    e("v_add_u32 v78, s64, v78")
    e(f"s_movk_i32 s65, {NODEB}")
    e(f"v_mul_u32_u24 v{vIDXA}, s65, v78")
    if L_STREAM: e(f"v_add_u32 v{vIDXA}, {L_STREAM}, v{vIDXA}")
    e("s_waitcnt lgkmcnt(0)")
    for (n, d) in ((75, vDIS1), (76, vDIS2), (77, vDIS3)):
        e(f"v_lshlrev_b32 v74, 2, v{n}")
        e(f"ds_read_b32 v{d}, v74 offset:{L_DISF}")
    e("v_readfirstlane_b32 s65, v64")
    e("v_readfirstlane_b32 s66, v65")
    e("v_readfirstlane_b32 s67, v66")
    e("v_readfirstlane_b32 s68, v67")
    for c in range(3):
        e(f"v_cmp_eq_u32 vcc, {2-c}, v63")
        e(f"s_and_b32 s62, vcc_lo, 0x1fff")
        e(f"s_bcnt1_i32_b32 s{sN0+c}, s62")
    e(f"s_sub_u32 s68, 2, s68")
    e(f"s_lshl_b32 s69, s68, 2")
    e(f"s_add_u32 s{sCLSA}, s69, {L_FLAG + 16}")
    if O.ptab:
        for tab, dst in ((O.ptab, sPRI2), (O.ptab1, sPRI)):
            pk = [sum(tab[c][g_] << (2 * g_) for g_ in range(3)) for c in range(3)]
            e(f"s_mov_b32 s62, {pk[0] | pk[1] << 8 | pk[2] << 16}")
            e(f"s_lshl_b32 s69, s68, 3")
            e(f"s_lshr_b32 s{dst}, s62, s69")
            e(f"s_and_b32 s{dst}, s{dst}, 0xff")
    e(f"s_movk_i32 s64, {TOKNODE}")
    e(f"v_mul_u32_u24 v{vTOKA}, s64, v77")
    e(f"v_add_u32 v{vTOKA}, v{vTOKA}, v{vL16}")
    e(f"v_add_u32 v{vTOKA}, {L_TOK}, v{vTOKA}")
    e("s_mul_i32 s64, s2, 100")
    e("v_add_u32 v77, s64, v77")
    e(f"v_lshl_add_u32 v{vGOFF}, v77, 7, v{vL16}")
    for src, dst in ((65, sP0), (66, sG1), (67, sG2)):
        e(f"s_lshr_b32 s{src}, s{src}, 1")
        if dst == sP0: e(f"s_max_u32 s{src}, s{src}, 2")
        e(f"s_min_u32 s{src}, s{src}, {PMAX}")
        e(f"s_sub_u32 s{dst}, {PMAX}, s{src}")
        e(f"s_andn2_b32 s{dst}, s{dst}, {GQ-1}")
    e(f"s_max_u32 s{sG1}, s{sG1}, s{sP0}")
    e(f"s_max_u32 s{sG2}, s{sG2}, s{sG1}")
    if O.onegate:
        e(f"s_mov_b32 s{sG1}, s{sP0}"); e(f"s_mov_b32 s{sG2}, s{sP0}")
    e(f"v_and_b32 v64, 7, v{vLANE}")
    e("v_lshrrev_b32 v65, 1, v64")
    e("v_and_b32 v66, 1, v64")
    e("v_lshlrev_b32 v66, 4, v66")
    e("v_mov_b32 v67, 0x3f80")
    e("v_lshlrev_b32 v67, v66, v67")
    e(f"v_lshrrev_b32 v68, 4, v{vLANE}")
    e(f"v_bfe_u32 v69, v{vLANE}, 3, 1")
    e("v_add_u32 v70, 2, v69")
    e("v_cmp_eq_u32 s[62:63], v68, v69")
    e("v_cmp_eq_u32 s[64:65], v68, v70")
    for r in range(4):
        e(f"v_cmp_eq_u32 vcc, {r}, v65")
        e(f"s_and_b64 s[68:69], vcc, s[62:63]")
        e(f"v_cndmask_b32 v{vA1+r}, 0, v67, s[68:69]")
        e(f"s_and_b64 s[68:69], vcc, s[64:65]")
        e(f"v_cndmask_b32 v{vA2+r}, 0, v67, s[68:69]")
    for i in range(RING): e(f"v_mov_b32 v{vOFF+i}, 0x7ffffff0")
    e(f"s_mov_b32 s{sK}, 1")
    e(f"s_mov_b32 s{sT0}, 0"); e(f"s_mov_b32 s{sT1}, 0"); e(f"s_mov_b32 s{sT2}, 0")
    e(f"s_mov_b32 s{sGI+2}, 3200000"); e(f"s_mov_b32 s{sGI+3}, {SRD3}")
    e(f"s_mov_b32 s{sGO+2}, 3200000"); e(f"s_mov_b32 s{sGO+3}, {SRD3}")
    e(f"s_add_u32 s{sGO}, s12, {hex(WS_G)}"); e(f"s_addc_u32 s{sGO+1}, s13, 0")
    PV = 0 if O.free else -1
    e(f"s_mov_b32 s{sPOI}, {hex(WS_G + 2 * WS_GS)}")
    for r in range(4): e(f"v_mov_b32 v{vX+r}, {PV}")
    e(f"s_mov_b64 exec, s[{sVALID}:{sVALID+1}]")
    e(f"buffer_store_dwordx4 v[{vX}:{vX+3}], v{vGOFF}, s[{sWS}:{sWS+3}], s{sPOI} offen{SC}")
    e("s_mov_b64 exec, -1")
    e(f"s_add_u32 s{sPOI}, s{sPOI}, {hex(WS_GS)}")
    e("s_waitcnt lgkmcnt(0)")
    def stamp(idx, val, pre=None):
        if pre is None: e("s_memrealtime s[62:63]")
        else: e(f"s_mov_b32 s62, s{pre}")
        e("s_lshl_b32 s64, s2, 4"); e("s_add_u32 s64, s64, s3"); e("s_lshl_b32 s64, s64, 5")
        e(f"s_add_u32 s64, s64, {idx}"); e("s_lshl_b32 s64, s64, 3")
        e(f"s_add_u32 s64, s64, {hex(WS_STAMP)}")
        e("s_waitcnt lgkmcnt(0)")
        e("s_mov_b64 exec, 1")
        e(f"v_mov_b32 v32, s62"); e(f"v_mov_b32 v33, {val}"); e(f"v_mov_b32 v34, s64")
        e(f"buffer_store_dwordx2 v[32:33], v34, s[{sWS}:{sWS+3}], 0 offen")
        e("s_mov_b64 exec, -1")
    if dbg:
        e("s_memtime s[66:67]"); e("s_waitcnt lgkmcnt(0)")
        stamp("20", "s66")
        stamp("0", f"s{sP0}")
        stamp("8", f"s{sG1}", pre=90)
        for i, r in enumerate((78, 80, 82, 84, 86, 88)): stamp(str(10 + i), f"s{sG2}", pre=r)
    if O.seq:
        e("s_lshl_b32 s62, s2, 4"); e("s_add_u32 s62, s62, s3"); e("s_mul_i32 s62, s62, 53248")
        e(f"v_lshlrev_b32 v33, 4, v{vLANE}")
        if O.seq == 3:
            e(f"v_lshrrev_b32 v33, 2, v{vLANE}"); e("v_lshlrev_b32 v33, 7, v33"); e(f"v_and_b32 v34, 3, v{vLANE}"); e("v_lshl_add_u32 v33, v34, 4, v33")
        if O.seq == 4:
            e(f"v_and_b32 v33, 15, v{vLANE}"); e("v_lshlrev_b32 v33, 4, v33")
        if O.seq == 5:
            e(f"v_and_b32 v33, 31, v{vLANE}"); e("v_lshlrev_b32 v33, 4, v33")
        if O.seq == 6:
            e(f"v_lshlrev_b32 v33, 7, v{vLANE}")
        e("v_add_u32 v32, s62, v33"); e("v_and_b32 v32, 0x1fffff, v32")
    if O.only:
        e(f"s_cmp_ge_u32 s2, {O.only}"); e("s_cbranch_scc1 P_END")
    e("P_HOP:")
    if O.hit:
        e(f"s_add_u32 s{sGI}, s12, {hex(WS_G)}"); e(f"s_addc_u32 s{sGI+1}, s13, 0")
    else:
        e(f"s_mov_b32 s{sGI}, s{sGO}"); e(f"s_mov_b32 s{sGI+1}, s{sGO+1}")
    e(f"s_add_u32 s{sGO}, s{sGO}, {hex(WS_GS)}"); e(f"s_addc_u32 s{sGO+1}, s{sGO+1}, 0")
    e(f"s_mov_b32 s{sTRY}, 0")
    e("s_mov_b32 s93, 0")
    e(f"s_cmp_lg_u32 s{sSLOW}, 0")
    e("s_cbranch_scc1 P_SLOWG")
    for i in range(8): e(f"v_mov_b32 v{vAC1+i}, 0")
    e(f"s_mov_b32 s{sGa}, s{sP0}"); e(f"s_mov_b32 s{sGb}, s{sG1}"); e(f"s_mov_b32 s{sGc}, s{sG2}")
    e(f"s_mov_b32 s{sTa}, s{sT0}"); e(f"s_mov_b32 s{sTb}, s{sT1}"); e(f"s_mov_b32 s{sTc}, s{sT2}")
    e(f"s_movk_i32 s{sGAD}, {L_FLAG + 16}")
    def rotate():
        e(f"s_mov_b32 s{sGa}, s{sGb}"); e(f"s_mov_b32 s{sGb}, s{sGc}"); e(f"s_movk_i32 s{sGc}, 255")
        e(f"s_mov_b32 s{sTa}, s{sTb}"); e(f"s_mov_b32 s{sTb}, s{sTc}")
        e(f"s_add_u32 s{sGAD}, s{sGAD}, 4")
    def rdcnt():
        e(f"v_mov_b32 v{vT1}, s{sGAD}")
        e(f"ds_read_b32 v{vT0}, v{vT1}")
        e("s_waitcnt lgkmcnt(0)")
        e(f"v_readfirstlane_b32 s62, v{vT0}")
        e(f"s_cmp_ge_u32 s62, s{sTa}")
    def setprio(tag):
        e(f"s_sub_u32 s62, s{sGAD}, {L_FLAG + 20}"); e("s_lshr_b32 s62, s62, 1")
        e(f"s_lshr_b32 s62, s{sPRI}, s62"); e("s_and_b32 s62, s62, 3")
        e("s_cmp_ge_u32 s62, 2"); e(f"s_cbranch_scc1 SP{tag}_H")
        e("s_cmp_eq_u32 s62, 1"); e(f"s_cbranch_scc1 SP{tag}_1")
        e("s_setprio 0"); e(f"s_branch SP{tag}_D")
        e(f"SP{tag}_1:"); e("s_setprio 1"); e(f"s_branch SP{tag}_D")
        e(f"SP{tag}_H:"); e("s_cmp_eq_u32 s62, 3"); e(f"s_cbranch_scc1 SP{tag}_3")
        e("s_setprio 2"); e(f"s_branch SP{tag}_D")
        e(f"SP{tag}_3:"); e("s_setprio 3")
        e(f"SP{tag}_D:")
    e("GW:")
    e(f"s_mov_b32 s{sCUR}, s{sGa}")
    e("GW1:")
    rdcnt()
    e("s_cbranch_scc1 GW2")
    e("s_add_u32 s93, s93, 1")
    e(f"s_cmp_gt_u32 s93, {TRYMAX*4}")
    e("s_cbranch_scc1 GW2")
    if O.gsleep: e(f"s_sleep {O.gsleep}")
    e("s_branch GW1")
    e("GW2:")
    if dbg:
        e(f"s_sub_u32 s65, s{sGAD}, {L_FLAG + 16}"); e("s_lshr_b32 s65, s65, 2"); e("s_add_u32 s65, s65, 16")
        e(f"s_cmp_eq_u32 s{sK}, 4"); e("s_cbranch_scc0 GW2b")
        stamp("s65", f"s{sCUR}")
        e("GW2b:")
    rotate()
    e(f"s_cmp_eq_u32 s{sGa}, s{sCUR}")
    e("s_cbranch_scc1 GW1")
    if O.ptab: setprio("W")
    e(f"s_andn2_b32 s{sI16}, s{sCUR}, 15")
    e(f"s_and_b32 s{sS0}, s{sCUR}, 15")
    e(f"s_sub_u32 s{sGREL}, s{sGa}, s{sI16}")
    e(f"s_add_u32 s{sEXS}, s{sS0}, 15"); e(f"s_and_b32 s{sEXS}, s{sEXS}, 15")
    e(f"s_lshl_b32 s63, s{sI16}, 1")
    e(f"v_add_u32 v{vIP}, s63, v{vIDXA}")
    e(f"s_lshr_b32 s64, s{sS0}, 3"); e("s_lshl_b32 s64, s64, 5")
    e(f"v_add_u32 v{vT0}, s64, v{vIP}")
    e(f"ds_read_b128 v[{vX}:{vX+3}], v{vT0}")
    e(f"ds_read_b128 v[{vY}:{vY+3}], v{vIP} offset:16")
    e("s_waitcnt lgkmcnt(0)")
    tree(g, sS0, list(range(0, 16, GQ)), lambda s: f"PA_{s}")
    def idxld(s):
        if s == 0:
            e("s_waitcnt lgkmcnt(0)"); e(f"ds_read_b128 v[{vY}:{vY+3}], v{vIP} offset:16")
        elif s == 8:
            e("s_waitcnt lgkmcnt(0)"); e(f"ds_read_b128 v[{vX}:{vX+3}], v{vIP} offset:32")
    def issue(s):
        r = (vX if s < 8 else vY) + (s % 8) // 2
        t = vOFF + s; d = vRING + 4 * s
        if O.seq in (1, 3, 4, 5, 6):
            e(f"v_add_u32 v32, {dict([(1,1024),(3,2048),(4,256),(5,512),(6,8192)])[O.seq]}, v32"); e(f"v_and_b32 v32, 0x1fffff, v32"); e(f"v_mov_b32 v{t}, v32")
        elif O.seq == 2:
            e(f"v_mad_u32_u16 v{t}, v{r}, s{s128}, v{vL16} op_sel:[{s%2},0,0,0]")
            e(f"v_readfirstlane_b32 s62, v{t}")
            e(f"s_and_b32 s62, s62, 0x3ffc00")
            e(f"v_add_u32 v{t}, s62, v33")
        else:
            e(f"v_mad_u32_u16 v{t}, v{r}, s{s128}, v{vL16} op_sel:[{s%2},0,0,0]")
        e(f"buffer_load_dwordx4 v[{d}:{d+3}], v{t}, s[{sGI}:{sGI+3}], 0 offen{O.ld}")
    def check(sl):
        s = vRING + 4 * sl
        if O.nocheck:
            e("s_mov_b64 vcc, 0"); return
        e(f"v_max3_u32 v{vT0}, v{s}, v{s+1}, v{s+2}")
        e(f"v_max_u32 v{vT0}, v{vT0}, v{s+3}")
        e(f"v_cmp_eq_u32 vcc, -1, v{vT0}")
    def mfmas(sl):
        s = vRING + 4 * sl
        if O.nomfma: return
        e(f"v_mfma_f32_16x16x32_bf16 v[{vAC1}:{vAC1+3}], v[{vA1}:{vA1+3}], v[{s}:{s+3}], v[{vAC1}:{vAC1+3}]")
        e(f"v_mfma_f32_16x16x32_bf16 v[{vAC2}:{vAC2+3}], v[{vA2}:{vA2+3}], v[{s}:{s+3}], v[{vAC2}:{vAC2+3}]")
    def wrap():
        e(f"s_add_u32 s{sI16}, s{sI16}, 16")
        e(f"s_sub_u32 s{sGREL}, s{sGREL}, 16")
        e(f"v_add_u32 v{vIP}, 32, v{vIP}")
    for s in range(16):
        e(f"PA_{s}:")
        if s % GQ == 0:
            e(f"s_cmp_eq_u32 s{sGREL}, {s}"); e(f"s_cbranch_scc1 GA_{s}")
            e(f"GAR_{s}:")
        idxld(s)
        issue(s)
        if s < 15:
            e(f"s_cmp_eq_u32 s{sEXS}, {s}"); e(f"s_cbranch_scc1 PB_{s+1}")
        else:
            e(f"s_cmp_eq_u32 s{sI16}, {PMAX-16}"); e("s_cbranch_scc1 PA_END")
            wrap()
            e(f"s_cmp_eq_u32 s{sEXS}, 15"); e("s_cbranch_scc0 PA_0")
    for s in range(16):
        e(f"PB_{s}:")
        e("s_waitcnt vmcnt(15)")
        check(s)
        e(f"s_cbranch_vccnz STB_{s}")
        e(f"RTB_{s}:")
        mfmas(s)
        if s % GQ == 0:
            e(f"s_cmp_eq_u32 s{sGREL}, {s}"); e(f"s_cbranch_scc1 GB_{s}")
            e(f"GBR_{s}:")
        idxld(s)
        issue(s)
    wrap()
    e(f"s_cmp_lt_u32 s{sI16}, {PMAX}"); e("s_cbranch_scc1 PB_0")
    for s in range(16):
        e(f"PD_{s}:")
        e(f"s_waitcnt vmcnt({15-s})")
        check(s)
        e(f"s_cbranch_vccnz STD_{s}")
        e(f"RTD_{s}:")
        mfmas(s)
    e("s_branch P_FLUSH")
    e("PA_END:")
    tree(g, sS0, list(range(0, 16, GQ)), lambda s: f"PD_{s}")
    for s in range(16):
        e(f"PC_{s}:")
        check(s)
        e(f"s_cbranch_vccnz STC_{s}")
        e(f"RTC_{s}:")
        mfmas(s)
        if (s + 1) % GQ == 0:
            e(f"s_cmp_eq_u32 s{sGSL}, {(s+1)%16}"); e("s_cbranch_scc1 GW")
    e("s_branch PC_0")
    for s in range(0, 16, GQ):
        e(f"GA_{s}:")
        e(f"s_call_b64 s[{sRET2}:{sRET2+1}], GT")
        e(f"s_cbranch_scc1 GAR_{s}")
        e("s_branch GA_CLOSED")
        e(f"GB_{s}:")
        e(f"s_call_b64 s[{sRET2}:{sRET2+1}], GT")
        e(f"s_cbranch_scc1 GBR_{s}")
        e("s_waitcnt vmcnt(0)")
        e(f"s_branch PC_{(s+1)%16}")
    e("GA_CLOSED:")
    e("s_waitcnt vmcnt(0)")
    tree(g, sS0, list(range(0, 16, GQ)), lambda s: f"PC_{s}")
    e("GT:")
    e(f"s_mov_b32 s{sCUR}, s{sGa}")
    e("GT1:")
    rdcnt()
    e(f"s_and_b32 s{sGSL}, s{sGa}, 15")
    e(f"s_cmp_ge_u32 s62, s{sTa}")
    e("s_cbranch_scc0 GT_RET")
    rotate()
    e(f"s_cmp_eq_u32 s{sGa}, s{sCUR}")
    e("s_cbranch_scc1 GT1")
    if O.ptab: setprio("T")
    e(f"s_sub_u32 s{sGREL}, s{sGa}, s{sI16}")
    e("s_cmp_eq_u32 s62, s62")
    e("GT_RET:")
    e(f"s_setpc_b64 s[{sRET2}:{sRET2+1}] ; @to " + " ".join(f"GAX_{s} GBX_{s}" for s in range(0, 16, GQ)))
    for s in range(16):
        for t in "BDC":
            e(f"ST{t}_{s}:")
            e(f"s_call_b64 s[{sRET}:{sRET+1}], POLL_{s}")
            e(f"s_branch RT{t}_{s}")
    for sl in range(RING):
        s = vRING + 4 * sl
        e(f"POLL_{sl}:")
        e(f"s_add_u32 s{sTRY}, s{sTRY}, 1")
        e(f"s_cmp_gt_u32 s{sTRY}, {TRYMAX}")
        e("s_cbranch_scc1 P_RET")
        if O.sleep: e(f"s_sleep {O.sleep}")
        e("s_mov_b64 exec, vcc")
        e(f"buffer_load_dwordx4 v[{s}:{s+3}], v{vOFF+sl}, s[{sGI}:{sGI+3}], 0 offen{SC}")
        e("s_mov_b64 exec, -1")
        e("s_waitcnt vmcnt(0)")
        check(sl)
        e(f"s_cbranch_vccnz POLL_{sl}")
        if sl < RING - 1: e("s_branch P_REFRESH")
    e("P_REFRESH:")
    for sl in range(RING):
        s = vRING + 4 * sl
        l = g.lab("RF")
        check(sl)
        e(f"s_cbranch_vccz {l}")
        e("s_mov_b64 exec, vcc")
        e(f"buffer_load_dwordx4 v[{s}:{s+3}], v{vOFF+sl}, s[{sGI}:{sGI+3}], 0 offen{SC}")
        e("s_mov_b64 exec, -1")
        e(f"{l}:")
    e("s_waitcnt vmcnt(0)")
    e("P_RET:")
    e(f"s_setpc_b64 s[{sRET}:{sRET+1}] ; @to " + " ".join(f"RT{t}_{p}" for t in "BDC" for p in range(16)))
    e("P_FLUSH:")
    if dbg:
        stamp(f"s{sK}", f"s{sTRY}")
    H = vF
    for b in range(4):
        e(f"v_mul_f32 v{vAC1+b}, v{vAC1+b}, v{vDIS1}")
        e(f"v_mul_f32 v{vAC2+b}, v{vAC2+b}, v{vDIS2}")
    e(f"v_cvt_pk_bf16_f32 v{H}, v{vAC1}, v{vAC1+1}")
    e(f"v_cvt_pk_bf16_f32 v{H+1}, v{vAC1+2}, v{vAC1+3}")
    e(f"v_cvt_pk_bf16_f32 v{H+2}, v{vAC2}, v{vAC2+1}")
    e(f"v_cvt_pk_bf16_f32 v{H+3}, v{vAC2+2}, v{vAC2+3}")
    e(f"v_permlane16_swap_b32 v{H}, v{H+2}")
    e(f"v_permlane16_swap_b32 v{H+1}, v{H+3}")
    e(f"s_mov_b64 exec, s[{sVALID}:{sVALID+1}]")
    e(f"s_cmp_eq_u32 s{sK}, 7")
    e("s_cbranch_scc1 P_NOG")
    G = vF + 4
    for r in range(4):
        e(f"v_lshlrev_b32 v{vF+8}, 16, v{H+r}")
        e(f"v_and_b32 v{vF+9}, 0xffff0000, v{H+r}")
        e(f"v_mul_f32 v{vF+8}, v{vF+8}, v{vDIS3}")
        e(f"v_mul_f32 v{vF+9}, v{vF+9}, v{vDIS3}")
        e(f"v_cvt_pk_bf16_f32 v{G+r}, v{vF+8}, v{vF+9}")
        e(f"v_min_u32 v{G+r}, -2, v{G+r}")
    e(f"buffer_store_dwordx4 v[{G}:{G+3}], v{vGOFF}, s[{sGO}:{sGO+3}], 0 offen{SC}")
    e("s_mov_b64 exec, 1")
    e(f"v_mov_b32 v{vF+11}, s{sCLSA}")
    e(f"v_mov_b32 v{vF+12}, 1")
    e(f"ds_add_u32 v{vF+11}, v{vF+12}")
    e(f"s_mov_b64 exec, s[{sVALID}:{sVALID+1}]")
    e(f"s_cmp_gt_u32 s{sK}, 4")
    e("s_cbranch_scc1 P_NOG")
    for r in range(4): e(f"v_mov_b32 v{vX+r}, {PV}")
    e(f"buffer_store_dwordx4 v[{vX}:{vX+3}], v{vGOFF}, s[{sWS}:{sWS+3}], s{sPOI} offen{SC}")
    e(f"s_add_u32 s{sPOI}, s{sPOI}, {hex(WS_GS)}")
    e("P_NOG:")
    e(f"s_mul_i32 s62, s{sK}, {TOKROW}")
    e(f"v_add_u32 v{vF+10}, s62, v{vTOKA}")
    e(f"ds_write_b128 v{vF+10}, v[{H}:{H+3}]")
    e("s_mov_b64 exec, -1")
    if not O.nogate:
        for c in range(3): e(f"s_add_u32 s{sT0+c}, s{sT0+c}, s{sN0+c}")
    if O.ptab: e(f"s_mov_b32 s{sPRI}, s{sPRI2}")
    e(f"s_add_u32 s{sK}, s{sK}, 1")
    e(f"s_cmp_le_u32 s{sK}, {O.nhops}")
    e("s_cbranch_scc1 P_HOP")
    e("P_FINAL:")
    if O.ptab: e("s_setprio 0")
    if O.dump:
        e("s_waitcnt lgkmcnt(0)")
        e(f"s_mov_b64 exec, s[{sVALID}:{sVALID+1}]")
        e(f"v_sub_u32 v{vT0}, v{vGOFF}, v{vL16}")
        e(f"v_lshlrev_b32 v{vT0}, 3, v{vT0}")
        e(f"v_add_u32 v{vT0}, v{vT0}, v{vL16}")
        e(f"s_mov_b32 s62, {hex(WS_DUMP)}")
        for k in range(8):
            e(f"ds_read_b128 v[{vRING}:{vRING+3}], v{vTOKA} offset:{k*TOKROW}")
            e("s_waitcnt lgkmcnt(0)")
            e(f"buffer_store_dwordx4 v[{vRING}:{vRING+3}], v{vT0}, s[{sWS}:{sWS+3}], s62 offen offset:{k*128}")
            e("s_nop 1")
        e("s_mov_b64 exec, -1")
    if O.final:
        import gen_final
        gen_final.P = sys.modules[__name__]
        gen_final.gen_final(g)
    if dbg:
        e("s_memtime s[66:67]"); e("s_waitcnt lgkmcnt(0)")
        stamp("21", "s66")
        stamp("9", "0")
        if O.amp:
            def off(x):
                if x == "k1s": return WS_STAMP + 0x100000
                if x == "k1e": return WS_STAMP + 0x100000 + 4
                return WS_STAMP + int(x) * 8
            a_, b_ = O.amp.split(",")
            e("s_lshl_b32 s62, s2, 4"); e("s_add_u32 s62, s62, s3"); e("s_cmp_lg_u32 s62, 0"); e("s_cbranch_scc1 P_END")
            e("s_waitcnt vmcnt(0)")
            e(f"v_mov_b32 v40, {hex(off(a_))}"); e(f"v_mov_b32 v41, {hex(off(b_))}")
            e(f"buffer_load_dword v42, v40, s[{sWS}:{sWS+3}], 0 offen sc1")
            e(f"buffer_load_dword v43, v41, s[{sWS}:{sWS+3}], 0 offen sc1")
            e("s_waitcnt vmcnt(0)")
            e("v_sub_u32 v42, v42, v43")
            e("v_readfirstlane_b32 s62, v42")
            e("s_min_u32 s62, s62, 10000")
            e("s_lshl_b32 s62, s62, 3")
            e("s_memrealtime s[64:65]"); e("s_waitcnt lgkmcnt(0)")
            e("AMPL:"); e("s_sleep 4"); e("s_memrealtime s[66:67]"); e("s_waitcnt lgkmcnt(0)")
            e("s_sub_u32 s63, s66, s64"); e("s_cmp_lt_u32 s63, s62"); e("s_cbranch_scc1 AMPL")
    e("s_branch P_END")
    e("P_SLOWG:")
    e(f"v_lshrrev_b32 v{vT0}, 3, v{vLANE}")
    e("s_lshl_b32 s62, s3, 5")
    e(f"s_add_u32 s62, s62, {L_NODEOF}")
    e(f"v_lshl_add_u32 v{vT1}, v{vT0}, 2, s62")
    e(f"ds_read_b32 v40, v{vT1}")
    e("s_lshl_b32 s62, s3, 3")
    e(f"v_add_u32 v{vT0}, s62, v{vT0}")
    e("s_mul_i32 s62, s2, 100")
    e("s_movk_i32 s63, 100")
    e(f"v_cmp_gt_u32 vcc, s63, v{vT0}")
    for i in range(8): e(f"v_mov_b32 v{vAC1+i}, 0")
    e(f"v_lshlrev_b32 v41, 4, v{vLANE}")
    srd(g, 88, 6, 7, 3200000)
    srd(g, 92, 8, 9, 3200000)
    e("s_waitcnt lgkmcnt(0)")
    e("v_add_u32 v40, s62, v40")
    e("v_cndmask_b32 v40, -1, v40, vcc")
    e("s_mov_b32 s66, 0")
    e("SG_CHUNK:")
    e("buffer_load_dwordx4 v[44:47], v41, s[92:95], s66 offen")
    e("buffer_load_dwordx4 v[48:51], v41, s[88:91], s66 offen")
    e("s_waitcnt vmcnt(0)")
    for u in range(4):
        e("s_mov_b32 s67, 0")
        e(f"SG_R{u}:")
        e("v_readlane_b32 s68, v40, s67")
        e("s_mov_b64 s[62:63], 0xff")
        e("s_lshl_b64 s[62:63], s[62:63], s67")
        e(f"v_cmp_eq_u32 s[64:65], s68, v{44+u}")
        e(f"SG_E{u}:")
        e("s_cmp_eq_u64 s[64:65], 0")
        e(f"s_cbranch_scc1 SG_N{u}")
        e("s_ff1_i32_b64 s69, s[64:65]")
        e("s_bitset0_b64 s[64:65], s69")
        e(f"v_readlane_b32 s68, v{48+u}, s69")
        e("s_lshl_b32 s68, s68, 7")
        e(f"v_add_u32 v42, s68, v{vL16}")
        e("v_mov_b32 v43, 0x7ffffff0")
        e("v_cndmask_b32 v42, v43, v42, s[62:63]")
        e(f"SG_P{u}:")
        e(f"buffer_load_dwordx4 v[52:55], v42, s[{sGI}:{sGI+3}], 0 offen{SC}")
        e("s_waitcnt vmcnt(0)")
        e(f"v_max3_u32 v{vT0}, v52, v53, v54")
        e(f"v_max_u32 v{vT0}, v{vT0}, v55")
        e(f"v_cmp_eq_u32 vcc, -1, v{vT0}")
        e(f"s_cbranch_vccz SG_A{u}")
        e(f"s_add_u32 s{sTRY}, s{sTRY}, 1")
        e(f"s_cmp_gt_u32 s{sTRY}, {TRYMAX}")
        e(f"s_cbranch_scc1 SG_A{u}")
        e("s_sleep 8")
        e(f"s_branch SG_P{u}")
        e(f"SG_A{u}:")
        e(f"v_mfma_f32_16x16x32_bf16 v[{vAC1}:{vAC1+3}], v[{vA1}:{vA1+3}], v[52:55], v[{vAC1}:{vAC1+3}]")
        e(f"v_mfma_f32_16x16x32_bf16 v[{vAC2}:{vAC2+3}], v[{vA2}:{vA2+3}], v[52:55], v[{vAC2}:{vAC2+3}]")
        e(f"s_branch SG_E{u}")
        e(f"SG_N{u}:")
        e("s_add_u32 s67, s67, 8")
        e("s_cmp_lt_u32 s67, 64")
        e(f"s_cbranch_scc1 SG_R{u}")
    e("s_add_u32 s66, s66, 1024")
    e("s_cmp_lt_u32 s66, 3200000")
    e("s_cbranch_scc1 SG_CHUNK")
    e("s_branch P_FLUSH")
    e("P_END:")
    e("s_endpgm")

def build(path):
    g = Gen()
    gen_k1(g)
    gen_p(g)
    L = []
    for line in g.L:
        L.append(line)
    out = []; cur = None
    for line in L:
        out.append(line)
        if line.startswith("GA_") and line.endswith(":") and line[3:-1].isdigit(): cur = "GAX_" + line[3:-1]
        elif line.startswith("GB_") and line.endswith(":") and line[3:-1].isdigit(): cur = "GBX_" + line[3:-1]
        if line.startswith("s_call_b64") and line.endswith("GT"):
            out.append(cur + ":")
    g.L = out
    kernel_desc(g, "bin_kernel", 80, 64)
    kernel_desc(g, "graph_kernel", 128, 100)
    launches = [f"; @launch kernel=bin_kernel grid=({NB+1},1,1) block=(1024,1,1) lds={K1_LDS}",
                f"; @launch kernel=graph_kernel grid=({NB},1,1) block=(1024,1,1) lds={P_LDS}"]
    s = finish(g, launches, "gather_scatter__hybrid_graph_tf_nagphormer__graph.s.ref")
    open(path, "w").write(s)
    return s

if __name__ == "__main__":
    import argparse
    ap = argparse.ArgumentParser()
    ap.add_argument("out")
    for f in ("dump", "nofinal", "dbgstat", "forceslow", "free", "nogate", "onegate", "hit", "nomfma", "nocheck", "revcls"): ap.add_argument("--" + f, action="store_true")
    ap.add_argument("--sleep", type=int, default=2); ap.add_argument("--gsleep", type=int, default=1)
    ap.add_argument("--nhops", type=int, default=7); ap.add_argument("--gq", type=int, default=2)
    ap.add_argument("--ptab", default=None); ap.add_argument("--ld", default="sc1"); ap.add_argument("--only", type=int, default=0); ap.add_argument("--seq", type=int, default=0); ap.add_argument("--ptab1", default=None); ap.add_argument("--thr", default="30,35"); ap.add_argument("--perm", default=None)
    ap.add_argument("--amp", default=None)
    a = ap.parse_args()
    O.amp = a.amp
    O.dump = a.dump; O.final = not a.nofinal; O.dbgstat = a.dbgstat; O.forceslow = a.forceslow; O.free = a.free
    O.nogate = a.nogate; O.onegate = a.onegate; O.sleep = a.sleep; O.gsleep = a.gsleep; O.nhops = a.nhops; O.gq = a.gq
    O.pat = None; O.hit = a.hit; O.revcls = a.revcls; O.only = a.only; O.seq = a.seq; O.nomfma = a.nomfma; O.nocheck = a.nocheck; O.ld = {"sc1": " sc1", "plain": "", "nt": " nt", "sc0": " sc0", "sc01": " sc0 sc1", "sc1nt": " sc1 nt"}[a.ld]
    O.ptab = [[int(c) for c in r] for r in a.ptab.split(",")] if a.ptab else None
    O.ptab1 = [[int(c)] * 3 for c in a.ptab1] if a.ptab1 else O.ptab
    O.thr = tuple(int(x) for x in a.thr.split(","))
    O.perm = [int(x) for x in a.perm.split(",")] if a.perm else None
    build(a.out)
    print("P_LDS", P_LDS)
```

```python
import sys, os
sys.path.insert(0, os.path.dirname(os.path.abspath(__file__)))
from asmlib import fix_hazards
from gen import Gen, srd, kernel_header, kernel_desc, finish, NB, NPB, CH, WS_REC, WS_TAB, WS_G, WS_GS, WS_WF, WS_DUMP, WS_STAMP, WS_BYTES, SRD3

class Opt:
    dbgstat = False; dump = False; final = True; forceslow = False; free = False
    sleep = 2; gsleep = 1; nhops = 7; gq = 2
    prio = None
    nogate = False
    onegate = False
    pat = None
    ptab1 = None
    hit = False
    revcls = False
    only = 0
    seq = 0
    nomfma = False; nocheck = False; ld = " sc1"
    ptab = None
    thr = (30, 35)
    perm = None
    amp = None
    onegate2 = False
    stp = " sc1"; stg = " sc1"
    gprio = 1; fsleep = 2; fbench = 0; fwaves = 16; fx = ""
O = Opt()
import struct
def bf16bits(x):
    u = struct.unpack("<I", struct.pack("<f", x))[0]
    return (u + 0x7FFF + ((u >> 16) & 1)) >> 16
def thr_bits(d):
    return bf16bits((d + 1.0) ** -0.5)

PMAX = 80
NODEB = PMAX * 2
GSZ = 8 * NODEB
NGRP = 13
TOKROW = 144
TOKNODE = 8 * TOKROW
L_STREAM = 0
L_CNT = 104 * NODEB + 64
L_INFO = L_CNT + 1024
L_NODEOF = L_INFO + 1024
L_GINFO = L_NODEOF + 512
L_DISF = L_GINFO + 256
L_FLAG = L_DISF + 512
L_WF = L_FLAG + 64
WFX = 2048 + 16
L_R = L_WF + 16384 + WFX
L_TOK = L_R + 104 * 32
P_LDS = L_TOK + 100 * TOKNODE
NTILE = 50
RING = 16
TRYMAX = 200000
NCLS = (4, 4, 5)

sWS, sGI, sGO, sX, sDIS, sTAB, sOUT, sWR = 20, 24, 28, 32, 36, 40, 44, 48
sK, sP0, sG1, sG2, sT0, sT1, sT2, sPOI = 52, 53, 54, 55, 56, 57, 58, 59
sM800 = 60
sTMP = 62
sVALID = 70
sI1, sI2 = 72, 73
sCLSA, sTRY = 72, 73
s128, sSLOW, sRET, sRET2 = 74, 75, 76, 78
sGa, sGb, sGc, sTa, sTb, sTc, sGAD, sI16, sS0, sGREL, sEXS, sGSL, sCUR = range(80, 93)
sN0, sPRI, sPRI2 = 94, 97, 98
sONES = 99
vTID, vLANE, vL16, vIDXA = 0, 1, 2, 3
vA1, vA2, vAC1, vAC2 = 4, 8, 12, 16
vIP, vT0, vT1 = 20, 21, 22
vX, vY = 24, 28
vRING = 40
vOFF = 104
vDIS1, vDIS2, vDIS3, vTOKA, vGOFF, vRA = 120, 121, 122, 123, 124, 125
vF = 40

K1_LDS = 2048 + 12800

def gen_k1(g):
    e = g.e
    kernel_header(g, "bin_kernel")
    e(f"s_cmp_gt_u32 s2, {NB}")
    e("s_cbranch_scc1 K1_END")
    e("s_load_dwordx8 s[4:11], s[0:1], 0")
    e("s_load_dwordx2 s[12:13], s[0:1], 88")
    if O.dbgstat: e("s_memrealtime s[52:53]")
    e(f"s_cmp_eq_u32 s2, {NB}")
    e("s_cbranch_scc1 K1_W")
    e("v_lshlrev_b32 v1, 4, v0")
    e("v_lshlrev_b32 v2, 2, v0")
    e("v_mov_b32 v3, 0")
    e("s_movk_i32 s14, 0x100")
    e("v_cmp_gt_u32 vcc, s14, v0")
    e("s_and_saveexec_b64 s[40:41], vcc")
    e("ds_write_b32 v2, v3")
    e("s_mov_b64 exec, s[40:41]")
    e("s_movk_i32 s14, 800")
    e("v_cmp_gt_u32 vcc, s14, v0")
    e("s_mov_b64 s[42:43], vcc")
    e("s_mul_i32 s14, s2, 12800")
    e("s_mul_i32 s15, s2, 200")
    e("v_lshrrev_b32 v4, 3, v0")
    e("v_lshlrev_b32 v4, 1, v4")
    e("s_waitcnt lgkmcnt(0)")
    srd(g, 16, 6, 7, 3200000)
    srd(g, 20, 8, 9, 3200000)
    srd(g, 24, 4, 5, 3200000)
    srd(g, 28, 10, 11, 50000)
    srd(g, 32, 12, 13, hex(WS_BYTES))
    e("s_mov_b64 exec, s[42:43]")
    e("s_cbranch_execz K1_NOLD")
    e("buffer_load_dwordx4 v[8:11], v1, s[20:23], s14 offen")
    e("buffer_load_dwordx4 v[12:15], v1, s[16:19], s14 offen")
    e("buffer_load_dwordx4 v[16:19], v1, s[24:27], s14 offen")
    e("buffer_load_ushort v20, v4, s[28:31], s15 offen")
    for r_ in range(4): e(f"v_mov_b32 v{24+r_}, {0 if O.free else -1}")
    e(f"s_add_u32 s44, s14, {hex(WS_G + WS_GS)}")
    e("buffer_store_dwordx4 v[24:27], v1, s[32:35], s44 offen")
    e("K1_NOLD:")
    e("s_mov_b64 exec, -1")
    e("s_waitcnt lgkmcnt(0)")
    e("s_barrier")
    e("s_mov_b64 exec, s[42:43]")
    e("s_cbranch_execz K1_B1")
    e("s_waitcnt vmcnt(4)")
    e("s_movk_i32 s45, 5243")
    e("s_movk_i32 s46, -100")
    e("v_mov_b32 v21, 1")
    for u in range(4):
        d = 8 + u
        e(f"v_mul_u32_u24 v{28+u}, s45, v{d}")
        e(f"v_lshrrev_b32 v{28+u}, 19, v{28+u}")
        e(f"v_mad_i32_i24 v{d}, v{28+u}, s46, v{d}")
        e(f"v_lshrrev_b32 v22, 1, v{28+u}")
        e(f"v_and_b32 v22, 0x7c, v22")
        e(f"v_and_b32 v{28+u}, 7, v{28+u}")
        e(f"v_lshl_or_b32 v{28+u}, v{28+u}, 7, v22")
        e(f"ds_add_rtn_u32 v{32+u}, v{28+u}, v21")
    e("s_waitcnt vmcnt(3)")
    for u in range(4):
        e(f"v_lshlrev_b32 v{52+u}, 1, v{12+u}")
        e(f"buffer_load_ushort v{56+u}, v{52+u}, s[28:31], 0 offen")
    for u in range(4):
        e(f"v_lshl_or_b32 v{8+u}, v{8+u}, 19, v{12+u}")
    e("s_waitcnt vmcnt(5)")
    e("v_lshlrev_b32 v20, 16, v20")
    for r in range(4):
        e(f"v_lshlrev_b32 v22, 16, v{16+r}")
        e(f"v_and_b32 v23, 0xffff0000, v{16+r}")
        e("v_mul_f32 v22, v22, v20")
        e("v_mul_f32 v23, v23, v20")
        e(f"v_cvt_pk_bf16_f32 v{16+r}, v22, v23")
    e(f"s_add_u32 s44, s14, {hex(WS_G)}")
    e("buffer_store_dwordx4 v[16:19], v1, s[32:35], s44 offen")
    e("K1_B1:")
    e("s_mov_b64 exec, -1")
    e("s_waitcnt lgkmcnt(0)")
    e("s_barrier")
    e("v_cmp_gt_u32 vcc, 64, v0")
    e("s_and_saveexec_b64 s[40:41], vcc")
    e("s_cbranch_execz K1_B2")
    e("ds_read_b128 v[40:43], v1")
    e("s_waitcnt lgkmcnt(0)")
    e("v_add_u32 v44, v40, v41")
    e("v_add_u32 v45, v44, v42")
    e("v_add_u32 v46, v45, v43")
    e("v_mov_b32 v47, v46")
    for sh in (1, 2, 4, 8):
        e(f"v_add_u32_dpp v47, v47, v47 row_shr:{sh} row_mask:0xf bank_mask:0xf bound_ctrl:0")
    e("v_add_u32_dpp v47, v47, v47 row_bcast:15 row_mask:0xa bank_mask:0xf")
    e("v_add_u32_dpp v47, v47, v47 row_bcast:31 row_mask:0xc bank_mask:0xf")
    e("v_sub_u32 v48, v47, v46")
    e("v_add_u32 v49, v48, v40")
    e("v_add_u32 v50, v48, v44")
    e("v_add_u32 v51, v48, v45")
    e("ds_write_b128 v1, v[48:51] offset:1024")
    e("s_lshl_b32 s46, s2, 10")
    e(f"s_add_u32 s46, s46, {hex(WS_TAB)}")
    for u in range(4):
        e(f"v_lshl_or_b32 v{40+u}, v{40+u}, 16, v{48+u}")
    e("buffer_store_dwordx4 v[40:43], v1, s[32:35], s46 offen")
    e("K1_B2:")
    e("s_mov_b64 exec, -1")
    e("s_waitcnt lgkmcnt(0)")
    e("s_barrier")
    e("s_mov_b64 exec, s[42:43]")
    e("s_cbranch_execz K1_B3")
    for u in range(4):
        e(f"ds_read_b32 v{36+u}, v{28+u} offset:1024")
    e(f"s_movk_i32 s47, {hex(thr_bits(O.thr[0]))}")
    e(f"s_movk_i32 s48, {hex(thr_bits(O.thr[1]))}")
    e("v_bfrev_b32 v60, 2")
    e("v_bfrev_b32 v61, 1")
    e("s_waitcnt vmcnt(1)")
    for u in range(4):
        e(f"v_cmp_gt_u32 vcc, s47, v{56+u}")
        e(f"v_cndmask_b32 v22, v61, v60, vcc" if O.revcls else f"v_cndmask_b32 v22, 0, v60, vcc")
        e(f"v_cmp_gt_u32 vcc, s48, v{56+u}")
        e(f"v_cndmask_b32 v22, v22, 0, vcc" if O.revcls else f"v_cndmask_b32 v22, v22, v61, vcc")
        e(f"v_or_b32 v{8+u}, v{8+u}, v22")
    e("s_waitcnt lgkmcnt(0)")
    for u in range(4):
        e(f"v_add_lshl_u32 v{36+u}, v{36+u}, v{32+u}, 2")
        e(f"ds_write_b32 v{36+u}, v{8+u} offset:2048")
    e("K1_B3:")
    e("s_mov_b64 exec, -1")
    e("s_waitcnt lgkmcnt(0)")
    e("s_barrier")
    e("s_mov_b64 exec, s[42:43]")
    e("s_cbranch_execz K1_END")
    e("ds_read_b128 v[40:43], v1 offset:2048")
    e("s_waitcnt lgkmcnt(0)")
    e("buffer_store_dwordx4 v[40:43], v1, s[32:35], s14 offen")
    if O.dbgstat:
        e("s_waitcnt vmcnt(0)")
        e("s_memrealtime s[54:55]")
        e("s_lshl_b32 s56, s2, 4"); e(f"s_add_u32 s56, s56, {hex(WS_STAMP + 0x100000)}")
        e("v_cmp_eq_u32 vcc, 0, v0"); e("s_and_b64 exec, exec, vcc")
        e("s_waitcnt lgkmcnt(0)")
        e("v_mov_b32 v40, s52"); e("v_mov_b32 v41, s54"); e("v_mov_b32 v42, s56")
        e("buffer_store_dwordx2 v[40:41], v42, s[32:35], 0 offen")
    e("s_endpgm")
    e("K1_W:")
    e("s_load_dwordx8 s[16:23], s[0:1], 32")
    e("v_lshrrev_b32 v1, 6, v0")
    e("v_and_b32 v2, 63, v0")
    e("v_readfirstlane_b32 s3, v1")
    e("v_lshrrev_b32 v3, 4, v2")
    e("v_and_b32 v4, 15, v2")
    e("s_lshr_b32 s24, s3, 2")
    e("s_and_b32 s25, s3, 3")
    e("v_lshrrev_b32 v5, 2, v4")
    e("v_and_b32 v6, 3, v4")
    e("v_lshl_add_u32 v7, v5, 4, v6")
    e("s_lshl_b32 s26, s25, 2")
    e("s_lshl_b32 s27, s24, 2")
    e("v_add_u32 v8, s26, v7")
    e("v_add_u32 v9, s27, v7")
    e("v_lshlrev_b32 v10, 7, v8")
    e("v_lshl_add_u32 v10, v3, 4, v10")
    e("v_lshlrev_b32 v11, 7, v9")
    e("v_lshl_add_u32 v11, v3, 4, v11")
    e("s_waitcnt lgkmcnt(0)")
    srd(g, 28, 16, 17, 8192)
    srd(g, 32, 18, 19, 8192)
    srd(g, 36, 20, 21, 8192)
    srd(g, 40, 22, 23, 8192)
    srd(g, 44, 12, 13, 16384 + WFX, add=hex(WS_WF))
    e("buffer_load_dwordx4 v[16:19], v10, s[28:31], 0 offen")
    e("buffer_load_dwordx4 v[20:23], v10, s[28:31], 0 offen offset:64")
    e("buffer_load_dwordx4 v[24:27], v11, s[32:35], 0 offen")
    e("buffer_load_dwordx4 v[28:31], v11, s[32:35], 0 offen offset:64")
    e("buffer_load_dwordx4 v[32:35], v10, s[36:39], 0 offen")
    e("buffer_load_dwordx4 v[36:39], v10, s[36:39], 0 offen offset:64")
    e("v_lshlrev_b32 v12, 10, v3")
    e("v_lshl_add_u32 v12, v9, 1, v12")
    e("s_movk_i32 s48, 0x1000")
    for sp in range(2):
        for j in range(8):
            off = (32 * sp + j) * 128
            so = "0"
            if off >= 4096:
                so = "s48"; off -= 4096
            e(f"buffer_load_ushort v{60 + sp*8 + j}, v12, s[40:43], {so} offen offset:{off}")
    for i in range(8): e(f"v_mov_b32 v{48+i}, 0")
    e("s_waitcnt vmcnt(0)")
    for r in range(8):
        e(f"v_lshl_or_b32 v{40+r}, v{61+2*r}, 16, v{60+2*r}")
    e("v_mfma_f32_16x16x32_bf16 v[48:51], v[16:19], v[24:27], v[48:51]")
    e("v_mfma_f32_16x16x32_bf16 v[52:55], v[32:35], v[40:43], v[52:55]")
    e("v_mfma_f32_16x16x32_bf16 v[48:51], v[20:23], v[28:31], v[48:51]")
    e("v_mfma_f32_16x16x32_bf16 v[52:55], v[36:39], v[44:47], v[52:55]")
    def ror_sum(x):
        for sh in (8, 4, 2, 1):
            e(f"v_add_f32_dpp v{x}, v{x}, v{x} row_ror:{sh} row_mask:0xf bank_mask:0xf")
    def redq(x, tmp):
        e(f"v_mov_b32 v{tmp}, v{x}"); e(f"v_permlane16_swap_b32 v{x}, v{tmp}"); e(f"v_add_f32 v{x}, v{x}, v{tmp}")
        e(f"v_mov_b32 v{tmp}, v{x}"); e(f"v_permlane32_swap_b32 v{x}, v{tmp}"); e(f"v_add_f32 v{x}, v{x}, v{tmp}")
    e("v_add_f32 v56, v48, v49"); e("v_add_f32 v57, v50, v51"); e("v_add_f32 v56, v56, v57")
    e("v_add_f32 v58, v52, v53"); e("v_add_f32 v59, v54, v55"); e("v_add_f32 v58, v58, v59")
    redq(56, 57); redq(58, 59)
    e("v_mov_b32 v60, v56"); ror_sum(60)
    for b in range(4):
        e(f"v_mov_b32 v{62+b}, v{48+b}"); ror_sum(62 + b)
    e("v_lshlrev_b32 v14, 4, v9")
    e("s_lshl_b32 s50, s25, 2")
    e("v_add_u32 v14, s50, v14")
    e("ds_write_b32 v14, v56")
    e("ds_write_b32 v14, v58 offset:1024")
    e("v_lshlrev_b32 v15, 8, v3")
    e("s_lshl_b32 s50, s25, 6"); e("s_lshl_b32 s51, s24, 2"); e("s_add_u32 s50, s50, s51")
    e("v_add_u32 v15, s50, v15")
    for b in range(4): e(f"ds_write_b32 v15, v{62+b} offset:{2048+16*b}")
    e("s_lshl_b32 s50, s3, 2"); e("v_mov_b32 v61, s50")
    e("ds_write_b32 v61, v60 offset:3072")
    e("s_waitcnt lgkmcnt(0)")
    e("s_barrier")
    e("v_lshlrev_b32 v14, 4, v9")
    e("ds_read_b128 v[16:19], v14")
    e("ds_read_b128 v[20:23], v14 offset:1024")
    e("v_lshlrev_b32 v15, 8, v3"); e("s_lshl_b32 s50, s25, 6"); e("v_add_u32 v15, s50, v15")
    for b in range(4): e(f"ds_read_b128 v[{24+4*b}:{27+4*b}], v15 offset:{2048+16*b}")
    e("v_mov_b32 v61, 3072")
    for b in range(4): e(f"ds_read_b128 v[{64+4*b}:{67+4*b}], v61 offset:{16*b}")
    e("s_waitcnt lgkmcnt(0)")
    def sum4(d, s0):
        e(f"v_add_f32 v{s0}, v{s0}, v{s0+1}"); e(f"v_add_f32 v{s0+2}, v{s0+2}, v{s0+3}"); e(f"v_add_f32 v{d}, v{s0}, v{s0+2}")
    sum4(16, 16); sum4(20, 20)
    for b in range(4): sum4(24 + 4 * b, 24 + 4 * b)
    for b in range(4): sum4(64 + 4 * b, 64 + 4 * b)
    e("v_add_f32 v64, v64, v68"); e("v_add_f32 v72, v72, v76"); e("v_add_f32 v64, v64, v72")
    e("s_mov_b32 s48, 0x3c800000")
    e("v_mul_f32 v64, s48, v64")
    e("v_sub_f32 v16, v16, v64")
    e("s_mov_b32 s49, 0x3e38aa3b")
    for b in range(4):
        e(f"v_add_f32 v17, v16, v{24+4*b}")
        e(f"v_fma_f32 v{48+b}, -v17, s48, v{48+b}")
        e(f"v_mul_f32 v{48+b}, s49, v{48+b}")
        e(f"v_fma_f32 v{52+b}, -v20, s48, v{52+b}")
    e("v_cvt_pk_bf16_f32 v56, v48, v49"); e("v_cvt_pk_bf16_f32 v57, v50, v51")
    e("v_cvt_pk_bf16_f32 v58, v52, v53"); e("v_cvt_pk_bf16_f32 v59, v54, v55")
    e("s_lshl_b32 s50, s24, 11")
    e("s_lshr_b32 s51, s25, 1"); e("s_lshl_b32 s51, s51, 10"); e("s_add_u32 s50, s50, s51")
    e("s_and_b32 s51, s25, 1"); e("s_lshl_b32 s51, s51, 3"); e("s_add_u32 s50, s50, s51")
    e("v_lshlrev_b32 v13, 4, v2")
    e("buffer_store_dwordx2 v[56:57], v13, s[44:47], s50 offen")
    e("s_add_u32 s50, s50, 8192")
    e("buffer_store_dwordx2 v[58:59], v13, s[44:47], s50 offen")
    e("s_cmp_lg_u32 s3, 0"); e("s_cbranch_scc1 K1_END")
    e("s_load_dwordx2 s[16:17], s[0:1], 64")
    e("v_lshlrev_b32 v23, 5, v3")
    e("s_waitcnt lgkmcnt(0)")
    srd(g, 28, 16, 17, 128)
    e("buffer_load_dwordx4 v[24:27], v23, s[28:31], 0 offen")
    e("buffer_load_dwordx4 v[28:31], v23, s[28:31], 0 offen offset:16")
    e("v_cmp_eq_u32 s[62:63], 0, v6")
    e("v_cmp_eq_u32 s[60:61], 1, v6")
    e("v_mov_b32 v47, 0x3f803f80")
    e("s_waitcnt vmcnt(0)")
    for r in range(8):
        e(f"v_cndmask_b32 v{32+r}, 0, v47, s[62:63]")
        e(f"v_cndmask_b32 v{32+r}, v{32+r}, v{24+r}, s[60:61]")
    for r in range(4): e(f"v_mov_b32 v{48+r}, 0x3f803f80")
    e("v_mfma_f32_16x16x32_bf16 v[52:55], v[32:35], v[48:51], 0")
    e("v_mfma_f32_16x16x32_bf16 v[52:55], v[36:39], v[48:51], v[52:55]")
    e("v_lshlrev_b32 v13, 4, v2")
    e("s_movk_i32 s50, 0x4000")
    e("buffer_store_dwordx4 v[32:35], v13, s[44:47], s50 offen")
    e("buffer_store_dwordx4 v[36:39], v13, s[44:47], s50 offen offset:1024")
    e("v_mov_b32 v52, v53"); e("v_mov_b32 v54, v53"); e("v_mov_b32 v55, v53")
    e("v_mov_b32 v13, 0"); e("s_movk_i32 s50, 0x4800")
    e("s_mov_b64 exec, 1")
    e("buffer_store_dwordx4 v[52:55], v13, s[44:47], s50 offen")
    e("K1_END:")
    e("s_endpgm")

def tree(g, sreg, vals, label):
    if len(vals) == 1:
        g.e(f"s_branch {label(vals[0])}"); return
    mid = len(vals) // 2
    l = g.lab("TR")
    g.e(f"s_cmp_ge_u32 s{sreg}, {vals[mid]}")
    g.e(f"s_cbranch_scc1 {l}")
    tree(g, sreg, vals[:mid], label)
    g.e(f"{l}:")
    tree(g, sreg, vals[mid:], label)

def rstat(g, H, r, t1, t2):
    e = g.e
    e(f"v_dot2_f32_bf16 v{r}, v{H}, v{H}, 0")
    e(f"v_dot2_f32_bf16 v{t1}, v{H}, s{sONES}, 0")
    for i in range(1, 4):
        e(f"v_dot2_f32_bf16 v{r}, v{H+i}, v{H+i}, v{r}")
        e(f"v_dot2_f32_bf16 v{t1}, v{H+i}, s{sONES}, v{t1}")
    for mod in ("quad_perm:[1,0,3,2]", "quad_perm:[2,3,0,1]", "row_half_mirror"):
        e(f"v_add_f32_dpp v{r}, v{r}, v{r} {mod} row_mask:0xf bank_mask:0xf")
        e(f"v_add_f32_dpp v{t1}, v{t1}, v{t1} {mod} row_mask:0xf bank_mask:0xf")
    e(f"v_mul_f32 v{t1}, 0x3c800000, v{t1}")
    e(f"v_mul_f32 v{t2}, v{t1}, v{t1}")
    e(f"v_mul_f32 v{r}, 0x3c800000, v{r}")
    e(f"v_sub_f32 v{r}, v{r}, v{t2}")
    e(f"v_max_f32 v{r}, 0, v{r}")
    e(f"v_add_f32 v{r}, 0x3727c5ac, v{r}")
    e(f"v_rsq_f32 v{r}, v{r}")


fLC, fRC, fRR, fNO, fFO, fOUT = 0, 1, 2, 3, 4, 5
ID, Q25 = 8, 10
SA = 12
TOK, TT, ACC, U = 20, 28, 36, 52
fPP = 6
fST = 36
WM, WV = 64, 96
sPM = 78
sC = 80
sTILE, sMASK = 88, 89

def m32(d, a, b, c):
    cc = "0" if c is None else f"v[{c}:{c+3}]"
    return f"v_mfma_f32_16x16x32_bf16 v[{d}:{d+3}], v[{a}:{a+3}], v[{b}:{b+3}], {cc}"
def m16(d, a, b, c):
    cc = "0" if c is None else f"v[{c}:{c+3}]"
    return f"v_mfma_f32_16x16x16_bf16 v[{d}:{d+3}], v[{a}:{a+1}], v[{b}:{b+1}], {cc}"
def red_16(e, x, tmp, op):
    e(f"v_mov_b32 v{tmp}, v{x}")
    e(f"v_permlane16_swap_b32 v{x}, v{tmp}")
    e(f"{op} v{x}, v{x}, v{tmp}")
def red_q(e, x, tmp, op):
    red_16(e, x, tmp, op)
    e(f"v_mov_b32 v{tmp}, v{x}")
    e(f"v_permlane32_swap_b32 v{x}, v{tmp}")
    e(f"{op} v{x}, v{x}, v{tmp}")

def gen_final(g):
    def e(s_):
        if O.fx and getattr(g, "intile", False):
            mn = s_.split()[0]
            if "m" in O.fx and mn.startswith("v_mfma"): return
            if "c" in O.fx and mn.startswith("v_cvt_pk"): return
            if "p" in O.fx and mn.startswith("v_pk_"): return
            if "t" in O.fx and mn in ("v_exp_f32", "v_rcp_f32", "v_rsq_f32"): return
            if "d" in O.fx and (mn.startswith("v_dot2") ): return
            if "x" in O.fx and (mn.startswith("v_permlane") or "dpp" in mn): return
            if "s" in O.fx and mn.startswith("buffer_store"): return
            if "v" in O.fx and mn.startswith("v_") and not mn.startswith("v_mfma") and not mn.startswith("v_add_u32") and not mn.startswith("v_lshl_add"): return
        g.e(s_)
    S = 60
    e("s_waitcnt lgkmcnt(0)")
    e("s_lshl_b32 s62, 1, s3")
    e(f"v_mov_b32 v0, {L_FLAG + 36}")
    e("v_mov_b32 v1, s62")
    e("s_mov_b64 exec, 1")
    e("ds_or_b32 v0, v1")
    e("s_mov_b64 exec, -1")
    e("s_setprio 0")
    e("F_SETUP:")
    e("v_mbcnt_lo_u32_b32 v20, -1, 0")
    e("v_mbcnt_hi_u32_b32 v20, -1, v20")
    e("v_lshlrev_b32 v32, 4, v20")
    e(f"v_add_u32 v32, {L_WF}, v32")
    for f in range(16):
        e(f"ds_read_b128 v[{WM+4*f}:{WM+4*f+3}], v32 offset:{1024*f}")
    e(f"ds_read_b128 v[{SA}:{SA+3}], v32 offset:16384")
    e(f"ds_read_b128 v[{SA+4}:{SA+7}], v32 offset:{16384 + 1024}")
    e(f"v_mov_b32 v33, {L_WF + 16384 + 2048}")
    e(f"ds_read_b32 v{fOUT}, v33")
    e("v_lshrrev_b32 v21, 4, v20")
    e("v_and_b32 v22, 15, v20")
    e("v_lshrrev_b32 v33, 3, v22")
    e("v_and_b32 v35, 7, v22")
    e(f"s_movk_i32 s63, {TOKROW}")
    e(f"v_mul_u32_u24 v{fLC}, s63, v35")
    e(f"v_lshl_add_u32 v{fLC}, v21, 5, v{fLC}")
    e(f"s_movk_i32 s63, {TOKNODE}")
    e(f"v_mad_u32_u24 v{fLC}, v33, s63, v{fLC}")
    e(f"v_add_u32 v{fLC}, {L_TOK}, v{fLC}")
    e(f"v_lshlrev_b32 v{fRC}, 2, v22")
    e(f"v_add_u32 v{fRC}, {L_R}, v{fRC}")
    e(f"v_lshlrev_b32 v{fRR}, 4, v21")
    e(f"v_add_u32 v{fRR}, {L_R}, v{fRR}")
    e("v_lshrrev_b32 v44, 1, v21")
    e(f"v_lshlrev_b32 v{fNO}, 2, v44")
    e(f"v_add_u32 v{fNO}, {L_NODEOF}, v{fNO}")
    e("v_lshrrev_b32 v40, 2, v22")
    e("v_and_b32 v41, 3, v22")
    e("v_cmp_eq_u32 s[62:63], v40, v21")
    e("v_and_b32 v42, 1, v41")
    e("v_lshlrev_b32 v42, 4, v42")
    e("v_mov_b32 v43, 0x3f80")
    e("v_lshlrev_b32 v43, v42, v43")
    e("v_cndmask_b32 v43, 0, v43, s[62:63]")
    e("v_cmp_gt_u32 vcc, 2, v41")
    e(f"v_cndmask_b32 v{ID}, 0, v43, vcc")
    e(f"v_cndmask_b32 v{ID+1}, v43, 0, vcc")
    e(f"v_mov_b32 v{Q25}, 0x3e803e80"); e(f"v_mov_b32 v{Q25+1}, 0x3e803e80")
    e(f"v_cmp_eq_u32 s[{sPM}:{sPM+1}], v44, v33")
    e("v_lshl_add_u32 v45, v40, 4, v41")
    e("v_and_b32 v46, 1, v21")
    e("v_lshl_add_u32 v45, v46, 2, v45")
    e(f"v_lshlrev_b32 v{fFO}, 1, v45")
    e(f"s_mov_b32 s{sC}, 0x3c800000")
    e(f"s_mov_b32 s{sC+1}, 0x3727c5ac")
    e(f"s_mov_b32 s{sC+2}, 0xffff0000")
    e(f"s_mov_b32 s{sC+3}, 0x3fb8aa3b")
    e(f"s_mul_i32 s{sC+4}, s2, 12800")
    if O.dbgstat: e(f"s_mov_b32 s{sC+5}, 0")
    e("s_waitcnt lgkmcnt(0)")
    e(f"v_readfirstlane_b32 s{sC+6}, v{fOUT}")
    CO = L_FLAG + 32 - L_NODEOF
    e("F_NEXT:")
    e("s_mov_b64 exec, 1")
    e(f"ds_inc_rtn_u32 v{S}, v{fNO}, v{fNO} offset:{CO}")
    e("F_POLL:")
    e(f"ds_read_b32 v{S+1}, v{fNO} offset:{CO + 4}")
    e("s_mov_b64 exec, -1")
    e("s_waitcnt lgkmcnt(0)")
    e(f"v_readfirstlane_b32 s{sTILE}, v{S}")
    e(f"v_readfirstlane_b32 s{sMASK}, v{S+1}")
    e(f"s_cmp_ge_u32 s{sTILE}, {NTILE * (O.fbench or 1)}")
    e("s_cbranch_scc1 F_DONE")
    if O.fbench:
        e(f"s_and_b32 s{sTILE}, s{sTILE}, 31"); e("s_branch F_GO")
    e(f"s_lshr_b32 s62, s{sTILE}, 2")
    e(f"s_bitcmp1_b32 s{sMASK}, s62")
    e("s_cbranch_scc1 F_GO")
    e(f"s_sleep {O.fsleep}")
    e("s_mov_b64 exec, 1")
    e("s_branch F_POLL")
    e("F_GO:")
    g.intile = True
    if O.dbgstat: e(f"s_add_u32 s{sC+5}, s{sC+5}, 1")
    e(f"s_mul_i32 s62, s{sTILE}, {2*TOKNODE}")
    e(f"s_lshl_b32 s63, s{sTILE}, 6")
    e(f"s_lshl_b32 s64, s{sTILE}, 3")
    RR, RC, NODE = TT, TT + 4, TT + 6
    e(f"v_add_u32 v{S}, s62, v{fLC}")
    e(f"ds_read_b128 v[{TOK}:{TOK+3}], v{S}")
    e(f"ds_read_b128 v[{TOK+4}:{TOK+7}], v{S} offset:16")
    e(f"v_add_u32 v{S+1}, s63, v{fRR}")
    e(f"ds_read_b128 v[{RR}:{RR+3}], v{S+1}")
    e(f"v_add_u32 v{S+2}, s63, v{fRC}")
    e(f"ds_read_b32 v{RC}, v{S+2}")
    e(f"v_add_u32 v{S+3}, s64, v{fNO}")
    e(f"ds_read_b32 v{NODE}, v{S+3}")
    e("s_waitcnt lgkmcnt(3)")
    for T in range(4): e(m32(ACC + 4*T, WM + 8*T, TOK, None))
    for T in range(4): e(m32(ACC + 4*T, WM + 8*T + 4, TOK + 4, ACC + 4*T))
    for h in range(8):
        e(f"v_cvt_pk_bf16_f32 v{U+h}, v{ACC+2*h}, v{ACC+2*h+1}")
    e(m32(S, TOK, U, None)); e(m32(S, TOK + 4, U + 4, S))
    for T in range(4): e(m32(ACC + 4*T, TOK, WV + 8*T, None))
    for T in range(4): e(m32(ACC + 4*T, TOK + 4, WV + 8*T + 4, ACC + 4*T))
    e("s_waitcnt lgkmcnt(0)")
    e(f"v_lshl_add_u32 v{NODE}, v{NODE}, 7, v{fFO}")
    e(f"v_pk_mul_f32 v[{S}:{S+1}], v[{S}:{S+1}], v[{RR}:{RR+1}]")
    e(f"v_pk_mul_f32 v[{S+2}:{S+3}], v[{S+2}:{S+3}], v[{RR+2}:{RR+3}]")
    t0, t1 = U, U + 1
    e(f"v_max3_f32 v{t0}, v{S}, v{S+1}, v{S+2}")
    e(f"v_max_f32 v{t0}, v{t0}, v{S+3}")
    red_16(e, t0, t1, "v_max_f32")
    e(f"v_mul_f32 v{t0}, v{RC}, v{t0}")
    e(f"v_pk_fma_f32 v[{S}:{S+1}], v[{S}:{S+1}], v[{RC}:{RC+1}], v[{t0}:{t0+1}] op_sel_hi:[1,0,0] neg_lo:[0,0,1] neg_hi:[0,0,1]")
    e(f"v_pk_fma_f32 v[{S+2}:{S+3}], v[{S+2}:{S+3}], v[{RC}:{RC+1}], v[{t0}:{t0+1}] op_sel_hi:[1,0,0] neg_lo:[0,0,1] neg_hi:[0,0,1]")
    for b in range(4): e(f"v_exp_f32 v{S+b}, v{S+b}")
    e(f"v_pk_add_f32 v[{t0}:{t0+1}], v[{S}:{S+1}], v[{S+2}:{S+3}]")
    e(f"v_add_f32 v{t0}, v{t0}, v{t1}")
    red_16(e, t0, t1, "v_add_f32")
    e(f"v_rcp_f32 v{t0}, v{t0}")
    e(f"v_cndmask_b32 v{t0}, 0, v{t0}, s[{sPM}:{sPM+1}]")
    e(f"v_pk_mul_f32 v[{RR}:{RR+1}], v[{RR}:{RR+1}], v[{t0}:{t0+1}] op_sel_hi:[1,0]")
    e(f"v_pk_mul_f32 v[{RR+2}:{RR+3}], v[{RR+2}:{RR+3}], v[{t0}:{t0+1}] op_sel_hi:[1,0]")
    e(f"v_pk_mul_f32 v[{S}:{S+1}], v[{S}:{S+1}], v[{RR}:{RR+1}]")
    e(f"v_pk_mul_f32 v[{S+2}:{S+3}], v[{S+2}:{S+3}], v[{RR+2}:{RR+3}]")
    PP = fPP
    e(f"v_cvt_pk_bf16_f32 v{PP}, v{S}, v{S+1}")
    e(f"v_cvt_pk_bf16_f32 v{PP+1}, v{S+2}, v{S+3}")
    e(f"v_mov_b32 v{fOUT}, v{NODE}")
    for h in range(8):
        e(f"v_cvt_pk_bf16_f32 v{U+h}, v{ACC+2*h}, v{ACC+2*h+1}")
    for T in range(4): e(m16(ACC + 4*T, U + 2*T, PP, None))
    for T in range(4): e(m16(ACC + 4*T, ID, TOK + 2*T, ACC + 4*T))
    for h in range(8):
        e(f"v_cvt_pk_bf16_f32 v{TT+h}, v{ACC+2*h}, v{ACC+2*h+1}")
    for T in range(4): e(m16(ACC + 4*T, PP, U + 2*T, None))
    for T in range(4): e(m16(ACC + 4*T, TOK + 2*T, ID, ACC + 4*T))
    e(m32(S, SA, TT, None)); e(m32(S, SA + 4, TT + 4, S))
    q = TOK
    e(f"v_dot2_f32_bf16 v{PP}, v{TT}, v{TT}, 0")
    e(f"v_dot2_f32_bf16 v{PP+1}, v{TT+1}, v{TT+1}, 0")
    for r in range(2, 8):
        e(f"v_dot2_f32_bf16 v{PP+r%2}, v{TT+r}, v{TT+r}, v{PP+r%2}")
    e(f"v_add_f32 v{q}, v{PP}, v{PP+1}")
    red_q(e, q, q + 1, "v_add_f32")
    e(f"v_mul_f32 v{q+2}, s{sC}, v{S}")
    e(f"v_mul_f32 v{q+3}, v{q+2}, v{q+2}")
    e(f"v_fma_f32 v{q}, v{q}, s{sC}, -v{q+3}")
    e(f"v_max_f32 v{q}, 0, v{q}")
    e(f"v_add_f32 v{q}, s{sC+1}, v{q}")
    e(f"v_rsq_f32 v{q+4}, v{q}")
    e(f"v_fma_f32 v{q+5}, -v{q+2}, s{sC+6}, v{S+1}")
    e(f"v_mul_f32 v{q+5}, s{sC+3}, v{q+5}")
    e(f"v_mul_f32 v{q}, v{q+4}, v{q+5}")
    for i, mod in enumerate(("quad_perm:[1,0,3,2]", "quad_perm:[2,3,0,1]", "row_half_mirror")):
        src = q if i == 0 else q + 1
        e(f"v_max_f32_dpp v{q+1}, v{src}, v{src} {mod} row_mask:0xf bank_mask:0xf")
    e(f"v_sub_f32 v{q}, v{q}, v{q+1}")
    e(f"v_exp_f32 v{q}, v{q}")
    for i, mod in enumerate(("quad_perm:[1,0,3,2]", "quad_perm:[2,3,0,1]", "row_half_mirror")):
        src = q if i == 0 else q + 1
        e(f"v_add_f32_dpp v{q+1}, v{src}, v{src} {mod} row_mask:0xf bank_mask:0xf")
    e(f"v_rcp_f32 v{q+1}, v{q+1}")
    e(f"v_mul_f32 v{q}, v{q}, v{q+1}")
    e(f"v_and_b32 v{q+1}, s{sC+2}, v{q}")
    e(f"v_sub_f32 v{q}, v{q}, v{q+1}")
    e(f"v_cvt_pk_bf16_f32 v{q+2}, v{q+1}, v{q}")
    e(f"v_mov_b32 v{q+3}, 0")
    e(m16(S, q + 2, Q25, None))
    for T in range(4):
        a = ACC + 4*T
        e(f"v_pk_mul_f32 v[{a}:{a+1}], v[{a}:{a+1}], v[{S}:{S+1}]")
        e(f"v_pk_fma_f32 v[{a}:{a+1}], v[{a+2}:{a+3}], v[{S+2}:{S+3}], v[{a}:{a+1}]")
        e(f"v_add_f32 v{a}, v{a}, v{a+1}")
    e(f"v_permlane16_swap_b32 v{ACC}, v{ACC+4}")
    e(f"v_permlane16_swap_b32 v{ACC+8}, v{ACC+12}")
    e(f"v_add_f32 v{ACC}, v{ACC}, v{ACC+4}")
    e(f"v_add_f32 v{ACC+8}, v{ACC+8}, v{ACC+12}")
    e(f"v_cvt_pk_bf16_f32 v{fST}, v{ACC}, v{ACC+8}")
    e(f"buffer_store_short v{fST}, v{fOUT}, s[{sOUT}:{sOUT+3}], s{sC+4} offen")
    e(f"buffer_store_short_d16_hi v{fST}, v{fOUT}, s[{sOUT}:{sOUT+3}], s{sC+4} offen offset:16")
    g.intile = False
    e("s_branch F_NEXT")
    e("F_DONE:")


def gen_p(g):
    e = g.e
    SC = " sc1"
    dbg = O.dbgstat
    GQ = O.gq
    kernel_header(g, "graph_kernel")
    e(f"s_cmp_ge_u32 s2, {NB}")
    e("s_cbranch_scc1 P_END")
    e("s_load_dwordx8 s[4:11], s[0:1], 0")
    e("s_load_dwordx2 s[12:13], s[0:1], 88")
    e("s_load_dwordx2 s[14:15], s[0:1], 72")
    e("s_load_dwordx2 s[16:17], s[0:1], 64")
    if dbg: e("s_memrealtime s[90:91]")
    e(f"v_and_b32 v{vLANE}, 63, v0")
    e("v_lshrrev_b32 v40, 6, v0")
    e("v_lshlrev_b32 v45, 4, v0")
    e("v_readfirstlane_b32 s3, v40")
    e(f"s_movk_i32 s{s128}, 128")
    e(f"s_mov_b32 s{sONES}, 0x3f803f80")
    e("s_lshr_b32 s62, s2, 1"); e("s_and_b32 s62, s62, 0x7c"); e("s_and_b32 s63, s2, 7"); e("s_lshl_b32 s63, s63, 7"); e("s_or_b32 s62, s62, s63")
    e("v_and_b32 v52, 0xfffffffc, v0")
    e("v_lshlrev_b32 v52, 8, v52")
    e("s_waitcnt lgkmcnt(0)")
    srd(g, sTAB, 12, 13, NB * 1024, add=hex(WS_TAB))
    e(f"buffer_load_dword v53, v52, s[{sTAB}:{sTAB+3}], s62 offen")
    srd(g, sWS, 12, 13, hex(WS_BYTES))
    srd(g, sX, 4, 5, 3200000)
    srd(g, sDIS, 10, 11, 50000)
    e("s_mul_i32 s63, s2, 12800")
    e(f"buffer_load_dwordx4 v[32:35], v45, s[{sX}:{sX+3}], s63 offen")
    e("v_lshlrev_b32 v54, 1, v0")
    e("s_mul_i32 s64, s2, 200")
    e(f"buffer_load_ushort v55, v54, s[{sDIS}:{sDIS+3}], s64 offen")
    e(f"s_mov_b32 s65, {hex(WS_WF)}")
    e(f"buffer_load_dwordx4 v[60:63], v45, s[{sWS}:{sWS+3}], s65 offen")
    e(f"s_add_u32 s65, s65, 0x4000")
    e(f"v_min_u32 v41, {WFX - 16}, v45")
    e(f"buffer_load_dwordx4 v[36:39], v41, s[{sWS}:{sWS+3}], s65 offen")
    srd(g, sOUT, 14, 15, 3200000)
    for r in range(4): e(f"v_mov_b32 v{48+r}, -1")
    for r in range(4): e(f"v_mov_b32 v{124+r}, 0")
    e("ds_write_b128 v45, v[48:51]")
    nextra = (L_CNT - 16384) // 16
    e(f"v_cmp_gt_u32 vcc, {nextra}, v0")
    e("s_and_saveexec_b64 s[64:65], vcc")
    e("ds_write_b128 v45, v[48:51] offset:16384")
    e("s_mov_b64 exec, s[64:65]")
    nz = (L_WF - L_CNT) // 16
    e(f"s_movk_i32 s62, {nz}")
    e("v_cmp_gt_u32 vcc, s62, v0")
    e("s_and_saveexec_b64 s[64:65], vcc")
    e(f"ds_write_b128 v45, v[124:127] offset:{L_CNT}")
    e("s_mov_b64 exec, s[64:65]")
    e("s_movk_i32 s62, 800")
    e("v_cmp_gt_u32 vcc, s62, v0")
    e(f"s_mov_b64 s[{sM800}:{sM800+1}], vcc")
    e("v_lshrrev_b32 v64, 2, v0")
    e("v_and_b32 v65, 3, v0")
    e("s_movk_i32 s66, 12800")
    e("v_mul_u32_u24 v66, s66, v64")
    e("v_lshl_add_u32 v66, v65, 4, v66")
    e("v_lshlrev_b32 v69, 2, v65")
    e("s_waitcnt vmcnt(4)")
    if dbg: e("s_memrealtime s[78:79]")
    e("v_and_b32 v67, 0xffff, v53")
    e("v_lshrrev_b32 v68, 16, v53")
    e("v_lshl_add_u32 v66, v67, 2, v66")
    e("v_sub_u32 v69, v68, v69")
    R = 72
    OLD = 84
    e(f"buffer_load_dwordx4 v[{R}:{R+3}], v66, s[{sWS}:{sWS+3}], 0 offen")
    e("v_cmp_lt_i32 vcc, 16, v69")
    e(f"s_mov_b32 s{sI1}, 0"); e(f"s_mov_b32 s{sI2}, 0")
    e("s_cbranch_vccz P_NOI1")
    e(f"s_mov_b32 s{sI1}, 1")
    e(f"buffer_load_dwordx4 v[{R+4}:{R+7}], v66, s[{sWS}:{sWS+3}], 0 offen offset:64")
    e("v_cmp_lt_i32 vcc, 32, v69")
    e("s_cbranch_vccz P_NOI1")
    e(f"s_mov_b32 s{sI2}, 1")
    e(f"buffer_load_dwordx4 v[{R+8}:{R+11}], v66, s[{sWS}:{sWS+3}], 0 offen offset:128")
    e("P_NOI1:")
    e("v_cmp_lt_u32 vcc, 48, v68")
    e("s_waitcnt lgkmcnt(0)")
    e("s_barrier")
    e("s_and_saveexec_b64 s[64:65], vcc")
    e("v_mov_b32 v70, 1")
    e(f"v_mov_b32 v71, {L_FLAG}")
    e("ds_write_b32 v71, v70")
    e("s_mov_b64 exec, s[64:65]")
    if dbg: e("s_memrealtime s[80:81]")
    e("v_mov_b32 v70, 2"); e("v_mov_b32 v71, 0")
    e("s_waitcnt vmcnt(0)")
    if dbg: e("s_memrealtime s[82:83]")
    def atom(i):
        for u in range(4):
            r = R + 4 * i + u; o = OLD + 2 * (4 * i + u)
            e(f"v_cmpx_lt_i32 vcc, {16*i+u}, v69")
            e(f"v_lshrrev_b32 v108, 26, v{r}")
            e(f"v_bfe_u32 v109, v{r}, 16, 10")
            e(f"v_lshlrev_b64 v[110:111], v108, v[70:71]")
            e(f"ds_add_rtn_u64 v[{o}:{o+1}], v109, v[110:111] offset:{L_CNT}")
    atom(0)
    e(f"s_cmp_eq_u32 s{sI1}, 0"); e("s_cbranch_scc1 P_AT_D")
    atom(1)
    e(f"s_cmp_eq_u32 s{sI2}, 0"); e("s_cbranch_scc1 P_AT_D")
    atom(2)
    e("P_AT_D:")
    e("s_mov_b64 exec, -1")
    e(f"ds_write_b128 v45, v[60:63] offset:{L_WF}")
    e(f"ds_write_b128 v41, v[36:39] offset:{L_WF + 16384}")
    e("s_movk_i32 s66, 100")
    e("v_cmp_gt_u32 vcc, s66, v0")
    e("s_and_saveexec_b64 s[64:65], vcc")
    e("v_lshlrev_b32 v55, 16, v55")
    e("v_lshlrev_b32 v112, 2, v0")
    e(f"ds_write_b32 v112, v55 offset:{L_DISF}")
    e("s_mov_b64 exec, s[64:65]")
    e("v_lshrrev_b32 v112, 3, v0")
    e("v_and_b32 v113, 7, v0")
    e("v_mul_u32_u24 v116, 13, v113")
    e("v_lshlrev_b32 v117, 3, v116")
    e("v_lshlrev_b32 v118, 3, v112")
    e("v_sub_u32 v119, 127, v116")
    e("v_sub_u32 v120, 127, v112")
    e("v_lshlrev_b32 v114, 2, v112")
    e("s_mov_b32 s67, 0x10001")
    e(f"v_add_u32 v117, {L_CNT}, v117")
    e("s_waitcnt lgkmcnt(0)")
    e("s_barrier")
    if dbg: e("s_memrealtime s[84:85]")
    e(f"ds_read_b64 v[56:57], v118 offset:{L_CNT}")
    CB = 4
    for u in range(6):
        e(f"ds_read2_b64 v[{CB+4*u}:{CB+4*u+3}], v117 offset0:{2*u} offset1:{2*u+1}")
    e(f"ds_read_b64 v[{CB+24}:{CB+25}], v117 offset:96")
    e(f"ds_read_b32 v115, v114 offset:{L_DISF}")
    e("v_mov_b32 v121, 0")
    e("s_waitcnt lgkmcnt(8)")
    e("v_dot2_u32_u16 v58, v56, s67, v57")
    e("v_lshl_add_u32 v120, v58, 7, v120")
    e("s_waitcnt lgkmcnt(1)")
    for u in range(13):
        lo = CB + 2 * u
        e(f"v_dot2_u32_u16 v{lo}, v{lo}, s67, v{lo+1}")
        e(f"v_lshl_add_u32 v{lo}, v{lo}, 7, v119")
        e(f"v_add_u32 v{lo+1}, {u}, v120")
    for u0 in range(0, 13, 4):
        us = list(range(u0, min(u0 + 4, 13)))
        for i, u in enumerate(us):
            lo = CB + 2 * u
            e(f"v_cmp_gt_u32 s[{sTMP+2*i}:{sTMP+2*i+1}], v{lo}, v{lo+1}")
        for i, u in enumerate(us):
            e(f"v_addc_co_u32 v121, s[{sTMP+2*i}:{sTMP+2*i+1}], 0, v121, s[{sTMP+2*i}:{sTMP+2*i+1}]")
    e("v_add_u32_dpp v121, v121, v121 quad_perm:[1,0,3,2] row_mask:0xf bank_mask:0xf")
    e("v_add_u32_dpp v121, v121, v121 quad_perm:[2,3,0,1] row_mask:0xf bank_mask:0xf")
    e("v_add_u32_dpp v121, v121, v121 row_half_mirror row_mask:0xf bank_mask:0xf")
    rstat(g, 32, 36, 37, 38)
    e(f"s_movk_i32 s66, {TOKNODE}")
    e("v_mul_u32_u24 v37, s66, v121")
    e("v_lshl_add_u32 v37, v113, 4, v37")
    e("v_lshlrev_b32 v38, 5, v121")
    e(f"s_mov_b64 exec, s[{sM800}:{sM800+1}]")
    e(f"ds_write_b128 v37, v[32:35] offset:{L_TOK}")
    e(f"ds_write_b32 v38, v36 offset:{L_R}")
    e("s_mov_b64 exec, -1")
    e("s_movk_i32 s66, 100")
    e("v_cmp_gt_u32 s[62:63], s66, v112")
    e("v_cmp_eq_u32 vcc, 0, v113")
    e("s_waitcnt lgkmcnt(0)")
    e("s_and_b64 exec, vcc, s[62:63]")
    e("s_cbranch_execz P_RK_D")
    e("v_mov_b32 v60, v112")
    e(f"s_mov_b32 s66, {hex(thr_bits(O.thr[0]) << 16)}")
    e(f"s_mov_b32 s67, {hex(thr_bits(O.thr[1]) << 16)}")
    e(f"v_mov_b32 v114, {0 if O.revcls else 2}")
    e("v_cmp_gt_u32 vcc, s66, v115")
    e("v_cndmask_b32 v114, v114, 1, vcc")
    e("v_cmp_gt_u32 vcc, s67, v115")
    e(f"v_cndmask_b32 v114, v114, {2 if O.revcls else 0}, vcc")
    e(f"s_movk_i32 s66, {NODEB}")
    e(f"v_mov_b32 v62, {L_STREAM + NODEB - 2}")
    e("v_mad_u32_u24 v62, v121, s66, v62")
    e("v_sub_u32 v63, v62, v57")
    e("v_lshrrev_b32 v64, 16, v56")
    e("v_sub_u32 v65, v63, v64")
    e("v_and_b32 v65, 0xffff, v65")
    e("v_lshl_or_b32 v60+0, v60, 0, v60" if False else "v_lshl_or_b32 v66, v63, 16, v65")
    e("v_mov_b32 v67, v62")
    e(f"ds_write_b64 v118, v[66:67] offset:{L_INFO}")
    e("v_lshlrev_b32 v63, 2, v121")
    e(f"ds_write_b32 v63, v60 offset:{L_NODEOF}")
    e("v_lshrrev_b32 v63, 3, v121")
    e("v_lshlrev_b32 v63, 4, v63")
    e("v_add_u32 v64, v64, v57")
    e(f"ds_max_u32 v63, v58 offset:{L_GINFO}")
    e(f"ds_max_u32 v63, v64 offset:{L_GINFO+4}")
    e(f"ds_max_u32 v63, v57 offset:{L_GINFO+8}")
    e(f"ds_max_u32 v63, v114 offset:{L_GINFO+12}")
    e(f"s_movk_i32 s66, {2*PMAX}")
    e("v_cmp_lt_u32 vcc, s66, v58")
    e("s_and_b64 exec, exec, vcc")
    e("v_mov_b32 v63, 1")
    e(f"v_mov_b32 v64, {L_FLAG}")
    e("ds_write_b32 v64, v63")
    e("P_RK_D:")
    e("s_mov_b64 exec, -1")
    e(f"v_mov_b32 v60, {L_FLAG}")
    e("s_waitcnt lgkmcnt(0)")
    e("s_barrier")
    if dbg: e("s_memrealtime s[86:87]")
    e("ds_read_b32 v61, v60")
    def place_rd(i):
        for u in range(4):
            r = R + 4 * i + u
            e(f"v_bfe_u32 v109, v{r}, 16, 10")
            e(f"ds_read_b64 v[{112+2*u}:{113+2*u}], v109 offset:{L_INFO}")
    def place(i):
        for u in range(4):
            r = R + 4 * i + u; o = OLD + 2 * (4 * i + u)
            e(f"v_lshrrev_b32 v108, 26, v{r}")
            e(f"v_lshrrev_b64 v[{o}:{o+1}], v108, v[{o}:{o+1}]")
            e(f"v_lshrrev_b64 v[{112+2*u}:{113+2*u}], v108, v[{112+2*u}:{113+2*u}]")
            e(f"v_cmpx_lt_i32 vcc, {16*i+u}, v69")
            e(f"v_sub_u32_sdwa v109, v{112+2*u}, v{o} dst_sel:DWORD dst_unused:UNUSED_PAD src0_sel:WORD_0 src1_sel:WORD_0")
            e(f"ds_write_b16 v109, v{r}")
    place_rd(0)
    e("s_waitcnt lgkmcnt(4)")
    e(f"v_readfirstlane_b32 s{sSLOW}, v61")
    if O.forceslow:
        e("s_cmp_lt_u32 s2, 3"); e("s_cbranch_scc0 P_NOFS"); e(f"s_mov_b32 s{sSLOW}, 1"); e("P_NOFS:")
    e(f"s_cmp_lg_u32 s{sSLOW}, 0"); e("s_cbranch_scc1 P_PL_D")
    e("s_waitcnt lgkmcnt(0)")
    place(0)
    e(f"s_cmp_eq_u32 s{sI1}, 0"); e("s_cbranch_scc1 P_PL_D")
    place_rd(1); e("s_waitcnt lgkmcnt(0)"); place(1)
    e(f"s_cmp_eq_u32 s{sI2}, 0"); e("s_cbranch_scc1 P_PL_D")
    place_rd(2); e("s_waitcnt lgkmcnt(0)"); place(2)
    e("P_PL_D:")
    e("s_mov_b64 exec, -1")
    e("s_waitcnt lgkmcnt(0)")
    e("s_barrier")
    if dbg: e("s_memrealtime s[88:89]")
    if O.fbench:
        e("s_memrealtime s[62:63]")
        e("s_lshl_b32 s64, s2, 4"); e("s_add_u32 s64, s64, s3"); e("s_lshl_b32 s64, s64, 5")
        e(f"s_add_u32 s64, s64, 7"); e("s_lshl_b32 s64, s64, 3")
        e(f"s_add_u32 s64, s64, {hex(WS_STAMP)}")
        e("s_waitcnt lgkmcnt(0)")
        e("s_mov_b64 exec, 1")
        e(f"v_mov_b32 v32, s62"); e(f"v_mov_b32 v33, 0"); e(f"v_mov_b32 v34, s64")
        e(f"buffer_store_dwordx2 v[32:33], v34, s[{sWS}:{sWS+3}], 0 offen")
        e("s_mov_b64 exec, -1")
        e(f"s_cmp_ge_u32 s3, {O.fwaves}"); e("s_cbranch_scc1 P_END")
        e("s_branch F_SETUP")
    if O.only:
        e(f"s_cmp_ge_u32 s2, {O.only}"); e("s_cbranch_scc1 P_END")
    e(f"s_cmp_ge_u32 s3, {NGRP}")
    e("s_cbranch_scc1 F_SETUP")
    e(f"s_setprio {O.gprio}")
    if O.perm:
        pk = 0
        for w, gidx in enumerate(O.perm): pk |= gidx << (4 * w)
        e(f"s_mov_b32 s62, {hex(pk & 0xffffffff)}"); e(f"s_mov_b32 s63, {hex(pk >> 32)}")
        e("s_lshl_b32 s64, s3, 2"); e("s_lshr_b64 s[62:63], s[62:63], s64"); e("s_and_b32 s3, s62, 15")
    e("s_lshl_b32 s62, s3, 4")
    e(f"s_add_u32 s63, s62, {L_GINFO}")
    e("v_mov_b32 v62, s63")
    e("ds_read_b128 v[64:67], v62")
    e(f"v_lshlrev_b32 v62, 4, v{vLANE}")
    e(f"ds_read_b32 v63, v62 offset:{L_GINFO+12}")
    e(f"v_lshrrev_b32 v68, 4, v{vLANE}")
    e(f"v_bfe_u32 v69, v{vLANE}, 3, 1")
    e(f"v_and_b32 v70, 7, v{vLANE}")
    e(f"v_lshlrev_b32 v{vL16}, 4, v70")
    e("v_lshrrev_b32 v71, 1, v68")
    e("v_lshl_add_u32 v72, v71, 1, v69")
    e("v_and_b32 v73, 1, v68")
    e("v_lshl_add_u32 v73, v73, 2, v72")
    e("s_lshl_b32 s62, s3, 5")
    e(f"s_add_u32 s63, s62, {L_NODEOF}")
    e("v_lshl_add_u32 v74, v72, 2, s63")
    e("ds_read_b32 v75, v74")
    e("ds_read_b32 v76, v74 offset:16")
    e("v_lshl_add_u32 v74, v73, 2, s63")
    e("ds_read_b32 v77, v74")
    e("s_lshl_b32 s64, s3, 3")
    e("v_add_u32 v73, s64, v73")
    e("s_movk_i32 s66, 100")
    e("v_cmp_gt_u32 vcc, s66, v73")
    e(f"s_mov_b64 s[{sVALID}:{sVALID+1}], vcc")
    e(f"v_lshrrev_b32 v78, 3, v{vLANE}")
    e("v_add_u32 v78, s64, v78")
    e(f"s_movk_i32 s65, {NODEB}")
    e(f"v_mul_u32_u24 v{vIDXA}, s65, v78")
    if L_STREAM: e(f"v_add_u32 v{vIDXA}, {L_STREAM}, v{vIDXA}")
    e("s_waitcnt lgkmcnt(0)")
    for (n, d) in ((75, vDIS1), (76, vDIS2), (77, vDIS3)):
        e(f"v_lshlrev_b32 v74, 2, v{n}")
        e(f"ds_read_b32 v{d}, v74 offset:{L_DISF}")
    e("v_readfirstlane_b32 s65, v64")
    e("v_readfirstlane_b32 s66, v65")
    e("v_readfirstlane_b32 s67, v66")
    e("v_readfirstlane_b32 s68, v67")
    for c in range(3):
        e(f"v_cmp_eq_u32 vcc, {2-c}, v63")
        e(f"s_and_b32 s62, vcc_lo, 0x1fff")
        e(f"s_bcnt1_i32_b32 s{sN0+c}, s62")
    e(f"s_sub_u32 s68, 2, s68")
    e(f"s_lshl_b32 s69, s68, 2")
    e(f"s_add_u32 s{sCLSA}, s69, {L_FLAG + 16}")
    if O.onegate2:
        e(f"s_mov_b32 s{sCLSA}, {L_FLAG + 16}")
        for c in range(3): e(f"s_mov_b32 s{sN0+c}, {NGRP}")
    if O.ptab:
        for tab, dst in ((O.ptab, sPRI2), (O.ptab1, sPRI)):
            pk = [sum(tab[c][g_] << (2 * g_) for g_ in range(3)) for c in range(3)]
            e(f"s_mov_b32 s62, {pk[0] | pk[1] << 8 | pk[2] << 16}")
            e(f"s_lshl_b32 s69, s68, 3")
            e(f"s_lshr_b32 s{dst}, s62, s69")
            e(f"s_and_b32 s{dst}, s{dst}, 0xff")
    e(f"s_movk_i32 s64, {TOKNODE}")
    e(f"v_mul_u32_u24 v{vTOKA}, s64, v73")
    e(f"v_lshlrev_b32 v{vRA}, 5, v73")
    e(f"v_add_u32 v{vRA}, {L_R}, v{vRA}")
    e(f"v_add_u32 v{vTOKA}, v{vTOKA}, v{vL16}")
    e(f"v_add_u32 v{vTOKA}, {L_TOK}, v{vTOKA}")
    e("s_mul_i32 s64, s2, 100")
    e("v_add_u32 v77, s64, v77")
    e(f"v_lshl_add_u32 v{vGOFF}, v77, 7, v{vL16}")
    for src, dst in ((65, sP0), (66, sG1), (67, sG2)):
        e(f"s_lshr_b32 s{src}, s{src}, 1")
        if dst == sP0: e(f"s_max_u32 s{src}, s{src}, 2")
        e(f"s_min_u32 s{src}, s{src}, {PMAX}")
        e(f"s_sub_u32 s{dst}, {PMAX}, s{src}")
        e(f"s_andn2_b32 s{dst}, s{dst}, {GQ-1}")
    e(f"s_max_u32 s{sG1}, s{sG1}, s{sP0}")
    e(f"s_max_u32 s{sG2}, s{sG2}, s{sG1}")
    if O.onegate:
        e(f"s_mov_b32 s{sG1}, s{sP0}"); e(f"s_mov_b32 s{sG2}, s{sP0}")
    e(f"v_and_b32 v64, 7, v{vLANE}")
    e("v_lshrrev_b32 v65, 1, v64")
    e("v_and_b32 v66, 1, v64")
    e("v_lshlrev_b32 v66, 4, v66")
    e("v_mov_b32 v67, 0x3f80")
    e("v_lshlrev_b32 v67, v66, v67")
    e(f"v_lshrrev_b32 v68, 4, v{vLANE}")
    e(f"v_bfe_u32 v69, v{vLANE}, 3, 1")
    e("v_add_u32 v70, 2, v69")
    e("v_cmp_eq_u32 s[62:63], v68, v69")
    e("v_cmp_eq_u32 s[64:65], v68, v70")
    for r in range(4):
        e(f"v_cmp_eq_u32 vcc, {r}, v65")
        e(f"s_and_b64 s[68:69], vcc, s[62:63]")
        e(f"v_cndmask_b32 v{vA1+r}, 0, v67, s[68:69]")
        e(f"s_and_b64 s[68:69], vcc, s[64:65]")
        e(f"v_cndmask_b32 v{vA2+r}, 0, v67, s[68:69]")
    for i in range(RING): e(f"v_mov_b32 v{vOFF+i}, 0x7ffffff0")
    e(f"s_mov_b32 s{sK}, 1")
    e(f"s_mov_b32 s{sT0}, 0"); e(f"s_mov_b32 s{sT1}, 0"); e(f"s_mov_b32 s{sT2}, 0")
    e(f"s_mov_b32 s{sGI+2}, 3200000"); e(f"s_mov_b32 s{sGI+3}, {SRD3}")
    e(f"s_mov_b32 s{sGO+2}, 3200000"); e(f"s_mov_b32 s{sGO+3}, {SRD3}")
    e(f"s_add_u32 s{sGO}, s12, {hex(WS_G)}"); e(f"s_addc_u32 s{sGO+1}, s13, 0")
    PV = 0 if O.free else -1
    e(f"s_mov_b32 s{sPOI}, {hex(WS_G + 2 * WS_GS)}")
    for r in range(4): e(f"v_mov_b32 v{vX+r}, {PV}")
    e(f"s_mov_b64 exec, s[{sVALID}:{sVALID+1}]")
    e(f"buffer_store_dwordx4 v[{vX}:{vX+3}], v{vGOFF}, s[{sWS}:{sWS+3}], s{sPOI} offen{O.stp}")
    e("s_mov_b64 exec, -1")
    e(f"s_add_u32 s{sPOI}, s{sPOI}, {hex(WS_GS)}")
    e("s_waitcnt lgkmcnt(0)")
    def stamp(idx, val, pre=None):
        if pre is None: e("s_memrealtime s[62:63]")
        else: e(f"s_mov_b32 s62, s{pre}")
        e("s_lshl_b32 s64, s2, 4"); e("s_add_u32 s64, s64, s3"); e("s_lshl_b32 s64, s64, 5")
        e(f"s_add_u32 s64, s64, {idx}"); e("s_lshl_b32 s64, s64, 3")
        e(f"s_add_u32 s64, s64, {hex(WS_STAMP)}")
        e("s_waitcnt lgkmcnt(0)")
        e("s_mov_b64 exec, 1")
        e(f"v_mov_b32 v32, s62"); e(f"v_mov_b32 v33, {val}"); e(f"v_mov_b32 v34, s64")
        e(f"buffer_store_dwordx2 v[32:33], v34, s[{sWS}:{sWS+3}], 0 offen")
        e("s_mov_b64 exec, -1")
    if dbg:
        e("s_memtime s[66:67]"); e("s_waitcnt lgkmcnt(0)")
        stamp("20", "s66")
        stamp("0", f"s{sP0}")
        stamp("8", f"s{sG1}", pre=90)
        for i, r in enumerate((78, 80, 82, 84, 86, 88)): stamp(str(10 + i), f"s{sG2}", pre=r)
    if O.seq:
        e("s_lshl_b32 s62, s2, 4"); e("s_add_u32 s62, s62, s3"); e("s_mul_i32 s62, s62, 53248")
        e(f"v_lshlrev_b32 v33, 4, v{vLANE}")
        if O.seq == 3:
            e(f"v_lshrrev_b32 v33, 2, v{vLANE}"); e("v_lshlrev_b32 v33, 7, v33"); e(f"v_and_b32 v34, 3, v{vLANE}"); e("v_lshl_add_u32 v33, v34, 4, v33")
        if O.seq == 4:
            e(f"v_and_b32 v33, 15, v{vLANE}"); e("v_lshlrev_b32 v33, 4, v33")
        if O.seq == 5:
            e(f"v_and_b32 v33, 31, v{vLANE}"); e("v_lshlrev_b32 v33, 4, v33")
        if O.seq == 6:
            e(f"v_lshlrev_b32 v33, 7, v{vLANE}")
        e("v_add_u32 v32, s62, v33"); e("v_and_b32 v32, 0x1fffff, v32")
    e("P_HOP:")
    if O.hit:
        e(f"s_add_u32 s{sGI}, s12, {hex(WS_G)}"); e(f"s_addc_u32 s{sGI+1}, s13, 0")
    else:
        e(f"s_mov_b32 s{sGI}, s{sGO}"); e(f"s_mov_b32 s{sGI+1}, s{sGO+1}")
    e(f"s_add_u32 s{sGO}, s{sGO}, {hex(WS_GS)}"); e(f"s_addc_u32 s{sGO+1}, s{sGO+1}, 0")
    e(f"s_mov_b32 s{sTRY}, 0")
    e("s_mov_b32 s93, 0")
    e(f"s_cmp_lg_u32 s{sSLOW}, 0")
    e("s_cbranch_scc1 P_SLOWG")
    for i in range(8): e(f"v_mov_b32 v{vAC1+i}, 0")
    e(f"s_mov_b32 s{sGa}, s{sP0}"); e(f"s_mov_b32 s{sGb}, s{sG1}"); e(f"s_mov_b32 s{sGc}, s{sG2}")
    e(f"s_mov_b32 s{sTa}, s{sT0}"); e(f"s_mov_b32 s{sTb}, s{sT1}"); e(f"s_mov_b32 s{sTc}, s{sT2}")
    e(f"s_movk_i32 s{sGAD}, {L_FLAG + 16}")
    def rotate():
        e(f"s_mov_b32 s{sGa}, s{sGb}"); e(f"s_mov_b32 s{sGb}, s{sGc}"); e(f"s_movk_i32 s{sGc}, 255")
        e(f"s_mov_b32 s{sTa}, s{sTb}"); e(f"s_mov_b32 s{sTb}, s{sTc}")
        e(f"s_add_u32 s{sGAD}, s{sGAD}, 4")
    def rdcnt():
        e(f"v_mov_b32 v{vT1}, {L_FLAG + 16}" if O.onegate2 else f"v_mov_b32 v{vT1}, s{sGAD}")
        e(f"ds_read_b32 v{vT0}, v{vT1}")
        e("s_waitcnt lgkmcnt(0)")
        e(f"v_readfirstlane_b32 s62, v{vT0}")
        e(f"s_cmp_ge_u32 s62, s{sTa}")
    def setprio(tag):
        e(f"s_sub_u32 s62, s{sGAD}, {L_FLAG + 20}"); e("s_lshr_b32 s62, s62, 1")
        e(f"s_lshr_b32 s62, s{sPRI}, s62"); e("s_and_b32 s62, s62, 3")
        e("s_cmp_ge_u32 s62, 2"); e(f"s_cbranch_scc1 SP{tag}_H")
        e("s_cmp_eq_u32 s62, 1"); e(f"s_cbranch_scc1 SP{tag}_1")
        e("s_setprio 0"); e(f"s_branch SP{tag}_D")
        e(f"SP{tag}_1:"); e("s_setprio 1"); e(f"s_branch SP{tag}_D")
        e(f"SP{tag}_H:"); e("s_cmp_eq_u32 s62, 3"); e(f"s_cbranch_scc1 SP{tag}_3")
        e("s_setprio 2"); e(f"s_branch SP{tag}_D")
        e(f"SP{tag}_3:"); e("s_setprio 3")
        e(f"SP{tag}_D:")
    e("GW:")
    e(f"s_mov_b32 s{sCUR}, s{sGa}")
    e("GW1:")
    rdcnt()
    e("s_cbranch_scc1 GW2")
    e("s_add_u32 s93, s93, 1")
    e(f"s_cmp_gt_u32 s93, {TRYMAX*4}")
    e("s_cbranch_scc1 GW2")
    if O.gsleep: e(f"s_sleep {O.gsleep}")
    e("s_branch GW1")
    e("GW2:")
    if dbg:
        e(f"s_sub_u32 s65, s{sGAD}, {L_FLAG + 16}"); e("s_lshr_b32 s65, s65, 2"); e("s_add_u32 s65, s65, 16")
        e(f"s_cmp_eq_u32 s{sK}, 4"); e("s_cbranch_scc0 GW2b")
        stamp("s65", f"s{sCUR}")
        e("GW2b:")
    rotate()
    e(f"s_cmp_eq_u32 s{sGa}, s{sCUR}")
    e("s_cbranch_scc1 GW1")
    if O.ptab: setprio("W")
    e(f"s_andn2_b32 s{sI16}, s{sCUR}, 15")
    e(f"s_and_b32 s{sS0}, s{sCUR}, 15")
    e(f"s_sub_u32 s{sGREL}, s{sGa}, s{sI16}")
    e(f"s_add_u32 s{sEXS}, s{sS0}, 15"); e(f"s_and_b32 s{sEXS}, s{sEXS}, 15")
    e(f"s_lshl_b32 s63, s{sI16}, 1")
    e(f"v_add_u32 v{vIP}, s63, v{vIDXA}")
    e(f"s_lshr_b32 s64, s{sS0}, 3"); e("s_lshl_b32 s64, s64, 5")
    e(f"v_add_u32 v{vT0}, s64, v{vIP}")
    e(f"ds_read_b128 v[{vX}:{vX+3}], v{vT0}")
    e(f"ds_read_b128 v[{vY}:{vY+3}], v{vIP} offset:16")
    e("s_waitcnt lgkmcnt(0)")
    tree(g, sS0, list(range(0, 16, GQ)), lambda s: f"PA_{s}")
    def idxld(s):
        if s == 0:
            e("s_waitcnt lgkmcnt(0)"); e(f"ds_read_b128 v[{vY}:{vY+3}], v{vIP} offset:16")
        elif s == 8:
            e("s_waitcnt lgkmcnt(0)"); e(f"ds_read_b128 v[{vX}:{vX+3}], v{vIP} offset:32")
    def issue(s):
        r = (vX if s < 8 else vY) + (s % 8) // 2
        t = vOFF + s; d = vRING + 4 * s
        if O.seq in (1, 3, 4, 5, 6):
            e(f"v_add_u32 v32, {dict([(1,1024),(3,2048),(4,256),(5,512),(6,8192)])[O.seq]}, v32"); e(f"v_and_b32 v32, 0x1fffff, v32"); e(f"v_mov_b32 v{t}, v32")
        elif O.seq == 2:
            e(f"v_mad_u32_u16 v{t}, v{r}, s{s128}, v{vL16} op_sel:[{s%2},0,0,0]")
            e(f"v_readfirstlane_b32 s62, v{t}")
            e(f"s_and_b32 s62, s62, 0x3ffc00")
            e(f"v_add_u32 v{t}, s62, v33")
        else:
            e(f"v_mad_u32_u16 v{t}, v{r}, s{s128}, v{vL16} op_sel:[{s%2},0,0,0]")
        e(f"buffer_load_dwordx4 v[{d}:{d+3}], v{t}, s[{sGI}:{sGI+3}], 0 offen{O.ld}")
    def check(sl):
        s = vRING + 4 * sl
        if O.nocheck:
            e("s_mov_b64 vcc, 0"); return
        e(f"v_max3_u32 v{vT0}, v{s}, v{s+1}, v{s+2}")
        e(f"v_max_u32 v{vT0}, v{vT0}, v{s+3}")
        e(f"v_cmp_eq_u32 vcc, -1, v{vT0}")
    def mfmas(sl):
        s = vRING + 4 * sl
        if O.nomfma: return
        e(f"v_mfma_f32_16x16x32_bf16 v[{vAC1}:{vAC1+3}], v[{vA1}:{vA1+3}], v[{s}:{s+3}], v[{vAC1}:{vAC1+3}]")
        e(f"v_mfma_f32_16x16x32_bf16 v[{vAC2}:{vAC2+3}], v[{vA2}:{vA2+3}], v[{s}:{s+3}], v[{vAC2}:{vAC2+3}]")
    def wrap():
        e(f"s_add_u32 s{sI16}, s{sI16}, 16")
        e(f"s_sub_u32 s{sGREL}, s{sGREL}, 16")
        e(f"v_add_u32 v{vIP}, 32, v{vIP}")
    for s in range(16):
        e(f"PA_{s}:")
        if s % GQ == 0:
            e(f"s_cmp_eq_u32 s{sGREL}, {s}"); e(f"s_cbranch_scc1 GA_{s}")
            e(f"GAR_{s}:")
        idxld(s)
        issue(s)
        if s < 15:
            e(f"s_cmp_eq_u32 s{sEXS}, {s}"); e(f"s_cbranch_scc1 PB_{s+1}")
        else:
            e(f"s_cmp_eq_u32 s{sI16}, {PMAX-16}"); e("s_cbranch_scc1 PA_END")
            wrap()
            e(f"s_cmp_eq_u32 s{sEXS}, 15"); e("s_cbranch_scc0 PA_0")
    for s in range(16):
        e(f"PB_{s}:")
        e("s_waitcnt vmcnt(15)")
        check(s)
        e(f"s_cbranch_vccnz STB_{s}")
        e(f"RTB_{s}:")
        mfmas(s)
        if s % GQ == 0:
            e(f"s_cmp_eq_u32 s{sGREL}, {s}"); e(f"s_cbranch_scc1 GB_{s}")
            e(f"GBR_{s}:")
        idxld(s)
        issue(s)
    wrap()
    e(f"s_cmp_lt_u32 s{sI16}, {PMAX}"); e("s_cbranch_scc1 PB_0")
    for s in range(16):
        e(f"PD_{s}:")
        e(f"s_waitcnt vmcnt({15-s})")
        check(s)
        e(f"s_cbranch_vccnz STD_{s}")
        e(f"RTD_{s}:")
        mfmas(s)
    e("s_branch P_FLUSH")
    e("PA_END:")
    tree(g, sS0, list(range(0, 16, GQ)), lambda s: f"PD_{s}")
    for s in range(16):
        e(f"PC_{s}:")
        check(s)
        e(f"s_cbranch_vccnz STC_{s}")
        e(f"RTC_{s}:")
        mfmas(s)
        if (s + 1) % GQ == 0:
            e(f"s_cmp_eq_u32 s{sGSL}, {(s+1)%16}"); e("s_cbranch_scc1 GW")
    e("s_branch PC_0")
    for s in range(0, 16, GQ):
        e(f"GA_{s}:")
        e(f"s_call_b64 s[{sRET2}:{sRET2+1}], GT")
        e(f"s_cbranch_scc1 GAR_{s}")
        e("s_branch GA_CLOSED")
        e(f"GB_{s}:")
        e(f"s_call_b64 s[{sRET2}:{sRET2+1}], GT")
        e(f"s_cbranch_scc1 GBR_{s}")
        e("s_waitcnt vmcnt(0)")
        e(f"s_branch PC_{(s+1)%16}")
    e("GA_CLOSED:")
    e("s_waitcnt vmcnt(0)")
    tree(g, sS0, list(range(0, 16, GQ)), lambda s: f"PC_{s}")
    e("GT:")
    e(f"s_mov_b32 s{sCUR}, s{sGa}")
    e("GT1:")
    rdcnt()
    e(f"s_and_b32 s{sGSL}, s{sGa}, 15")
    e(f"s_cmp_ge_u32 s62, s{sTa}")
    e("s_cbranch_scc0 GT_RET")
    rotate()
    e(f"s_cmp_eq_u32 s{sGa}, s{sCUR}")
    e("s_cbranch_scc1 GT1")
    if O.ptab: setprio("T")
    e(f"s_sub_u32 s{sGREL}, s{sGa}, s{sI16}")
    e("s_cmp_eq_u32 s62, s62")
    e("GT_RET:")
    e(f"s_setpc_b64 s[{sRET2}:{sRET2+1}] ; @to " + " ".join(f"GAX_{s} GBX_{s}" for s in range(0, 16, GQ)))
    for s in range(16):
        for t in "BDC":
            e(f"ST{t}_{s}:")
            e(f"s_call_b64 s[{sRET}:{sRET+1}], POLL_{s}")
            e(f"s_branch RT{t}_{s}")
    for sl in range(RING):
        s = vRING + 4 * sl
        e(f"POLL_{sl}:")
        e(f"s_add_u32 s{sTRY}, s{sTRY}, 1")
        e(f"s_cmp_gt_u32 s{sTRY}, {TRYMAX}")
        e("s_cbranch_scc1 P_RET")
        if O.sleep: e(f"s_sleep {O.sleep}")
        e("s_mov_b64 exec, vcc")
        e(f"buffer_load_dwordx4 v[{s}:{s+3}], v{vOFF+sl}, s[{sGI}:{sGI+3}], 0 offen{SC}")
        e("s_mov_b64 exec, -1")
        e("s_waitcnt vmcnt(0)")
        check(sl)
        e(f"s_cbranch_vccnz POLL_{sl}")
        if sl < RING - 1: e("s_branch P_REFRESH")
    e("P_REFRESH:")
    for sl in range(RING):
        s = vRING + 4 * sl
        l = g.lab("RF")
        check(sl)
        e(f"s_cbranch_vccz {l}")
        e("s_mov_b64 exec, vcc")
        e(f"buffer_load_dwordx4 v[{s}:{s+3}], v{vOFF+sl}, s[{sGI}:{sGI+3}], 0 offen{SC}")
        e("s_mov_b64 exec, -1")
        e(f"{l}:")
    e("s_waitcnt vmcnt(0)")
    e("P_RET:")
    e(f"s_setpc_b64 s[{sRET}:{sRET+1}] ; @to " + " ".join(f"RT{t}_{p}" for t in "BDC" for p in range(16)))
    e("P_FLUSH:")
    if dbg:
        stamp(f"s{sK}", f"s{sTRY}")
    H = vF
    for b in range(4):
        e(f"v_mul_f32 v{vAC1+b}, v{vAC1+b}, v{vDIS1}")
        e(f"v_mul_f32 v{vAC2+b}, v{vAC2+b}, v{vDIS2}")
    e(f"v_cvt_pk_bf16_f32 v{H}, v{vAC1}, v{vAC1+1}")
    e(f"v_cvt_pk_bf16_f32 v{H+1}, v{vAC1+2}, v{vAC1+3}")
    e(f"v_cvt_pk_bf16_f32 v{H+2}, v{vAC2}, v{vAC2+1}")
    e(f"v_cvt_pk_bf16_f32 v{H+3}, v{vAC2+2}, v{vAC2+3}")
    e(f"v_permlane16_swap_b32 v{H}, v{H+2}")
    e(f"v_permlane16_swap_b32 v{H+1}, v{H+3}")
    e(f"s_mov_b64 exec, s[{sVALID}:{sVALID+1}]")
    e(f"s_cmp_eq_u32 s{sK}, 7")
    e("s_cbranch_scc1 P_NOG")
    G = vF + 4
    for r in range(4):
        e(f"v_lshlrev_b32 v{vF+8}, 16, v{H+r}")
        e(f"v_and_b32 v{vF+9}, 0xffff0000, v{H+r}")
        e(f"v_mul_f32 v{vF+8}, v{vF+8}, v{vDIS3}")
        e(f"v_mul_f32 v{vF+9}, v{vF+9}, v{vDIS3}")
        e(f"v_cvt_pk_bf16_f32 v{G+r}, v{vF+8}, v{vF+9}")
        e(f"v_min_u32 v{G+r}, -2, v{G+r}")
    e(f"buffer_store_dwordx4 v[{G}:{G+3}], v{vGOFF}, s[{sGO}:{sGO+3}], 0 offen{O.stg}")
    e("s_mov_b64 exec, 1")
    e(f"v_mov_b32 v{vF+11}, s{sCLSA}")
    e(f"v_mov_b32 v{vF+12}, 1")
    e(f"ds_add_u32 v{vF+11}, v{vF+12}")
    e(f"s_mov_b64 exec, s[{sVALID}:{sVALID+1}]")
    e(f"s_cmp_gt_u32 s{sK}, 4")
    e("s_cbranch_scc1 P_NOG")
    for r in range(4): e(f"v_mov_b32 v{vX+r}, {PV}")
    e(f"buffer_store_dwordx4 v[{vX}:{vX+3}], v{vGOFF}, s[{sWS}:{sWS+3}], s{sPOI} offen{O.stp}")
    e(f"s_add_u32 s{sPOI}, s{sPOI}, {hex(WS_GS)}")
    e("P_NOG:")
    e(f"s_mul_i32 s62, s{sK}, {TOKROW}")
    e(f"v_add_u32 v{vF+10}, s62, v{vTOKA}")
    e(f"ds_write_b128 v{vF+10}, v[{H}:{H+3}]")
    e(f"v_add_u32 v{vRA}, 4, v{vRA}")
    rstat(g, H, vF + 12, vF + 13, vF + 14)
    e(f"ds_write_b32 v{vRA}, v{vF+12}")
    e("s_mov_b64 exec, -1")
    if not O.nogate:
        for c in range(3): e(f"s_add_u32 s{sT0+c}, s{sT0+c}, s{sN0+c}")
    if O.ptab: e(f"s_mov_b32 s{sPRI}, s{sPRI2}")
    e(f"s_add_u32 s{sK}, s{sK}, 1")
    e(f"s_cmp_le_u32 s{sK}, {O.nhops}")
    e("s_cbranch_scc1 P_HOP")
    e("P_FINAL:")
    if O.ptab: e("s_setprio 0")
    if O.dump:
        e("s_waitcnt lgkmcnt(0)")
        e(f"s_mov_b64 exec, s[{sVALID}:{sVALID+1}]")
        e(f"v_sub_u32 v{vT0}, v{vGOFF}, v{vL16}")
        e(f"v_lshlrev_b32 v{vT0}, 3, v{vT0}")
        e(f"v_add_u32 v{vT0}, v{vT0}, v{vL16}")
        e(f"s_mov_b32 s62, {hex(WS_DUMP)}")
        for k in range(8):
            e(f"ds_read_b128 v[{vRING}:{vRING+3}], v{vTOKA} offset:{k*TOKROW}")
            e("s_waitcnt lgkmcnt(0)")
            e(f"buffer_store_dwordx4 v[{vRING}:{vRING+3}], v{vT0}, s[{sWS}:{sWS+3}], s62 offen offset:{k*128}")
            e("s_nop 1")
        e("s_mov_b64 exec, -1")
    gen_final(g)
    if dbg:
        e("s_memtime s[66:67]"); e("s_waitcnt lgkmcnt(0)")
        stamp("21", "s66")
        stamp("9", f"s{sC+5}")
        if O.amp:
            def off(x):
                if x == "k1s": return WS_STAMP + 0x100000
                if x == "k1e": return WS_STAMP + 0x100000 + 4
                return WS_STAMP + int(x) * 8
            a_, b_ = O.amp.split(",")
            e("s_lshl_b32 s62, s2, 4"); e("s_add_u32 s62, s62, s3"); e("s_cmp_lg_u32 s62, 0"); e("s_cbranch_scc1 P_END")
            e("s_waitcnt vmcnt(0)")
            e(f"v_mov_b32 v40, {hex(off(a_))}"); e(f"v_mov_b32 v41, {hex(off(b_))}")
            e(f"buffer_load_dword v42, v40, s[{sWS}:{sWS+3}], 0 offen sc1")
            e(f"buffer_load_dword v43, v41, s[{sWS}:{sWS+3}], 0 offen sc1")
            e("s_waitcnt vmcnt(0)")
            e("v_sub_u32 v42, v42, v43")
            e("v_readfirstlane_b32 s62, v42")
            e("s_min_u32 s62, s62, 10000")
            e("s_lshl_b32 s62, s62, 3")
            e("s_memrealtime s[64:65]"); e("s_waitcnt lgkmcnt(0)")
            e("AMPL:"); e("s_sleep 4"); e("s_memrealtime s[66:67]"); e("s_waitcnt lgkmcnt(0)")
            e("s_sub_u32 s63, s66, s64"); e("s_cmp_lt_u32 s63, s62"); e("s_cbranch_scc1 AMPL")
    e("s_branch P_END")
    e("P_SLOWG:")
    e(f"v_lshrrev_b32 v{vT0}, 3, v{vLANE}")
    e("s_lshl_b32 s62, s3, 5")
    e(f"s_add_u32 s62, s62, {L_NODEOF}")
    e(f"v_lshl_add_u32 v{vT1}, v{vT0}, 2, s62")
    e(f"ds_read_b32 v40, v{vT1}")
    e("s_lshl_b32 s62, s3, 3")
    e(f"v_add_u32 v{vT0}, s62, v{vT0}")
    e("s_mul_i32 s62, s2, 100")
    e("s_movk_i32 s63, 100")
    e(f"v_cmp_gt_u32 vcc, s63, v{vT0}")
    for i in range(8): e(f"v_mov_b32 v{vAC1+i}, 0")
    e(f"v_lshlrev_b32 v41, 4, v{vLANE}")
    srd(g, 88, 6, 7, 3200000)
    srd(g, 92, 8, 9, 3200000)
    e("s_waitcnt lgkmcnt(0)")
    e("v_add_u32 v40, s62, v40")
    e("v_cndmask_b32 v40, -1, v40, vcc")
    e("s_mov_b32 s66, 0")
    e("SG_CHUNK:")
    e("buffer_load_dwordx4 v[44:47], v41, s[92:95], s66 offen")
    e("buffer_load_dwordx4 v[48:51], v41, s[88:91], s66 offen")
    e("s_waitcnt vmcnt(0)")
    for u in range(4):
        e("s_mov_b32 s67, 0")
        e(f"SG_R{u}:")
        e("v_readlane_b32 s68, v40, s67")
        e("s_mov_b64 s[62:63], 0xff")
        e("s_lshl_b64 s[62:63], s[62:63], s67")
        e(f"v_cmp_eq_u32 s[64:65], s68, v{44+u}")
        e(f"SG_E{u}:")
        e("s_cmp_eq_u64 s[64:65], 0")
        e(f"s_cbranch_scc1 SG_N{u}")
        e("s_ff1_i32_b64 s69, s[64:65]")
        e("s_bitset0_b64 s[64:65], s69")
        e(f"v_readlane_b32 s68, v{48+u}, s69")
        e("s_lshl_b32 s68, s68, 7")
        e(f"v_add_u32 v42, s68, v{vL16}")
        e("v_mov_b32 v43, 0x7ffffff0")
        e("v_cndmask_b32 v42, v43, v42, s[62:63]")
        e(f"SG_P{u}:")
        e(f"buffer_load_dwordx4 v[52:55], v42, s[{sGI}:{sGI+3}], 0 offen{SC}")
        e("s_waitcnt vmcnt(0)")
        e(f"v_max3_u32 v{vT0}, v52, v53, v54")
        e(f"v_max_u32 v{vT0}, v{vT0}, v55")
        e(f"v_cmp_eq_u32 vcc, -1, v{vT0}")
        e(f"s_cbranch_vccz SG_A{u}")
        e(f"s_add_u32 s{sTRY}, s{sTRY}, 1")
        e(f"s_cmp_gt_u32 s{sTRY}, {TRYMAX}")
        e(f"s_cbranch_scc1 SG_A{u}")
        e("s_sleep 8")
        e(f"s_branch SG_P{u}")
        e(f"SG_A{u}:")
        e(f"v_mfma_f32_16x16x32_bf16 v[{vAC1}:{vAC1+3}], v[{vA1}:{vA1+3}], v[52:55], v[{vAC1}:{vAC1+3}]")
        e(f"v_mfma_f32_16x16x32_bf16 v[{vAC2}:{vAC2+3}], v[{vA2}:{vA2+3}], v[52:55], v[{vAC2}:{vAC2+3}]")
        e(f"s_branch SG_E{u}")
        e(f"SG_N{u}:")
        e("s_add_u32 s67, s67, 8")
        e("s_cmp_lt_u32 s67, 64")
        e(f"s_cbranch_scc1 SG_R{u}")
    e("s_add_u32 s66, s66, 1024")
    e("s_cmp_lt_u32 s66, 3200000")
    e("s_cbranch_scc1 SG_CHUNK")
    e("s_branch P_FLUSH")
    e("P_END:")
    e("s_endpgm")

def build(path):
    g = Gen()
    gen_k1(g)
    gen_p(g)
    L = []
    for line in g.L:
        L.append(line)
    out = []; cur = None
    for line in L:
        out.append(line)
        if line.startswith("GA_") and line.endswith(":") and line[3:-1].isdigit(): cur = "GAX_" + line[3:-1]
        elif line.startswith("GB_") and line.endswith(":") and line[3:-1].isdigit(): cur = "GBX_" + line[3:-1]
        if line.startswith("s_call_b64") and line.endswith("GT"):
            out.append(cur + ":")
    g.L = out
    kernel_desc(g, "bin_kernel", 80, 64)
    kernel_desc(g, "graph_kernel", 128, 100)
    launches = [f"; @launch kernel=bin_kernel grid=({NB+1},1,1) block=(1024,1,1) lds={K1_LDS}",
                f"; @launch kernel=graph_kernel grid=({NB},1,1) block=(1024,1,1) lds={P_LDS}"]
    s = finish(g, launches, "gather_scatter__hybrid_graph_tf_nagphormer__graph.s.ref")
    open(path, "w").write(s)
    return s

if __name__ == "__main__":
    import argparse
    ap = argparse.ArgumentParser()
    ap.add_argument("out")
    for f in ("dump", "nofinal", "dbgstat", "forceslow", "free", "nogate", "onegate", "hit", "nomfma", "nocheck", "revcls", "onegate2"): ap.add_argument("--" + f, action="store_true")
    ap.add_argument("--sleep", type=int, default=2); ap.add_argument("--gsleep", type=int, default=1)
    ap.add_argument("--nhops", type=int, default=7); ap.add_argument("--gq", type=int, default=2)
    ap.add_argument("--ptab", default=None); ap.add_argument("--ld", default="sc1"); ap.add_argument("--only", type=int, default=0); ap.add_argument("--seq", type=int, default=0); ap.add_argument("--ptab1", default=None); ap.add_argument("--thr", default="30,35"); ap.add_argument("--perm", default=None)
    ap.add_argument("--amp", default=None); ap.add_argument("--stp", default="sc1"); ap.add_argument("--stg", default="sc1")
    ap.add_argument("--gprio", type=int, default=1); ap.add_argument("--fsleep", type=int, default=2); ap.add_argument("--fbench", type=int, default=0); ap.add_argument("--fwaves", type=int, default=16); ap.add_argument("--fx", default="")
    a = ap.parse_args()
    O.gprio = a.gprio; O.fsleep = a.fsleep; O.fbench = a.fbench; O.fwaves = a.fwaves; O.fx = a.fx
    O.amp = a.amp; O.onegate2 = a.onegate2
    O.stp = " " + a.stp.replace("_", " "); O.stg = " " + a.stg.replace("_", " ")
    O.dump = a.dump; O.final = not a.nofinal; O.dbgstat = a.dbgstat; O.forceslow = a.forceslow; O.free = a.free
    O.nogate = a.nogate; O.onegate = a.onegate; O.sleep = a.sleep; O.gsleep = a.gsleep; O.nhops = a.nhops; O.gq = a.gq
    O.pat = None; O.hit = a.hit; O.revcls = a.revcls; O.only = a.only; O.seq = a.seq; O.nomfma = a.nomfma; O.nocheck = a.nocheck; O.ld = {"sc1": " sc1", "plain": "", "nt": " nt", "sc0": " sc0", "sc01": " sc0 sc1", "sc1nt": " sc1 nt"}[a.ld]
    O.ptab = [[int(c) for c in r] for r in a.ptab.split(",")] if a.ptab else None
    O.ptab1 = [[int(c)] * 3 for c in a.ptab1] if a.ptab1 else O.ptab
    O.thr = tuple(int(x) for x in a.thr.split(","))
    O.perm = [int(x) for x in a.perm.split(",")] if a.perm else None
    build(a.out)
    print("P_LDS", P_LDS)
```

```python
import sys, os
sys.path.insert(0, os.path.dirname(os.path.abspath(__file__)))
from asmlib import fix_hazards
from gen import Gen, srd, kernel_header, kernel_desc, finish, NB, NPB, CH, WS_REC, WS_TAB, WS_G, WS_GS, WS_WF, WS_DUMP, WS_STAMP, WS_BYTES, SRD3

class Opt:
    dbgstat = False; dump = False; final = True; forceslow = False; free = False
    sleep = 2; gsleep = 1; nhops = 7; gq = 2
    prio = None
    nogate = False
    onegate = False
    pat = None
    ptab1 = None
    hit = False
    revcls = False
    only = 0
    seq = 0
    nomfma = False; nocheck = False; ld = " sc1"
    ptab = None
    thr = (30, 35)
    perm = None
    amp = None
    onegate2 = False
    revtile = False
    stag = 0
    stagk = 7
    stagp = 1
    sord = None
    mrg = False
    stp = " sc1"; stg = " sc1"
    gprio = 1; fsleep = 2; fbench = 0; fwaves = 16; fx = ""
O = Opt()
import struct
def bf16bits(x):
    u = struct.unpack("<I", struct.pack("<f", x))[0]
    return (u + 0x7FFF + ((u >> 16) & 1)) >> 16
def thr_bits(d):
    return bf16bits((d + 1.0) ** -0.5)

PMAX = 80
NODEB = PMAX * 2
GSZ = 8 * NODEB
NGRP = 13
TOKROW = 144
TOKNODE = 8 * TOKROW
L_STREAM = 0
L_CNT = 104 * NODEB + 64
L_INFO = L_CNT + 1024
L_NODEOF = L_INFO + 1024
L_GINFO = L_NODEOF + 512
L_DISF = L_GINFO + 256
L_FLAG = L_DISF + 512
L_WF = L_FLAG + 64
WFX = 2048 + 16
L_R = L_WF + 16384 + WFX
L_TOK = L_R + 104 * 32
P_LDS = L_TOK + 100 * TOKNODE
NTILE = 50
RING = 16
TRYMAX = 200000
NCLS = (4, 4, 5)

sWS, sGI, sGO, sX, sDIS, sTAB, sOUT, sWR = 20, 24, 28, 32, 36, 40, 44, 48
sK, sP0, sG1, sG2, sT0, sT1, sT2, sPOI = 52, 53, 54, 55, 56, 57, 58, 59
sM800 = 60
sTMP = 62
sVALID = 70
sI1, sI2 = 72, 73
sCLSA, sTRY = 72, 73
s128, sSLOW, sRET, sRET2 = 74, 75, 76, 78
sGa, sGb, sGc, sTa, sTb, sTc, sGAD, sI16, sS0, sGREL, sEXS, sGSL, sCUR = range(80, 93)
sN0, sPRI, sPRI2 = 94, 97, 98
sREL, sRBASE = 100, 101
sONES = 99
vTID, vLANE, vL16, vIDXA = 0, 1, 2, 3
vA1, vA2, vAC1, vAC2 = 4, 8, 12, 16
vIP, vT0, vT1 = 20, 21, 22
vX, vY = 24, 28
vRING = 40
vOFF = 104
vDIS1, vDIS2, vDIS3, vTOKA, vGOFF, vRA = 120, 121, 122, 123, 124, 125
vF = 40

K1_LDS = 2048 + 12800

def gen_k1(g):
    e = g.e
    kernel_header(g, "bin_kernel")
    e(f"s_cmp_gt_u32 s2, {NB}")
    e("s_cbranch_scc1 K1_END")
    e("s_load_dwordx8 s[4:11], s[0:1], 0")
    e("s_load_dwordx2 s[12:13], s[0:1], 88")
    if O.dbgstat: e("s_memrealtime s[52:53]")
    e(f"s_cmp_eq_u32 s2, {NB}")
    e("s_cbranch_scc1 K1_W")
    e("v_lshlrev_b32 v1, 4, v0")
    e("v_lshlrev_b32 v2, 2, v0")
    e("v_mov_b32 v3, 0")
    e("s_movk_i32 s14, 0x100")
    e("v_cmp_gt_u32 vcc, s14, v0")
    e("s_and_saveexec_b64 s[40:41], vcc")
    e("ds_write_b32 v2, v3")
    e("s_mov_b64 exec, s[40:41]")
    e("s_movk_i32 s14, 800")
    e("v_cmp_gt_u32 vcc, s14, v0")
    e("s_mov_b64 s[42:43], vcc")
    e("s_mul_i32 s14, s2, 12800")
    e("s_mul_i32 s15, s2, 200")
    e("v_lshrrev_b32 v4, 3, v0")
    e("v_lshlrev_b32 v4, 1, v4")
    e("s_waitcnt lgkmcnt(0)")
    srd(g, 16, 6, 7, 3200000)
    srd(g, 20, 8, 9, 3200000)
    srd(g, 24, 4, 5, 3200000)
    srd(g, 28, 10, 11, 50000)
    srd(g, 32, 12, 13, hex(WS_BYTES))
    e("s_mov_b64 exec, s[42:43]")
    e("s_cbranch_execz K1_NOLD")
    e("buffer_load_dwordx4 v[8:11], v1, s[20:23], s14 offen")
    e("buffer_load_dwordx4 v[12:15], v1, s[16:19], s14 offen")
    e("buffer_load_dwordx4 v[16:19], v1, s[24:27], s14 offen")
    e("buffer_load_ushort v20, v4, s[28:31], s15 offen")
    for r_ in range(4): e(f"v_mov_b32 v{24+r_}, {0 if O.free else -1}")
    e(f"s_add_u32 s44, s14, {hex(WS_G + WS_GS)}")
    e("buffer_store_dwordx4 v[24:27], v1, s[32:35], s44 offen")
    e("K1_NOLD:")
    e("s_mov_b64 exec, -1")
    e("s_waitcnt lgkmcnt(0)")
    e("s_barrier")
    e("s_mov_b64 exec, s[42:43]")
    e("s_cbranch_execz K1_B1")
    e("s_waitcnt vmcnt(4)")
    e("s_movk_i32 s45, 5243")
    e("s_movk_i32 s46, -100")
    e("v_mov_b32 v21, 1")
    for u in range(4):
        d = 8 + u
        e(f"v_mul_u32_u24 v{28+u}, s45, v{d}")
        e(f"v_lshrrev_b32 v{28+u}, 19, v{28+u}")
        e(f"v_mad_i32_i24 v{d}, v{28+u}, s46, v{d}")
        e(f"v_lshrrev_b32 v22, 1, v{28+u}")
        e(f"v_and_b32 v22, 0x7c, v22")
        e(f"v_and_b32 v{28+u}, 7, v{28+u}")
        e(f"v_lshl_or_b32 v{28+u}, v{28+u}, 7, v22")
        e(f"ds_add_rtn_u32 v{32+u}, v{28+u}, v21")
    e("s_waitcnt vmcnt(3)")
    for u in range(4):
        e(f"v_lshlrev_b32 v{52+u}, 1, v{12+u}")
        e(f"buffer_load_ushort v{56+u}, v{52+u}, s[28:31], 0 offen")
    for u in range(4):
        e(f"v_lshl_or_b32 v{8+u}, v{8+u}, 19, v{12+u}")
    e("s_waitcnt vmcnt(5)")
    e("v_lshlrev_b32 v20, 16, v20")
    for r in range(4):
        e(f"v_lshlrev_b32 v22, 16, v{16+r}")
        e(f"v_and_b32 v23, 0xffff0000, v{16+r}")
        e("v_mul_f32 v22, v22, v20")
        e("v_mul_f32 v23, v23, v20")
        e(f"v_cvt_pk_bf16_f32 v{16+r}, v22, v23")
    e(f"s_add_u32 s44, s14, {hex(WS_G)}")
    e("buffer_store_dwordx4 v[16:19], v1, s[32:35], s44 offen")
    e("K1_B1:")
    e("s_mov_b64 exec, -1")
    e("s_waitcnt lgkmcnt(0)")
    e("s_barrier")
    e("v_cmp_gt_u32 vcc, 64, v0")
    e("s_and_saveexec_b64 s[40:41], vcc")
    e("s_cbranch_execz K1_B2")
    e("ds_read_b128 v[40:43], v1")
    e("s_waitcnt lgkmcnt(0)")
    e("v_add_u32 v44, v40, v41")
    e("v_add_u32 v45, v44, v42")
    e("v_add_u32 v46, v45, v43")
    e("v_mov_b32 v47, v46")
    for sh in (1, 2, 4, 8):
        e(f"v_add_u32_dpp v47, v47, v47 row_shr:{sh} row_mask:0xf bank_mask:0xf bound_ctrl:0")
    e("v_add_u32_dpp v47, v47, v47 row_bcast:15 row_mask:0xa bank_mask:0xf")
    e("v_add_u32_dpp v47, v47, v47 row_bcast:31 row_mask:0xc bank_mask:0xf")
    e("v_sub_u32 v48, v47, v46")
    e("v_add_u32 v49, v48, v40")
    e("v_add_u32 v50, v48, v44")
    e("v_add_u32 v51, v48, v45")
    e("ds_write_b128 v1, v[48:51] offset:1024")
    e("s_lshl_b32 s46, s2, 10")
    e(f"s_add_u32 s46, s46, {hex(WS_TAB)}")
    for u in range(4):
        e(f"v_lshl_or_b32 v{40+u}, v{40+u}, 16, v{48+u}")
    e("buffer_store_dwordx4 v[40:43], v1, s[32:35], s46 offen")
    e("K1_B2:")
    e("s_mov_b64 exec, -1")
    e("s_waitcnt lgkmcnt(0)")
    e("s_barrier")
    e("s_mov_b64 exec, s[42:43]")
    e("s_cbranch_execz K1_B3")
    for u in range(4):
        e(f"ds_read_b32 v{36+u}, v{28+u} offset:1024")
    e(f"s_movk_i32 s47, {hex(thr_bits(O.thr[0]))}")
    e(f"s_movk_i32 s48, {hex(thr_bits(O.thr[1]))}")
    e("v_bfrev_b32 v60, 2")
    e("v_bfrev_b32 v61, 1")
    e("s_waitcnt vmcnt(1)")
    for u in range(4):
        e(f"v_cmp_gt_u32 vcc, s47, v{56+u}")
        e(f"v_cndmask_b32 v22, v61, v60, vcc" if O.revcls else f"v_cndmask_b32 v22, 0, v60, vcc")
        e(f"v_cmp_gt_u32 vcc, s48, v{56+u}")
        e(f"v_cndmask_b32 v22, v22, 0, vcc" if O.revcls else f"v_cndmask_b32 v22, v22, v61, vcc")
        e(f"v_or_b32 v{8+u}, v{8+u}, v22")
    e("s_waitcnt lgkmcnt(0)")
    for u in range(4):
        e(f"v_add_lshl_u32 v{36+u}, v{36+u}, v{32+u}, 2")
        e(f"ds_write_b32 v{36+u}, v{8+u} offset:2048")
    e("K1_B3:")
    e("s_mov_b64 exec, -1")
    e("s_waitcnt lgkmcnt(0)")
    e("s_barrier")
    e("s_mov_b64 exec, s[42:43]")
    e("s_cbranch_execz K1_END")
    e("ds_read_b128 v[40:43], v1 offset:2048")
    e("s_waitcnt lgkmcnt(0)")
    e("buffer_store_dwordx4 v[40:43], v1, s[32:35], s14 offen")
    if O.dbgstat:
        e("s_waitcnt vmcnt(0)")
        e("s_memrealtime s[54:55]")
        e("s_lshl_b32 s56, s2, 4"); e(f"s_add_u32 s56, s56, {hex(WS_STAMP + 0x100000)}")
        e("v_cmp_eq_u32 vcc, 0, v0"); e("s_and_b64 exec, exec, vcc")
        e("s_waitcnt lgkmcnt(0)")
        e("v_mov_b32 v40, s52"); e("v_mov_b32 v41, s54"); e("v_mov_b32 v42, s56")
        e("buffer_store_dwordx2 v[40:41], v42, s[32:35], 0 offen")
    e("s_endpgm")
    e("K1_W:")
    e("s_load_dwordx8 s[16:23], s[0:1], 32")
    e("v_lshrrev_b32 v1, 6, v0")
    e("v_and_b32 v2, 63, v0")
    e("v_readfirstlane_b32 s3, v1")
    e("v_lshrrev_b32 v3, 4, v2")
    e("v_and_b32 v4, 15, v2")
    e("s_lshr_b32 s24, s3, 2")
    e("s_and_b32 s25, s3, 3")
    e("v_lshrrev_b32 v5, 2, v4")
    e("v_and_b32 v6, 3, v4")
    e("v_lshl_add_u32 v7, v5, 4, v6")
    e("s_lshl_b32 s26, s25, 2")
    e("s_lshl_b32 s27, s24, 2")
    e("v_add_u32 v8, s26, v7")
    e("v_add_u32 v9, s27, v7")
    e("v_lshlrev_b32 v10, 7, v8")
    e("v_lshl_add_u32 v10, v3, 4, v10")
    e("v_lshlrev_b32 v11, 7, v9")
    e("v_lshl_add_u32 v11, v3, 4, v11")
    e("s_waitcnt lgkmcnt(0)")
    srd(g, 28, 16, 17, 8192)
    srd(g, 32, 18, 19, 8192)
    srd(g, 36, 20, 21, 8192)
    srd(g, 40, 22, 23, 8192)
    srd(g, 44, 12, 13, 16384 + WFX, add=hex(WS_WF))
    e("buffer_load_dwordx4 v[16:19], v10, s[28:31], 0 offen")
    e("buffer_load_dwordx4 v[20:23], v10, s[28:31], 0 offen offset:64")
    e("buffer_load_dwordx4 v[24:27], v11, s[32:35], 0 offen")
    e("buffer_load_dwordx4 v[28:31], v11, s[32:35], 0 offen offset:64")
    e("buffer_load_dwordx4 v[32:35], v10, s[36:39], 0 offen")
    e("buffer_load_dwordx4 v[36:39], v10, s[36:39], 0 offen offset:64")
    e("v_lshlrev_b32 v12, 10, v3")
    e("v_lshl_add_u32 v12, v9, 1, v12")
    e("s_movk_i32 s48, 0x1000")
    for sp in range(2):
        for j in range(8):
            off = (32 * sp + j) * 128
            so = "0"
            if off >= 4096:
                so = "s48"; off -= 4096
            e(f"buffer_load_ushort v{60 + sp*8 + j}, v12, s[40:43], {so} offen offset:{off}")
    for i in range(8): e(f"v_mov_b32 v{48+i}, 0")
    e("s_waitcnt vmcnt(0)")
    for r in range(8):
        e(f"v_lshl_or_b32 v{40+r}, v{61+2*r}, 16, v{60+2*r}")
    e("v_mfma_f32_16x16x32_bf16 v[48:51], v[16:19], v[24:27], v[48:51]")
    e("v_mfma_f32_16x16x32_bf16 v[52:55], v[32:35], v[40:43], v[52:55]")
    e("v_mfma_f32_16x16x32_bf16 v[48:51], v[20:23], v[28:31], v[48:51]")
    e("v_mfma_f32_16x16x32_bf16 v[52:55], v[36:39], v[44:47], v[52:55]")
    def ror_sum(x):
        for sh in (8, 4, 2, 1):
            e(f"v_add_f32_dpp v{x}, v{x}, v{x} row_ror:{sh} row_mask:0xf bank_mask:0xf")
    def redq(x, tmp):
        e(f"v_mov_b32 v{tmp}, v{x}"); e(f"v_permlane16_swap_b32 v{x}, v{tmp}"); e(f"v_add_f32 v{x}, v{x}, v{tmp}")
        e(f"v_mov_b32 v{tmp}, v{x}"); e(f"v_permlane32_swap_b32 v{x}, v{tmp}"); e(f"v_add_f32 v{x}, v{x}, v{tmp}")
    e("v_add_f32 v56, v48, v49"); e("v_add_f32 v57, v50, v51"); e("v_add_f32 v56, v56, v57")
    e("v_add_f32 v58, v52, v53"); e("v_add_f32 v59, v54, v55"); e("v_add_f32 v58, v58, v59")
    redq(56, 57); redq(58, 59)
    e("v_mov_b32 v60, v56"); ror_sum(60)
    for b in range(4):
        e(f"v_mov_b32 v{62+b}, v{48+b}"); ror_sum(62 + b)
    e("v_lshlrev_b32 v14, 4, v9")
    e("s_lshl_b32 s50, s25, 2")
    e("v_add_u32 v14, s50, v14")
    e("ds_write_b32 v14, v56")
    e("ds_write_b32 v14, v58 offset:1024")
    e("v_lshlrev_b32 v15, 8, v3")
    e("s_lshl_b32 s50, s25, 6"); e("s_lshl_b32 s51, s24, 2"); e("s_add_u32 s50, s50, s51")
    e("v_add_u32 v15, s50, v15")
    for b in range(4): e(f"ds_write_b32 v15, v{62+b} offset:{2048+16*b}")
    e("s_lshl_b32 s50, s3, 2"); e("v_mov_b32 v61, s50")
    e("ds_write_b32 v61, v60 offset:3072")
    e("s_waitcnt lgkmcnt(0)")
    e("s_barrier")
    e("v_lshlrev_b32 v14, 4, v9")
    e("ds_read_b128 v[16:19], v14")
    e("ds_read_b128 v[20:23], v14 offset:1024")
    e("v_lshlrev_b32 v15, 8, v3"); e("s_lshl_b32 s50, s25, 6"); e("v_add_u32 v15, s50, v15")
    for b in range(4): e(f"ds_read_b128 v[{24+4*b}:{27+4*b}], v15 offset:{2048+16*b}")
    e("v_mov_b32 v61, 3072")
    for b in range(4): e(f"ds_read_b128 v[{64+4*b}:{67+4*b}], v61 offset:{16*b}")
    e("s_waitcnt lgkmcnt(0)")
    def sum4(d, s0):
        e(f"v_add_f32 v{s0}, v{s0}, v{s0+1}"); e(f"v_add_f32 v{s0+2}, v{s0+2}, v{s0+3}"); e(f"v_add_f32 v{d}, v{s0}, v{s0+2}")
    sum4(16, 16); sum4(20, 20)
    for b in range(4): sum4(24 + 4 * b, 24 + 4 * b)
    for b in range(4): sum4(64 + 4 * b, 64 + 4 * b)
    e("v_add_f32 v64, v64, v68"); e("v_add_f32 v72, v72, v76"); e("v_add_f32 v64, v64, v72")
    e("s_mov_b32 s48, 0x3c800000")
    e("v_mul_f32 v64, s48, v64")
    e("v_sub_f32 v16, v16, v64")
    e("s_mov_b32 s49, 0x3e38aa3b")
    for b in range(4):
        e(f"v_add_f32 v17, v16, v{24+4*b}")
        e(f"v_fma_f32 v{48+b}, -v17, s48, v{48+b}")
        e(f"v_mul_f32 v{48+b}, s49, v{48+b}")
        e(f"v_fma_f32 v{52+b}, -v20, s48, v{52+b}")
    e("v_cvt_pk_bf16_f32 v56, v48, v49"); e("v_cvt_pk_bf16_f32 v57, v50, v51")
    e("v_cvt_pk_bf16_f32 v58, v52, v53"); e("v_cvt_pk_bf16_f32 v59, v54, v55")
    e("s_lshl_b32 s50, s24, 11")
    e("s_lshr_b32 s51, s25, 1"); e("s_lshl_b32 s51, s51, 10"); e("s_add_u32 s50, s50, s51")
    e("s_and_b32 s51, s25, 1"); e("s_lshl_b32 s51, s51, 3"); e("s_add_u32 s50, s50, s51")
    e("v_lshlrev_b32 v13, 4, v2")
    e("buffer_store_dwordx2 v[56:57], v13, s[44:47], s50 offen")
    e("s_add_u32 s50, s50, 8192")
    e("buffer_store_dwordx2 v[58:59], v13, s[44:47], s50 offen")
    e("s_cmp_lg_u32 s3, 0"); e("s_cbranch_scc1 K1_END")
    e("s_load_dwordx2 s[16:17], s[0:1], 64")
    e("v_lshlrev_b32 v23, 5, v3")
    e("s_waitcnt lgkmcnt(0)")
    srd(g, 28, 16, 17, 128)
    e("buffer_load_dwordx4 v[24:27], v23, s[28:31], 0 offen")
    e("buffer_load_dwordx4 v[28:31], v23, s[28:31], 0 offen offset:16")
    e("v_cmp_eq_u32 s[62:63], 0, v6")
    e("v_cmp_eq_u32 s[60:61], 1, v6")
    e("v_mov_b32 v47, 0x3f803f80")
    e("s_waitcnt vmcnt(0)")
    for r in range(8):
        e(f"v_cndmask_b32 v{32+r}, 0, v47, s[62:63]")
        e(f"v_cndmask_b32 v{32+r}, v{32+r}, v{24+r}, s[60:61]")
    for r in range(4): e(f"v_mov_b32 v{48+r}, 0x3f803f80")
    e("v_mfma_f32_16x16x32_bf16 v[52:55], v[32:35], v[48:51], 0")
    e("v_mfma_f32_16x16x32_bf16 v[52:55], v[36:39], v[48:51], v[52:55]")
    e("v_lshlrev_b32 v13, 4, v2")
    e("s_movk_i32 s50, 0x4000")
    e("buffer_store_dwordx4 v[32:35], v13, s[44:47], s50 offen")
    e("buffer_store_dwordx4 v[36:39], v13, s[44:47], s50 offen offset:1024")
    e("v_mov_b32 v52, v53"); e("v_mov_b32 v54, v53"); e("v_mov_b32 v55, v53")
    e("v_mov_b32 v13, 0"); e("s_movk_i32 s50, 0x4800")
    e("s_mov_b64 exec, 1")
    e("buffer_store_dwordx4 v[52:55], v13, s[44:47], s50 offen")
    e("K1_END:")
    e("s_endpgm")

def tree(g, sreg, vals, label):
    if len(vals) == 1:
        g.e(f"s_branch {label(vals[0])}"); return
    mid = len(vals) // 2
    l = g.lab("TR")
    g.e(f"s_cmp_ge_u32 s{sreg}, {vals[mid]}")
    g.e(f"s_cbranch_scc1 {l}")
    tree(g, sreg, vals[:mid], label)
    g.e(f"{l}:")
    tree(g, sreg, vals[mid:], label)

def rstat(g, H, r, t1, t2):
    e = g.e
    e(f"v_dot2_f32_bf16 v{r}, v{H}, v{H}, 0")
    e(f"v_dot2_f32_bf16 v{t1}, v{H}, s{sONES}, 0")
    for i in range(1, 4):
        e(f"v_dot2_f32_bf16 v{r}, v{H+i}, v{H+i}, v{r}")
        e(f"v_dot2_f32_bf16 v{t1}, v{H+i}, s{sONES}, v{t1}")
    for mod in ("quad_perm:[1,0,3,2]", "quad_perm:[2,3,0,1]", "row_half_mirror"):
        e(f"v_add_f32_dpp v{r}, v{r}, v{r} {mod} row_mask:0xf bank_mask:0xf")
        e(f"v_add_f32_dpp v{t1}, v{t1}, v{t1} {mod} row_mask:0xf bank_mask:0xf")
    e(f"v_mul_f32 v{t1}, 0x3c800000, v{t1}")
    e(f"v_mul_f32 v{t2}, v{t1}, v{t1}")
    e(f"v_mul_f32 v{r}, 0x3c800000, v{r}")
    e(f"v_sub_f32 v{r}, v{r}, v{t2}")
    e(f"v_max_f32 v{r}, 0, v{r}")
    e(f"v_add_f32 v{r}, 0x3727c5ac, v{r}")
    e(f"v_rsq_f32 v{r}, v{r}")


fLC, fRC, fRR, fNO, fFO, fOUT = 0, 1, 2, 3, 4, 5
ID, Q25 = 8, 10
SA = 12
TOK, TT, ACC, U = 20, 28, 36, 52
fPP = 6
fST = 36
WM, WV = 64, 96
sPM = 78
sC = 80
sTILE, sMASK = 88, 89

def m32(d, a, b, c):
    cc = "0" if c is None else f"v[{c}:{c+3}]"
    return f"v_mfma_f32_16x16x32_bf16 v[{d}:{d+3}], v[{a}:{a+3}], v[{b}:{b+3}], {cc}"
def m16(d, a, b, c):
    cc = "0" if c is None else f"v[{c}:{c+3}]"
    return f"v_mfma_f32_16x16x16_bf16 v[{d}:{d+3}], v[{a}:{a+1}], v[{b}:{b+1}], {cc}"
def red_16(e, x, tmp, op):
    e(f"v_mov_b32 v{tmp}, v{x}")
    e(f"v_permlane16_swap_b32 v{x}, v{tmp}")
    e(f"{op} v{x}, v{x}, v{tmp}")
def red_q(e, x, tmp, op):
    red_16(e, x, tmp, op)
    e(f"v_mov_b32 v{tmp}, v{x}")
    e(f"v_permlane32_swap_b32 v{x}, v{tmp}")
    e(f"{op} v{x}, v{x}, v{tmp}")

def gen_final(g):
    def e(s_):
        if O.fx and getattr(g, "intile", False):
            mn = s_.split()[0]
            if "m" in O.fx and mn.startswith("v_mfma"): return
            if "c" in O.fx and mn.startswith("v_cvt_pk"): return
            if "p" in O.fx and mn.startswith("v_pk_"): return
            if "t" in O.fx and mn in ("v_exp_f32", "v_rcp_f32", "v_rsq_f32"): return
            if "d" in O.fx and (mn.startswith("v_dot2") ): return
            if "x" in O.fx and (mn.startswith("v_permlane") or "dpp" in mn): return
            if "s" in O.fx and mn.startswith("buffer_store"): return
            if "v" in O.fx and mn.startswith("v_") and not mn.startswith("v_mfma") and not mn.startswith("v_add_u32") and not mn.startswith("v_lshl_add"): return
        g.e(s_)
    S = 60
    global TT, U
    if O.mrg: U, TT = 28, 52
    W = TOK
    fTA = Q25 + 1
    e("s_waitcnt lgkmcnt(0)")
    e("s_lshl_b32 s62, 1, s3")
    e(f"v_mov_b32 v0, {L_FLAG + 36}")
    e("v_mov_b32 v1, s62")
    e("s_mov_b64 exec, 1")
    e("ds_or_b32 v0, v1")
    e("s_mov_b64 exec, -1")
    e("s_setprio 0")
    e("F_SETUP:")
    e("v_mbcnt_lo_u32_b32 v20, -1, 0")
    e("v_mbcnt_hi_u32_b32 v20, -1, v20")
    e("v_lshlrev_b32 v32, 4, v20")
    e(f"v_add_u32 v32, {L_WF}, v32")
    for f in range(16):
        e(f"ds_read_b128 v[{WM+4*f}:{WM+4*f+3}], v32 offset:{1024*f}")
    e(f"ds_read_b128 v[{SA}:{SA+3}], v32 offset:16384")
    e(f"ds_read_b128 v[{SA+4}:{SA+7}], v32 offset:{16384 + 1024}")
    e(f"v_mov_b32 v33, {L_WF + 16384 + 2048}")
    e(f"ds_read_b32 v{fOUT}, v33")
    e("v_lshrrev_b32 v21, 4, v20")
    e("v_and_b32 v22, 15, v20")
    e("v_lshrrev_b32 v33, 3, v22")
    e("v_and_b32 v35, 7, v22")
    e(f"s_movk_i32 s63, {TOKROW}")
    e(f"v_mul_u32_u24 v{fLC}, s63, v35")
    e(f"v_lshl_add_u32 v{fLC}, v21, 5, v{fLC}")
    e(f"s_movk_i32 s63, {TOKNODE}")
    e(f"v_mad_u32_u24 v{fLC}, v33, s63, v{fLC}")
    e(f"v_add_u32 v{fLC}, {L_TOK}, v{fLC}")
    e(f"v_lshlrev_b32 v{fRC}, 2, v22")
    e(f"v_add_u32 v{fRC}, {L_R}, v{fRC}")
    e(f"v_lshlrev_b32 v{fRR}, 4, v21")
    e(f"v_add_u32 v{fRR}, {L_R}, v{fRR}")
    e("v_lshrrev_b32 v44, 1, v21")
    e(f"v_lshlrev_b32 v{fNO}, 2, v44")
    e(f"v_add_u32 v{fNO}, {L_NODEOF}, v{fNO}")
    e("v_lshrrev_b32 v40, 2, v22")
    e("v_and_b32 v41, 3, v22")
    e("v_cmp_eq_u32 s[62:63], v40, v21")
    e("v_and_b32 v42, 1, v41")
    e("v_lshlrev_b32 v42, 4, v42")
    e("v_mov_b32 v43, 0x3f80")
    e("v_lshlrev_b32 v43, v42, v43")
    e("v_cndmask_b32 v43, 0, v43, s[62:63]")
    e("v_cmp_gt_u32 vcc, 2, v41")
    e(f"v_cndmask_b32 v{ID}, 0, v43, vcc")
    e(f"v_cndmask_b32 v{ID+1}, v43, 0, vcc")
    e(f"v_mov_b32 v{Q25}, 0x3e803e80")
    if O.mrg:
        for m_ in range(16):
            for c_ in range(4):
                ad = L_TOK + (m_ // 8) * TOKNODE + (m_ % 8) * TOKROW + 32 * c_
                assert ((ad >> 7) & 0xff) != 0xff and ad < 0x10000
        e("v_lshrrev_b32 v47, 2, v20")
        e("v_lshrrev_b32 v48, 5, v20")
        e("v_and_b32 v47, 7, v47")
        e(f"s_movk_i32 s63, {TOKROW}")
        e(f"v_mul_u32_u24 v{fTA}, s63, v47")
        e(f"s_movk_i32 s63, {TOKNODE}")
        e(f"v_mad_u32_u24 v{fTA}, v48, s63, v{fTA}")
        e("v_and_b32 v47, 3, v20")
        e(f"v_lshl_add_u32 v{fTA}, v47, 5, v{fTA}")
        e(f"v_add_u32 v{fTA}, {L_TOK}, v{fTA}")
    else:
        e(f"v_mov_b32 v{Q25+1}, 0x3e803e80")
    e(f"v_cmp_eq_u32 s[{sPM}:{sPM+1}], v44, v33")
    e("v_lshl_add_u32 v45, v40, 4, v41")
    e("v_and_b32 v46, 1, v21")
    e("v_lshl_add_u32 v45, v46, 2, v45")
    e(f"v_lshlrev_b32 v{fFO}, 1, v45")
    e(f"s_mov_b32 s{sC}, 0x3c800000")
    e(f"s_mov_b32 s{sC+1}, 0x3727c5ac")
    e(f"s_mov_b32 s{sC+2}, 0xffff0000")
    e(f"s_mov_b32 s{sC+3}, 0x3fb8aa3b")
    e(f"s_mul_i32 s{sC+4}, s2, 12800")
    if O.dbgstat: e(f"s_mov_b32 s{sC+5}, 0")
    e("s_waitcnt lgkmcnt(0)")
    e(f"v_readfirstlane_b32 s{sC+6}, v{fOUT}")
    CO = L_FLAG + 32 - L_NODEOF
    e("F_NEXT:")
    e("s_mov_b64 exec, 1")
    e(f"ds_inc_rtn_u32 v{S}, v{fNO}, v{fNO} offset:{CO}")
    e("F_POLL:")
    e(f"ds_read_b32 v{S+1}, v{fNO} offset:{CO + 4}")
    e("s_mov_b64 exec, -1")
    e("s_waitcnt lgkmcnt(0)")
    e(f"v_readfirstlane_b32 s{sTILE}, v{S}")
    e(f"v_readfirstlane_b32 s{sMASK}, v{S+1}")
    e(f"s_cmp_ge_u32 s{sTILE}, {NTILE * (O.fbench or 1)}")
    e("s_cbranch_scc1 F_DONE")
    if O.fbench:
        e(f"s_and_b32 s{sTILE}, s{sTILE}, 31"); e("s_branch F_GO")
    if O.revtile: e(f"s_sub_u32 s{sTILE}, {NTILE - 1}, s{sTILE}")
    e(f"s_lshr_b32 s62, s{sTILE}, 2")
    e(f"s_bitcmp1_b32 s{sMASK}, s62")
    e("s_cbranch_scc1 F_GO")
    e(f"s_sleep {O.fsleep}")
    e("s_mov_b64 exec, 1")
    e("s_branch F_POLL")
    e("F_GO:")
    g.intile = True
    if O.dbgstat: e(f"s_add_u32 s{sC+5}, s{sC+5}, 1")
    e(f"s_mul_i32 s62, s{sTILE}, {2*TOKNODE}")
    e(f"s_lshl_b32 s63, s{sTILE}, 6")
    e(f"s_lshl_b32 s64, s{sTILE}, 3")
    RR, RC, NODE = TT, TT + 4, TT + 6
    e(f"v_add_u32 v{S}, s62, v{fLC}")
    e(f"ds_read_b128 v[{TOK}:{TOK+3}], v{S}")
    e(f"ds_read_b128 v[{TOK+4}:{TOK+7}], v{S} offset:16")
    e(f"v_add_u32 v{S+1}, s63, v{fRR}")
    e(f"ds_read_b128 v[{RR}:{RR+3}], v{S+1}")
    e(f"v_add_u32 v{S+2}, s63, v{fRC}")
    e(f"ds_read_b32 v{RC}, v{S+2}")
    e(f"v_add_u32 v{S+3}, s64, v{fNO}")
    e(f"ds_read_b32 v{NODE}, v{S+3}")
    e("s_waitcnt lgkmcnt(3)")
    for T in range(4): e(m32(ACC + 4*T, WM + 8*T, TOK, None))
    for T in range(4): e(m32(ACC + 4*T, WM + 8*T + 4, TOK + 4, ACC + 4*T))
    for h in range(8):
        e(f"v_cvt_pk_bf16_f32 v{U+h}, v{ACC+2*h}, v{ACC+2*h+1}")
    e(m32(S, TOK, U, None)); e(m32(S, TOK + 4, U + 4, S))
    for T in range(4): e(m32(ACC + 4*T, TOK, WV + 8*T, None))
    for T in range(4): e(m32(ACC + 4*T, TOK + 4, WV + 8*T + 4, ACC + 4*T))
    e("s_waitcnt lgkmcnt(0)")
    if O.mrg:
        e(f"v_lshl_add_u32 v{fOUT}, v{NODE}, 7, v{fFO}")
    else:
        e(f"v_lshl_add_u32 v{NODE}, v{NODE}, 7, v{fFO}")
    e(f"v_pk_mul_f32 v[{S}:{S+1}], v[{S}:{S+1}], v[{RR}:{RR+1}]")
    e(f"v_pk_mul_f32 v[{S+2}:{S+3}], v[{S+2}:{S+3}], v[{RR+2}:{RR+3}]")
    t0, t1 = U, U + 1
    if O.mrg:
        t0, t1 = TT + 6, TT + 7
        for T in range(4):
            e(f"v_cvt_pk_bf16_f32 v{W+4*T}, v{ACC+4*T}, v{ACC+4*T+1}")
            e(f"v_cvt_pk_bf16_f32 v{W+4*T+1}, v{ACC+4*T+2}, v{ACC+4*T+3}")
        e(f"v_add_u32 v{W+14}, s62, v{fTA}")
        for T in range(4):
            e(f"ds_read_b64_tr_b16 v[{W+4*T+2}:{W+4*T+3}], v{W+14} offset:{8*T}")
    e(f"v_max3_f32 v{t0}, v{S}, v{S+1}, v{S+2}")
    e(f"v_max_f32 v{t0}, v{t0}, v{S+3}")
    red_16(e, t0, t1, "v_max_f32")
    e(f"v_mul_f32 v{t0}, v{RC}, v{t0}")
    e(f"v_pk_fma_f32 v[{S}:{S+1}], v[{S}:{S+1}], v[{RC}:{RC+1}], v[{t0}:{t0+1}] op_sel_hi:[1,0,0] neg_lo:[0,0,1] neg_hi:[0,0,1]")
    e(f"v_pk_fma_f32 v[{S+2}:{S+3}], v[{S+2}:{S+3}], v[{RC}:{RC+1}], v[{t0}:{t0+1}] op_sel_hi:[1,0,0] neg_lo:[0,0,1] neg_hi:[0,0,1]")
    for b in range(4): e(f"v_exp_f32 v{S+b}, v{S+b}")
    e(f"v_pk_add_f32 v[{t0}:{t0+1}], v[{S}:{S+1}], v[{S+2}:{S+3}]")
    e(f"v_add_f32 v{t0}, v{t0}, v{t1}")
    red_16(e, t0, t1, "v_add_f32")
    e(f"v_rcp_f32 v{t0}, v{t0}")
    e(f"v_cndmask_b32 v{t0}, 0, v{t0}, s[{sPM}:{sPM+1}]")
    e(f"v_pk_mul_f32 v[{RR}:{RR+1}], v[{RR}:{RR+1}], v[{t0}:{t0+1}] op_sel_hi:[1,0]")
    e(f"v_pk_mul_f32 v[{RR+2}:{RR+3}], v[{RR+2}:{RR+3}], v[{t0}:{t0+1}] op_sel_hi:[1,0]")
    e(f"v_pk_mul_f32 v[{S}:{S+1}], v[{S}:{S+1}], v[{RR}:{RR+1}]")
    e(f"v_pk_mul_f32 v[{S+2}:{S+3}], v[{S+2}:{S+3}], v[{RR+2}:{RR+3}]")
    PP = fPP
    e(f"v_cvt_pk_bf16_f32 v{PP}, v{S}, v{S+1}")
    e(f"v_cvt_pk_bf16_f32 v{PP+1}, v{S+2}, v{S+3}")
    if O.mrg:
        assert ID == PP + 2
        e("s_waitcnt lgkmcnt(0)")
        for T in range(4): e(m32(ACC + 4*T, W + 4*T, PP, None))
        for h in range(8):
            e(f"v_cvt_pk_bf16_f32 v{TT+h}, v{ACC+2*h}, v{ACC+2*h+1}")
        for T in range(4): e(m32(ACC + 4*T, PP, W + 4*T, None))
    else:
      e(f"v_mov_b32 v{fOUT}, v{NODE}")
      for h in range(8):
        e(f"v_cvt_pk_bf16_f32 v{U+h}, v{ACC+2*h}, v{ACC+2*h+1}")
      for T in range(4): e(m16(ACC + 4*T, U + 2*T, PP, None))
      for T in range(4): e(m16(ACC + 4*T, ID, TOK + 2*T, ACC + 4*T))
      for h in range(8):
        e(f"v_cvt_pk_bf16_f32 v{TT+h}, v{ACC+2*h}, v{ACC+2*h+1}")
      for T in range(4): e(m16(ACC + 4*T, PP, U + 2*T, None))
      for T in range(4): e(m16(ACC + 4*T, TOK + 2*T, ID, ACC + 4*T))
    e(m32(S, SA, TT, None)); e(m32(S, SA + 4, TT + 4, S))
    q = TOK
    e(f"v_dot2_f32_bf16 v{PP}, v{TT}, v{TT}, 0")
    e(f"v_dot2_f32_bf16 v{PP+1}, v{TT+1}, v{TT+1}, 0")
    for r in range(2, 8):
        e(f"v_dot2_f32_bf16 v{PP+r%2}, v{TT+r}, v{TT+r}, v{PP+r%2}")
    e(f"v_add_f32 v{q}, v{PP}, v{PP+1}")
    red_q(e, q, q + 1, "v_add_f32")
    e(f"v_mul_f32 v{q+2}, s{sC}, v{S}")
    e(f"v_mul_f32 v{q+3}, v{q+2}, v{q+2}")
    e(f"v_fma_f32 v{q}, v{q}, s{sC}, -v{q+3}")
    e(f"v_max_f32 v{q}, 0, v{q}")
    e(f"v_add_f32 v{q}, s{sC+1}, v{q}")
    e(f"v_rsq_f32 v{q+4}, v{q}")
    e(f"v_fma_f32 v{q+5}, -v{q+2}, s{sC+6}, v{S+1}")
    e(f"v_mul_f32 v{q+5}, s{sC+3}, v{q+5}")
    e(f"v_mul_f32 v{q}, v{q+4}, v{q+5}")
    for i, mod in enumerate(("quad_perm:[1,0,3,2]", "quad_perm:[2,3,0,1]", "row_half_mirror")):
        src = q if i == 0 else q + 1
        e(f"v_max_f32_dpp v{q+1}, v{src}, v{src} {mod} row_mask:0xf bank_mask:0xf")
    e(f"v_sub_f32 v{q}, v{q}, v{q+1}")
    e(f"v_exp_f32 v{q}, v{q}")
    for i, mod in enumerate(("quad_perm:[1,0,3,2]", "quad_perm:[2,3,0,1]", "row_half_mirror")):
        src = q if i == 0 else q + 1
        e(f"v_add_f32_dpp v{q+1}, v{src}, v{src} {mod} row_mask:0xf bank_mask:0xf")
    e(f"v_rcp_f32 v{q+1}, v{q+1}")
    e(f"v_mul_f32 v{q}, v{q}, v{q+1}")
    e(f"v_and_b32 v{q+1}, s{sC+2}, v{q}")
    e(f"v_sub_f32 v{q}, v{q}, v{q+1}")
    e(f"v_cvt_pk_bf16_f32 v{q+2}, v{q+1}, v{q}")
    e(f"v_mov_b32 v{q+3}, 0")
    e(m16(S, q + 2, Q25, None))
    for T in range(4):
        a = ACC + 4*T
        e(f"v_pk_mul_f32 v[{a}:{a+1}], v[{a}:{a+1}], v[{S}:{S+1}]")
        e(f"v_pk_fma_f32 v[{a}:{a+1}], v[{a+2}:{a+3}], v[{S+2}:{S+3}], v[{a}:{a+1}]")
        e(f"v_add_f32 v{a}, v{a}, v{a+1}")
    e(f"v_permlane16_swap_b32 v{ACC}, v{ACC+4}")
    e(f"v_permlane16_swap_b32 v{ACC+8}, v{ACC+12}")
    e(f"v_add_f32 v{ACC}, v{ACC}, v{ACC+4}")
    e(f"v_add_f32 v{ACC+8}, v{ACC+8}, v{ACC+12}")
    e(f"v_cvt_pk_bf16_f32 v{fST}, v{ACC}, v{ACC+8}")
    e(f"buffer_store_short v{fST}, v{fOUT}, s[{sOUT}:{sOUT+3}], s{sC+4} offen")
    e(f"buffer_store_short_d16_hi v{fST}, v{fOUT}, s[{sOUT}:{sOUT+3}], s{sC+4} offen offset:16")
    g.intile = False
    e("s_branch F_NEXT")
    e("F_DONE:")


def gen_p(g):
    e = g.e
    SC = " sc1"
    dbg = O.dbgstat
    GQ = O.gq
    kernel_header(g, "graph_kernel")
    e(f"s_cmp_ge_u32 s2, {NB}")
    e("s_cbranch_scc1 P_END")
    e("s_load_dwordx8 s[4:11], s[0:1], 0")
    e("s_load_dwordx2 s[12:13], s[0:1], 88")
    e("s_load_dwordx2 s[14:15], s[0:1], 72")
    e("s_load_dwordx2 s[16:17], s[0:1], 64")
    if dbg: e("s_memrealtime s[90:91]")
    e(f"v_and_b32 v{vLANE}, 63, v0")
    e("v_lshrrev_b32 v40, 6, v0")
    e("v_lshlrev_b32 v45, 4, v0")
    e("v_readfirstlane_b32 s3, v40")
    e(f"s_movk_i32 s{s128}, 128")
    e(f"s_mov_b32 s{sONES}, 0x3f803f80")
    e("s_lshr_b32 s62, s2, 1"); e("s_and_b32 s62, s62, 0x7c"); e("s_and_b32 s63, s2, 7"); e("s_lshl_b32 s63, s63, 7"); e("s_or_b32 s62, s62, s63")
    e("v_and_b32 v52, 0xfffffffc, v0")
    e("v_lshlrev_b32 v52, 8, v52")
    e("s_waitcnt lgkmcnt(0)")
    srd(g, sTAB, 12, 13, NB * 1024, add=hex(WS_TAB))
    e(f"buffer_load_dword v53, v52, s[{sTAB}:{sTAB+3}], s62 offen")
    srd(g, sWS, 12, 13, hex(WS_BYTES))
    srd(g, sX, 4, 5, 3200000)
    srd(g, sDIS, 10, 11, 50000)
    e("s_mul_i32 s63, s2, 12800")
    e(f"buffer_load_dwordx4 v[32:35], v45, s[{sX}:{sX+3}], s63 offen")
    e("v_lshlrev_b32 v54, 1, v0")
    e("s_mul_i32 s64, s2, 200")
    e(f"buffer_load_ushort v55, v54, s[{sDIS}:{sDIS+3}], s64 offen")
    e(f"s_mov_b32 s65, {hex(WS_WF)}")
    e(f"buffer_load_dwordx4 v[60:63], v45, s[{sWS}:{sWS+3}], s65 offen")
    e(f"s_add_u32 s65, s65, 0x4000")
    e(f"v_min_u32 v41, {WFX - 16}, v45")
    e(f"buffer_load_dwordx4 v[36:39], v41, s[{sWS}:{sWS+3}], s65 offen")
    srd(g, sOUT, 14, 15, 3200000)
    for r in range(4): e(f"v_mov_b32 v{48+r}, -1")
    for r in range(4): e(f"v_mov_b32 v{124+r}, 0")
    e("ds_write_b128 v45, v[48:51]")
    nextra = (L_CNT - 16384) // 16
    e(f"v_cmp_gt_u32 vcc, {nextra}, v0")
    e("s_and_saveexec_b64 s[64:65], vcc")
    e("ds_write_b128 v45, v[48:51] offset:16384")
    e("s_mov_b64 exec, s[64:65]")
    nz = (L_WF - L_CNT) // 16
    e(f"s_movk_i32 s62, {nz}")
    e("v_cmp_gt_u32 vcc, s62, v0")
    e("s_and_saveexec_b64 s[64:65], vcc")
    e(f"ds_write_b128 v45, v[124:127] offset:{L_CNT}")
    e("s_mov_b64 exec, s[64:65]")
    e("s_movk_i32 s62, 800")
    e("v_cmp_gt_u32 vcc, s62, v0")
    e(f"s_mov_b64 s[{sM800}:{sM800+1}], vcc")
    e("v_lshrrev_b32 v64, 2, v0")
    e("v_and_b32 v65, 3, v0")
    e("s_movk_i32 s66, 12800")
    e("v_mul_u32_u24 v66, s66, v64")
    e("v_lshl_add_u32 v66, v65, 4, v66")
    e("v_lshlrev_b32 v69, 2, v65")
    e("s_waitcnt vmcnt(4)")
    if dbg: e("s_memrealtime s[78:79]")
    e("v_and_b32 v67, 0xffff, v53")
    e("v_lshrrev_b32 v68, 16, v53")
    e("v_lshl_add_u32 v66, v67, 2, v66")
    e("v_sub_u32 v69, v68, v69")
    R = 72
    OLD = 84
    e(f"buffer_load_dwordx4 v[{R}:{R+3}], v66, s[{sWS}:{sWS+3}], 0 offen")
    e("v_cmp_lt_i32 vcc, 16, v69")
    e(f"s_mov_b32 s{sI1}, 0"); e(f"s_mov_b32 s{sI2}, 0")
    e("s_cbranch_vccz P_NOI1")
    e(f"s_mov_b32 s{sI1}, 1")
    e(f"buffer_load_dwordx4 v[{R+4}:{R+7}], v66, s[{sWS}:{sWS+3}], 0 offen offset:64")
    e("v_cmp_lt_i32 vcc, 32, v69")
    e("s_cbranch_vccz P_NOI1")
    e(f"s_mov_b32 s{sI2}, 1")
    e(f"buffer_load_dwordx4 v[{R+8}:{R+11}], v66, s[{sWS}:{sWS+3}], 0 offen offset:128")
    e("P_NOI1:")
    e("v_cmp_lt_u32 vcc, 48, v68")
    e("s_waitcnt lgkmcnt(0)")
    e("s_barrier")
    e("s_and_saveexec_b64 s[64:65], vcc")
    e("v_mov_b32 v70, 1")
    e(f"v_mov_b32 v71, {L_FLAG}")
    e("ds_write_b32 v71, v70")
    e("s_mov_b64 exec, s[64:65]")
    if dbg: e("s_memrealtime s[80:81]")
    e("v_mov_b32 v70, 2"); e("v_mov_b32 v71, 0")
    e("s_waitcnt vmcnt(0)")
    if dbg: e("s_memrealtime s[82:83]")
    def atom(i):
        for u in range(4):
            r = R + 4 * i + u; o = OLD + 2 * (4 * i + u)
            e(f"v_cmpx_lt_i32 vcc, {16*i+u}, v69")
            e(f"v_lshrrev_b32 v108, 26, v{r}")
            e(f"v_bfe_u32 v109, v{r}, 16, 10")
            e(f"v_lshlrev_b64 v[110:111], v108, v[70:71]")
            e(f"ds_add_rtn_u64 v[{o}:{o+1}], v109, v[110:111] offset:{L_CNT}")
    atom(0)
    e(f"s_cmp_eq_u32 s{sI1}, 0"); e("s_cbranch_scc1 P_AT_D")
    atom(1)
    e(f"s_cmp_eq_u32 s{sI2}, 0"); e("s_cbranch_scc1 P_AT_D")
    atom(2)
    e("P_AT_D:")
    e("s_mov_b64 exec, -1")
    e(f"ds_write_b128 v45, v[60:63] offset:{L_WF}")
    e(f"ds_write_b128 v41, v[36:39] offset:{L_WF + 16384}")
    e("s_movk_i32 s66, 100")
    e("v_cmp_gt_u32 vcc, s66, v0")
    e("s_and_saveexec_b64 s[64:65], vcc")
    e("v_lshlrev_b32 v55, 16, v55")
    e("v_lshlrev_b32 v112, 2, v0")
    e(f"ds_write_b32 v112, v55 offset:{L_DISF}")
    e("s_mov_b64 exec, s[64:65]")
    e("v_lshrrev_b32 v112, 3, v0")
    e("v_and_b32 v113, 7, v0")
    e("v_mul_u32_u24 v116, 13, v113")
    e("v_lshlrev_b32 v117, 3, v116")
    e("v_lshlrev_b32 v118, 3, v112")
    e("v_sub_u32 v119, 127, v116")
    e("v_sub_u32 v120, 127, v112")
    e("v_lshlrev_b32 v114, 2, v112")
    e("s_mov_b32 s67, 0x10001")
    e(f"v_add_u32 v117, {L_CNT}, v117")
    e("s_waitcnt lgkmcnt(0)")
    e("s_barrier")
    if dbg: e("s_memrealtime s[84:85]")
    e(f"ds_read_b64 v[56:57], v118 offset:{L_CNT}")
    CB = 4
    for u in range(6):
        e(f"ds_read2_b64 v[{CB+4*u}:{CB+4*u+3}], v117 offset0:{2*u} offset1:{2*u+1}")
    e(f"ds_read_b64 v[{CB+24}:{CB+25}], v117 offset:96")
    e(f"ds_read_b32 v115, v114 offset:{L_DISF}")
    e("v_mov_b32 v121, 0")
    e("s_waitcnt lgkmcnt(8)")
    e("v_dot2_u32_u16 v58, v56, s67, v57")
    e("v_lshl_add_u32 v120, v58, 7, v120")
    e("s_waitcnt lgkmcnt(1)")
    for u in range(13):
        lo = CB + 2 * u
        e(f"v_dot2_u32_u16 v{lo}, v{lo}, s67, v{lo+1}")
        e(f"v_lshl_add_u32 v{lo}, v{lo}, 7, v119")
        e(f"v_add_u32 v{lo+1}, {u}, v120")
    for u0 in range(0, 13, 4):
        us = list(range(u0, min(u0 + 4, 13)))
        for i, u in enumerate(us):
            lo = CB + 2 * u
            e(f"v_cmp_gt_u32 s[{sTMP+2*i}:{sTMP+2*i+1}], v{lo}, v{lo+1}")
        for i, u in enumerate(us):
            e(f"v_addc_co_u32 v121, s[{sTMP+2*i}:{sTMP+2*i+1}], 0, v121, s[{sTMP+2*i}:{sTMP+2*i+1}]")
    e("v_add_u32_dpp v121, v121, v121 quad_perm:[1,0,3,2] row_mask:0xf bank_mask:0xf")
    e("v_add_u32_dpp v121, v121, v121 quad_perm:[2,3,0,1] row_mask:0xf bank_mask:0xf")
    e("v_add_u32_dpp v121, v121, v121 row_half_mirror row_mask:0xf bank_mask:0xf")
    rstat(g, 32, 36, 37, 38)
    e(f"s_movk_i32 s66, {TOKNODE}")
    e("v_mul_u32_u24 v37, s66, v121")
    e("v_lshl_add_u32 v37, v113, 4, v37")
    e("v_lshlrev_b32 v38, 5, v121")
    e(f"s_mov_b64 exec, s[{sM800}:{sM800+1}]")
    e(f"ds_write_b128 v37, v[32:35] offset:{L_TOK}")
    e(f"ds_write_b32 v38, v36 offset:{L_R}")
    e("s_mov_b64 exec, -1")
    e("s_movk_i32 s66, 100")
    e("v_cmp_gt_u32 s[62:63], s66, v112")
    e("v_cmp_eq_u32 vcc, 0, v113")
    e("s_waitcnt lgkmcnt(0)")
    e("s_and_b64 exec, vcc, s[62:63]")
    e("s_cbranch_execz P_RK_D")
    e("v_mov_b32 v60, v112")
    e(f"s_mov_b32 s66, {hex(thr_bits(O.thr[0]) << 16)}")
    e(f"s_mov_b32 s67, {hex(thr_bits(O.thr[1]) << 16)}")
    e(f"v_mov_b32 v114, {0 if O.revcls else 2}")
    e("v_cmp_gt_u32 vcc, s66, v115")
    e("v_cndmask_b32 v114, v114, 1, vcc")
    e("v_cmp_gt_u32 vcc, s67, v115")
    e(f"v_cndmask_b32 v114, v114, {2 if O.revcls else 0}, vcc")
    e(f"s_movk_i32 s66, {NODEB}")
    e(f"v_mov_b32 v62, {L_STREAM + NODEB - 2}")
    e("v_mad_u32_u24 v62, v121, s66, v62")
    e("v_sub_u32 v63, v62, v57")
    e("v_lshrrev_b32 v64, 16, v56")
    e("v_sub_u32 v65, v63, v64")
    e("v_and_b32 v65, 0xffff, v65")
    e("v_lshl_or_b32 v60+0, v60, 0, v60" if False else "v_lshl_or_b32 v66, v63, 16, v65")
    e("v_mov_b32 v67, v62")
    e(f"ds_write_b64 v118, v[66:67] offset:{L_INFO}")
    e("v_lshlrev_b32 v63, 2, v121")
    e(f"ds_write_b32 v63, v60 offset:{L_NODEOF}")
    e("v_lshrrev_b32 v63, 3, v121")
    e("v_lshlrev_b32 v63, 4, v63")
    e("v_add_u32 v64, v64, v57")
    e(f"ds_max_u32 v63, v58 offset:{L_GINFO}")
    e(f"ds_max_u32 v63, v64 offset:{L_GINFO+4}")
    e(f"ds_max_u32 v63, v57 offset:{L_GINFO+8}")
    e(f"ds_max_u32 v63, v114 offset:{L_GINFO+12}")
    e(f"s_movk_i32 s66, {2*PMAX}")
    e("v_cmp_lt_u32 vcc, s66, v58")
    e("s_and_b64 exec, exec, vcc")
    e("v_mov_b32 v63, 1")
    e(f"v_mov_b32 v64, {L_FLAG}")
    e("ds_write_b32 v64, v63")
    e("P_RK_D:")
    e("s_mov_b64 exec, -1")
    e(f"v_mov_b32 v60, {L_FLAG}")
    e("s_waitcnt lgkmcnt(0)")
    e("s_barrier")
    if dbg: e("s_memrealtime s[86:87]")
    e("ds_read_b32 v61, v60")
    def place_rd(i):
        for u in range(4):
            r = R + 4 * i + u
            e(f"v_bfe_u32 v109, v{r}, 16, 10")
            e(f"ds_read_b64 v[{112+2*u}:{113+2*u}], v109 offset:{L_INFO}")
    def place(i):
        for u in range(4):
            r = R + 4 * i + u; o = OLD + 2 * (4 * i + u)
            e(f"v_lshrrev_b32 v108, 26, v{r}")
            e(f"v_lshrrev_b64 v[{o}:{o+1}], v108, v[{o}:{o+1}]")
            e(f"v_lshrrev_b64 v[{112+2*u}:{113+2*u}], v108, v[{112+2*u}:{113+2*u}]")
            e(f"v_cmpx_lt_i32 vcc, {16*i+u}, v69")
            e(f"v_sub_u32_sdwa v109, v{112+2*u}, v{o} dst_sel:DWORD dst_unused:UNUSED_PAD src0_sel:WORD_0 src1_sel:WORD_0")
            e(f"ds_write_b16 v109, v{r}")
    place_rd(0)
    e("s_waitcnt lgkmcnt(4)")
    e(f"v_readfirstlane_b32 s{sSLOW}, v61")
    if O.forceslow:
        e("s_cmp_lt_u32 s2, 3"); e("s_cbranch_scc0 P_NOFS"); e(f"s_mov_b32 s{sSLOW}, 1"); e("P_NOFS:")
    e(f"s_cmp_lg_u32 s{sSLOW}, 0"); e("s_cbranch_scc1 P_PL_D")
    e("s_waitcnt lgkmcnt(0)")
    place(0)
    e(f"s_cmp_eq_u32 s{sI1}, 0"); e("s_cbranch_scc1 P_PL_D")
    place_rd(1); e("s_waitcnt lgkmcnt(0)"); place(1)
    e(f"s_cmp_eq_u32 s{sI2}, 0"); e("s_cbranch_scc1 P_PL_D")
    place_rd(2); e("s_waitcnt lgkmcnt(0)"); place(2)
    e("P_PL_D:")
    e("s_mov_b64 exec, -1")
    e("s_waitcnt lgkmcnt(0)")
    e("s_barrier")
    if dbg: e("s_memrealtime s[88:89]")
    if O.fbench:
        e("s_memrealtime s[62:63]")
        e("s_lshl_b32 s64, s2, 4"); e("s_add_u32 s64, s64, s3"); e("s_lshl_b32 s64, s64, 5")
        e(f"s_add_u32 s64, s64, 7"); e("s_lshl_b32 s64, s64, 3")
        e(f"s_add_u32 s64, s64, {hex(WS_STAMP)}")
        e("s_waitcnt lgkmcnt(0)")
        e("s_mov_b64 exec, 1")
        e(f"v_mov_b32 v32, s62"); e(f"v_mov_b32 v33, 0"); e(f"v_mov_b32 v34, s64")
        e(f"buffer_store_dwordx2 v[32:33], v34, s[{sWS}:{sWS+3}], 0 offen")
        e("s_mov_b64 exec, -1")
        e(f"s_cmp_ge_u32 s3, {O.fwaves}"); e("s_cbranch_scc1 P_END")
        e("s_branch F_SETUP")
    if O.only:
        e(f"s_cmp_ge_u32 s2, {O.only}"); e("s_cbranch_scc1 P_END")
    e(f"s_cmp_ge_u32 s3, {NGRP}")
    e("s_cbranch_scc1 F_SETUP")
    e(f"s_setprio {O.gprio}")
    if O.perm:
        pk = 0
        for w, gidx in enumerate(O.perm): pk |= gidx << (4 * w)
        e(f"s_mov_b32 s62, {hex(pk & 0xffffffff)}"); e(f"s_mov_b32 s63, {hex(pk >> 32)}")
        e("s_lshl_b32 s64, s3, 2"); e("s_lshr_b64 s[62:63], s[62:63], s64"); e("s_and_b32 s3, s62, 15")
    e("s_lshl_b32 s62, s3, 4")
    e(f"s_add_u32 s63, s62, {L_GINFO}")
    e("v_mov_b32 v62, s63")
    e("ds_read_b128 v[64:67], v62")
    e(f"v_lshlrev_b32 v62, 4, v{vLANE}")
    e(f"ds_read_b32 v63, v62 offset:{L_GINFO+12}")
    e(f"v_lshrrev_b32 v68, 4, v{vLANE}")
    e(f"v_bfe_u32 v69, v{vLANE}, 3, 1")
    e(f"v_and_b32 v70, 7, v{vLANE}")
    e(f"v_lshlrev_b32 v{vL16}, 4, v70")
    e("v_lshrrev_b32 v71, 1, v68")
    e("v_lshl_add_u32 v72, v71, 1, v69")
    e("v_and_b32 v73, 1, v68")
    e("v_lshl_add_u32 v73, v73, 2, v72")
    e("s_lshl_b32 s62, s3, 5")
    e(f"s_add_u32 s63, s62, {L_NODEOF}")
    e("v_lshl_add_u32 v74, v72, 2, s63")
    e("ds_read_b32 v75, v74")
    e("ds_read_b32 v76, v74 offset:16")
    e("v_lshl_add_u32 v74, v73, 2, s63")
    e("ds_read_b32 v77, v74")
    e("s_lshl_b32 s64, s3, 3")
    e("v_add_u32 v73, s64, v73")
    e("s_movk_i32 s66, 100")
    e("v_cmp_gt_u32 vcc, s66, v73")
    e(f"s_mov_b64 s[{sVALID}:{sVALID+1}], vcc")
    e(f"v_lshrrev_b32 v78, 3, v{vLANE}")
    e("v_add_u32 v78, s64, v78")
    e(f"s_movk_i32 s65, {NODEB}")
    e(f"v_mul_u32_u24 v{vIDXA}, s65, v78")
    if L_STREAM: e(f"v_add_u32 v{vIDXA}, {L_STREAM}, v{vIDXA}")
    e("s_waitcnt lgkmcnt(0)")
    for (n, d) in ((75, vDIS1), (76, vDIS2), (77, vDIS3)):
        e(f"v_lshlrev_b32 v74, 2, v{n}")
        e(f"ds_read_b32 v{d}, v74 offset:{L_DISF}")
    e("v_readfirstlane_b32 s65, v64")
    e("v_readfirstlane_b32 s66, v65")
    e("v_readfirstlane_b32 s67, v66")
    e("v_readfirstlane_b32 s68, v67")
    for c in range(3):
        e(f"v_cmp_eq_u32 vcc, {2-c}, v63")
        e(f"s_and_b32 s62, vcc_lo, 0x1fff")
        e(f"s_bcnt1_i32_b32 s{sN0+c}, s62")
    e(f"s_sub_u32 s68, 2, s68")
    e(f"s_lshl_b32 s69, s68, 2")
    e(f"s_add_u32 s{sCLSA}, s69, {L_FLAG + 16}")
    if O.onegate2:
        e(f"s_mov_b32 s{sCLSA}, {L_FLAG + 16}")
        for c in range(3): e(f"s_mov_b32 s{sN0+c}, {NGRP}")
    if O.ptab:
        for tab, dst in ((O.ptab, sPRI2), (O.ptab1, sPRI)):
            pk = [sum(tab[c][g_] << (2 * g_) for g_ in range(3)) for c in range(3)]
            e(f"s_mov_b32 s62, {pk[0] | pk[1] << 8 | pk[2] << 16}")
            e(f"s_lshl_b32 s69, s68, 3")
            e(f"s_lshr_b32 s{dst}, s62, s69")
            e(f"s_and_b32 s{dst}, s{dst}, 0xff")
    e(f"s_movk_i32 s64, {TOKNODE}")
    e(f"v_mul_u32_u24 v{vTOKA}, s64, v73")
    e(f"v_lshlrev_b32 v{vRA}, 5, v73")
    e(f"v_add_u32 v{vRA}, {L_R}, v{vRA}")
    e(f"v_add_u32 v{vTOKA}, v{vTOKA}, v{vL16}")
    e(f"v_add_u32 v{vTOKA}, {L_TOK}, v{vTOKA}")
    e("s_mul_i32 s64, s2, 100")
    e("v_add_u32 v77, s64, v77")
    e(f"v_lshl_add_u32 v{vGOFF}, v77, 7, v{vL16}")
    for src, dst in ((65, sP0), (66, sG1), (67, sG2)):
        e(f"s_lshr_b32 s{src}, s{src}, 1")
        if dst == sP0: e(f"s_max_u32 s{src}, s{src}, 2")
        e(f"s_min_u32 s{src}, s{src}, {PMAX}")
        e(f"s_sub_u32 s{dst}, {PMAX}, s{src}")
        e(f"s_andn2_b32 s{dst}, s{dst}, {GQ-1}")
    e(f"s_max_u32 s{sG1}, s{sG1}, s{sP0}")
    e(f"s_max_u32 s{sG2}, s{sG2}, s{sG1}")
    if O.onegate:
        e(f"s_mov_b32 s{sG1}, s{sP0}"); e(f"s_mov_b32 s{sG2}, s{sP0}")
    e(f"v_and_b32 v64, 7, v{vLANE}")
    e("v_lshrrev_b32 v65, 1, v64")
    e("v_and_b32 v66, 1, v64")
    e("v_lshlrev_b32 v66, 4, v66")
    e("v_mov_b32 v67, 0x3f80")
    e("v_lshlrev_b32 v67, v66, v67")
    e(f"v_lshrrev_b32 v68, 4, v{vLANE}")
    e(f"v_bfe_u32 v69, v{vLANE}, 3, 1")
    e("v_add_u32 v70, 2, v69")
    e("v_cmp_eq_u32 s[62:63], v68, v69")
    e("v_cmp_eq_u32 s[64:65], v68, v70")
    for r in range(4):
        e(f"v_cmp_eq_u32 vcc, {r}, v65")
        e(f"s_and_b64 s[68:69], vcc, s[62:63]")
        e(f"v_cndmask_b32 v{vA1+r}, 0, v67, s[68:69]")
        e(f"s_and_b64 s[68:69], vcc, s[64:65]")
        e(f"v_cndmask_b32 v{vA2+r}, 0, v67, s[68:69]")
    for i in range(RING): e(f"v_mov_b32 v{vOFF+i}, 0x7ffffff0")
    e(f"s_mov_b32 s{sK}, 1")
    if O.stag: e(f"s_mov_b32 s{sREL}, 0"); e(f"s_mov_b32 s{sRBASE}, 0")
    e(f"s_mov_b32 s{sT0}, 0"); e(f"s_mov_b32 s{sT1}, 0"); e(f"s_mov_b32 s{sT2}, 0")
    e(f"s_mov_b32 s{sGI+2}, 3200000"); e(f"s_mov_b32 s{sGI+3}, {SRD3}")
    e(f"s_mov_b32 s{sGO+2}, 3200000"); e(f"s_mov_b32 s{sGO+3}, {SRD3}")
    e(f"s_add_u32 s{sGO}, s12, {hex(WS_G)}"); e(f"s_addc_u32 s{sGO+1}, s13, 0")
    PV = 0 if O.free else -1
    e(f"s_mov_b32 s{sPOI}, {hex(WS_G + 2 * WS_GS)}")
    for r in range(4): e(f"v_mov_b32 v{vX+r}, {PV}")
    e(f"s_mov_b64 exec, s[{sVALID}:{sVALID+1}]")
    e(f"buffer_store_dwordx4 v[{vX}:{vX+3}], v{vGOFF}, s[{sWS}:{sWS+3}], s{sPOI} offen{O.stp}")
    e("s_mov_b64 exec, -1")
    e(f"s_add_u32 s{sPOI}, s{sPOI}, {hex(WS_GS)}")
    e("s_waitcnt lgkmcnt(0)")
    def stamp(idx, val, pre=None):
        if pre is None: e("s_memrealtime s[62:63]")
        else: e(f"s_mov_b32 s62, s{pre}")
        e("s_lshl_b32 s64, s2, 4"); e("s_add_u32 s64, s64, s3"); e("s_lshl_b32 s64, s64, 5")
        e(f"s_add_u32 s64, s64, {idx}"); e("s_lshl_b32 s64, s64, 3")
        e(f"s_add_u32 s64, s64, {hex(WS_STAMP)}")
        e("s_waitcnt lgkmcnt(0)")
        e("s_mov_b64 exec, 1")
        e(f"v_mov_b32 v32, s62"); e(f"v_mov_b32 v33, {val}"); e(f"v_mov_b32 v34, s64")
        e(f"buffer_store_dwordx2 v[32:33], v34, s[{sWS}:{sWS+3}], 0 offen")
        e("s_mov_b64 exec, -1")
    if dbg:
        e("s_memtime s[66:67]"); e("s_waitcnt lgkmcnt(0)")
        stamp("20", "s66")
        stamp("0", f"s{sP0}")
        stamp("8", f"s{sG1}", pre=90)
        for i, r in enumerate((78, 80, 82, 84, 86, 88)): stamp(str(10 + i), f"s{sG2}", pre=r)
    if O.seq:
        e("s_lshl_b32 s62, s2, 4"); e("s_add_u32 s62, s62, s3"); e("s_mul_i32 s62, s62, 53248")
        e(f"v_lshlrev_b32 v33, 4, v{vLANE}")
        if O.seq == 3:
            e(f"v_lshrrev_b32 v33, 2, v{vLANE}"); e("v_lshlrev_b32 v33, 7, v33"); e(f"v_and_b32 v34, 3, v{vLANE}"); e("v_lshl_add_u32 v33, v34, 4, v33")
        if O.seq == 4:
            e(f"v_and_b32 v33, 15, v{vLANE}"); e("v_lshlrev_b32 v33, 4, v33")
        if O.seq == 5:
            e(f"v_and_b32 v33, 31, v{vLANE}"); e("v_lshlrev_b32 v33, 4, v33")
        if O.seq == 6:
            e(f"v_lshlrev_b32 v33, 7, v{vLANE}")
        e("v_add_u32 v32, s62, v33"); e("v_and_b32 v32, 0x1fffff, v32")
    e("P_HOP:")
    if O.hit:
        e(f"s_add_u32 s{sGI}, s12, {hex(WS_G)}"); e(f"s_addc_u32 s{sGI+1}, s13, 0")
    else:
        e(f"s_mov_b32 s{sGI}, s{sGO}"); e(f"s_mov_b32 s{sGI+1}, s{sGO+1}")
    e(f"s_add_u32 s{sGO}, s{sGO}, {hex(WS_GS)}"); e(f"s_addc_u32 s{sGO+1}, s{sGO+1}, 0")
    e(f"s_mov_b32 s{sTRY}, 0")
    e("s_mov_b32 s93, 0")
    e(f"s_cmp_lg_u32 s{sSLOW}, 0")
    e("s_cbranch_scc1 P_SLOWG")
    for i in range(8): e(f"v_mov_b32 v{vAC1+i}, 0")
    e(f"s_mov_b32 s{sGa}, s{sP0}"); e(f"s_mov_b32 s{sGb}, s{sG1}"); e(f"s_mov_b32 s{sGc}, s{sG2}")
    e(f"s_mov_b32 s{sTa}, s{sT0}"); e(f"s_mov_b32 s{sTb}, s{sT1}"); e(f"s_mov_b32 s{sTc}, s{sT2}")
    e(f"s_movk_i32 s{sGAD}, {L_FLAG + 16}")
    def rotate():
        e(f"s_mov_b32 s{sGa}, s{sGb}"); e(f"s_mov_b32 s{sGb}, s{sGc}"); e(f"s_movk_i32 s{sGc}, 255")
        e(f"s_mov_b32 s{sTa}, s{sTb}"); e(f"s_mov_b32 s{sTb}, s{sTc}")
        e(f"s_add_u32 s{sGAD}, s{sGAD}, 4")
    def rdcnt():
        e(f"v_mov_b32 v{vT1}, {L_FLAG + 16}" if O.onegate2 else f"v_mov_b32 v{vT1}, s{sGAD}")
        e(f"ds_read_b32 v{vT0}, v{vT1}")
        e("s_waitcnt lgkmcnt(0)")
        e(f"v_readfirstlane_b32 s62, v{vT0}")
        e(f"s_cmp_ge_u32 s62, s{sTa}")
    def setprio(tag):
        e(f"s_sub_u32 s62, s{sGAD}, {L_FLAG + 20}"); e("s_lshr_b32 s62, s62, 1")
        e(f"s_lshr_b32 s62, s{sPRI}, s62"); e("s_and_b32 s62, s62, 3")
        e("s_cmp_ge_u32 s62, 2"); e(f"s_cbranch_scc1 SP{tag}_H")
        e("s_cmp_eq_u32 s62, 1"); e(f"s_cbranch_scc1 SP{tag}_1")
        e("s_setprio 0"); e(f"s_branch SP{tag}_D")
        e(f"SP{tag}_1:"); e("s_setprio 1"); e(f"s_branch SP{tag}_D")
        e(f"SP{tag}_H:"); e("s_cmp_eq_u32 s62, 3"); e(f"s_cbranch_scc1 SP{tag}_3")
        e("s_setprio 2"); e(f"s_branch SP{tag}_D")
        e(f"SP{tag}_3:"); e("s_setprio 3")
        e(f"SP{tag}_D:")

    def release(tag, va, vb):
        e(f"s_cmp_lt_u32 s{sK}, {O.stagk}"); e(f"s_cbranch_scc1 REL{tag}")
        e(f"s_cmp_eq_u32 s{sREL}, s{sK}"); e(f"s_cbranch_scc1 REL{tag}")
        e(f"s_mov_b32 s{sREL}, s{sK}")
        e("s_mov_b64 exec, 1")
        e(f"v_mov_b32 v{va}, {L_FLAG + 40}"); e(f"v_mov_b32 v{vb}, 1")
        e(f"ds_add_u32 v{va}, v{vb}")
        e("s_mov_b64 exec, -1")
        e(f"REL{tag}:")
    e("GW:")
    e(f"s_mov_b32 s{sCUR}, s{sGa}")
    e("GW1:")
    rdcnt()
    e("s_cbranch_scc1 GW2")
    e("s_add_u32 s93, s93, 1")
    e(f"s_cmp_gt_u32 s93, {TRYMAX*4}")
    e("s_cbranch_scc1 GW2")
    if O.gsleep: e(f"s_sleep {O.gsleep}")
    e("s_branch GW1")
    e("GW2:")
    if dbg:
        e(f"s_sub_u32 s65, s{sGAD}, {L_FLAG + 16}"); e("s_lshr_b32 s65, s65, 2"); e("s_add_u32 s65, s65, 16")
        e(f"s_cmp_eq_u32 s{sK}, 4"); e("s_cbranch_scc0 GW2b")
        stamp("s65", f"s{sCUR}")
        e("GW2b:")
    rotate()
    e(f"s_cmp_eq_u32 s{sGa}, s{sCUR}")
    e("s_cbranch_scc1 GW1")
    if O.ptab: setprio("W")
    if O.stag:
        e(f"s_cmp_lt_u32 s{sK}, {O.stagk}"); e("s_cbranch_scc1 STG_D")
        e(f"s_sub_u32 s63, {NGRP - 1}, s3" if O.revtile else "s_mov_b32 s63, s3")
        e(f"s_cmp_lt_u32 s63, {O.stag}"); e("s_cbranch_scc1 STG_D")
        e(f"s_sub_u32 s63, s63, {O.stag - 1}")
        e(f"s_add_u32 s63, s63, s{sRBASE}")
        e(f"v_mov_b32 v{vT1}, {L_FLAG + 40}")
        e("STG_L:")
        e(f"ds_read_b32 v{vT0}, v{vT1}")
        e("s_waitcnt lgkmcnt(0)")
        e(f"v_readfirstlane_b32 s62, v{vT0}")
        e("s_cmp_ge_u32 s62, s63"); e("s_cbranch_scc1 STG_D")
        e("s_add_u32 s93, s93, 1")
        e(f"s_cmp_gt_u32 s93, {TRYMAX*4}"); e("s_cbranch_scc1 STG_D")
        e(f"s_sleep {O.gsleep}")
        e("s_branch STG_L")
        e("STG_D:")
    e(f"s_andn2_b32 s{sI16}, s{sCUR}, 15")
    e(f"s_and_b32 s{sS0}, s{sCUR}, 15")
    e(f"s_sub_u32 s{sGREL}, s{sGa}, s{sI16}")
    e(f"s_add_u32 s{sEXS}, s{sS0}, 15"); e(f"s_and_b32 s{sEXS}, s{sEXS}, 15")
    e(f"s_lshl_b32 s63, s{sI16}, 1")
    e(f"v_add_u32 v{vIP}, s63, v{vIDXA}")
    e(f"s_lshr_b32 s64, s{sS0}, 3"); e("s_lshl_b32 s64, s64, 5")
    e(f"v_add_u32 v{vT0}, s64, v{vIP}")
    e(f"ds_read_b128 v[{vX}:{vX+3}], v{vT0}")
    e(f"ds_read_b128 v[{vY}:{vY+3}], v{vIP} offset:16")
    e("s_waitcnt lgkmcnt(0)")
    tree(g, sS0, list(range(0, 16, GQ)), lambda s: f"PA_{s}")
    def idxld(s):
        if s == 0:
            e("s_waitcnt lgkmcnt(0)"); e(f"ds_read_b128 v[{vY}:{vY+3}], v{vIP} offset:16")
        elif s == 8:
            e("s_waitcnt lgkmcnt(0)"); e(f"ds_read_b128 v[{vX}:{vX+3}], v{vIP} offset:32")
    def issue(s):
        r = (vX if s < 8 else vY) + (s % 8) // 2
        t = vOFF + s; d = vRING + 4 * s
        if O.seq in (1, 3, 4, 5, 6):
            e(f"v_add_u32 v32, {dict([(1,1024),(3,2048),(4,256),(5,512),(6,8192)])[O.seq]}, v32"); e(f"v_and_b32 v32, 0x1fffff, v32"); e(f"v_mov_b32 v{t}, v32")
        elif O.seq == 2:
            e(f"v_mad_u32_u16 v{t}, v{r}, s{s128}, v{vL16} op_sel:[{s%2},0,0,0]")
            e(f"v_readfirstlane_b32 s62, v{t}")
            e(f"s_and_b32 s62, s62, 0x3ffc00")
            e(f"v_add_u32 v{t}, s62, v33")
        else:
            e(f"v_mad_u32_u16 v{t}, v{r}, s{s128}, v{vL16} op_sel:[{s%2},0,0,0]")
        e(f"buffer_load_dwordx4 v[{d}:{d+3}], v{t}, s[{sGI}:{sGI+3}], 0 offen{O.ld}")
    def check(sl):
        s = vRING + 4 * sl
        if O.nocheck:
            e("s_mov_b64 vcc, 0"); return
        e(f"v_max3_u32 v{vT0}, v{s}, v{s+1}, v{s+2}")
        e(f"v_max_u32 v{vT0}, v{vT0}, v{s+3}")
        e(f"v_cmp_eq_u32 vcc, -1, v{vT0}")
    def mfmas(sl):
        s = vRING + 4 * sl
        if O.nomfma: return
        e(f"v_mfma_f32_16x16x32_bf16 v[{vAC1}:{vAC1+3}], v[{vA1}:{vA1+3}], v[{s}:{s+3}], v[{vAC1}:{vAC1+3}]")
        e(f"v_mfma_f32_16x16x32_bf16 v[{vAC2}:{vAC2+3}], v[{vA2}:{vA2+3}], v[{s}:{s+3}], v[{vAC2}:{vAC2+3}]")
    def wrap():
        e(f"s_add_u32 s{sI16}, s{sI16}, 16")
        e(f"s_sub_u32 s{sGREL}, s{sGREL}, 16")
        e(f"v_add_u32 v{vIP}, 32, v{vIP}")
    for s in range(16):
        e(f"PA_{s}:")
        if s % GQ == 0:
            e(f"s_cmp_eq_u32 s{sGREL}, {s}"); e(f"s_cbranch_scc1 GA_{s}")
            e(f"GAR_{s}:")
        idxld(s)
        issue(s)
        if s < 15:
            e(f"s_cmp_eq_u32 s{sEXS}, {s}"); e(f"s_cbranch_scc1 PB_{s+1}")
        else:
            e(f"s_cmp_eq_u32 s{sI16}, {PMAX-16}"); e("s_cbranch_scc1 PA_END")
            wrap()
            e(f"s_cmp_eq_u32 s{sEXS}, 15"); e("s_cbranch_scc0 PA_0")
    for s in range(16):
        e(f"PB_{s}:")
        e("s_waitcnt vmcnt(15)")
        check(s)
        e(f"s_cbranch_vccnz STB_{s}")
        e(f"RTB_{s}:")
        mfmas(s)
        if s % GQ == 0:
            e(f"s_cmp_eq_u32 s{sGREL}, {s}"); e(f"s_cbranch_scc1 GB_{s}")
            e(f"GBR_{s}:")
        idxld(s)
        issue(s)
    wrap()
    e(f"s_cmp_lt_u32 s{sI16}, {PMAX}"); e("s_cbranch_scc1 PB_0")
    for s in range(16):
        e(f"PD_{s}:")
        e(f"s_waitcnt vmcnt({15-s})")
        check(s)
        e(f"s_cbranch_vccnz STD_{s}")
        e(f"RTD_{s}:")
        mfmas(s)
    e("s_branch P_FLUSH")
    e("PA_END:")
    tree(g, sS0, list(range(0, 16, GQ)), lambda s: f"PD_{s}")
    for s in range(16):
        e(f"PC_{s}:")
        check(s)
        e(f"s_cbranch_vccnz STC_{s}")
        e(f"RTC_{s}:")
        mfmas(s)
        if (s + 1) % GQ == 0:
            e(f"s_cmp_eq_u32 s{sGSL}, {(s+1)%16}"); e("s_cbranch_scc1 GW")
    e("s_branch PC_0")
    for s in range(0, 16, GQ):
        e(f"GA_{s}:")
        e(f"s_call_b64 s[{sRET2}:{sRET2+1}], GT")
        e(f"s_cbranch_scc1 GAR_{s}")
        e("s_branch GA_CLOSED")
        e(f"GB_{s}:")
        e(f"s_call_b64 s[{sRET2}:{sRET2+1}], GT")
        e(f"s_cbranch_scc1 GBR_{s}")
        e("s_waitcnt vmcnt(0)")
        e(f"s_branch PC_{(s+1)%16}")
    e("GA_CLOSED:")
    e("s_waitcnt vmcnt(0)")
    tree(g, sS0, list(range(0, 16, GQ)), lambda s: f"PC_{s}")
    e("GT:")
    e(f"s_mov_b32 s{sCUR}, s{sGa}")
    e("GT1:")
    rdcnt()
    e(f"s_and_b32 s{sGSL}, s{sGa}, 15")
    e(f"s_cmp_ge_u32 s62, s{sTa}")
    e("s_cbranch_scc0 GT_RET")
    rotate()
    e(f"s_cmp_eq_u32 s{sGa}, s{sCUR}")
    e("s_cbranch_scc1 GT1")
    if O.ptab: setprio("T")
    e(f"s_sub_u32 s{sGREL}, s{sGa}, s{sI16}")
    e("s_cmp_eq_u32 s62, s62")
    e("GT_RET:")
    e(f"s_setpc_b64 s[{sRET2}:{sRET2+1}] ; @to " + " ".join(f"GAX_{s} GBX_{s}" for s in range(0, 16, GQ)))
    for s in range(16):
        for t in "BDC":
            e(f"ST{t}_{s}:")
            e(f"s_call_b64 s[{sRET}:{sRET+1}], POLL_{s}")
            e(f"s_branch RT{t}_{s}")
    for sl in range(RING):
        s = vRING + 4 * sl
        e(f"POLL_{sl}:")
        if O.stag and O.stagp: release(f"P{sl}", vT0, vT1)
        e(f"s_add_u32 s{sTRY}, s{sTRY}, 1")
        e(f"s_cmp_gt_u32 s{sTRY}, {TRYMAX}")
        e("s_cbranch_scc1 P_RET")
        if O.sleep: e(f"s_sleep {O.sleep}")
        e("s_mov_b64 exec, vcc")
        e(f"buffer_load_dwordx4 v[{s}:{s+3}], v{vOFF+sl}, s[{sGI}:{sGI+3}], 0 offen{SC}")
        e("s_mov_b64 exec, -1")
        e("s_waitcnt vmcnt(0)")
        check(sl)
        e(f"s_cbranch_vccnz POLL_{sl}")
        if sl < RING - 1: e("s_branch P_REFRESH")
    e("P_REFRESH:")
    for sl in range(RING):
        s = vRING + 4 * sl
        l = g.lab("RF")
        check(sl)
        e(f"s_cbranch_vccz {l}")
        e("s_mov_b64 exec, vcc")
        e(f"buffer_load_dwordx4 v[{s}:{s+3}], v{vOFF+sl}, s[{sGI}:{sGI+3}], 0 offen{SC}")
        e("s_mov_b64 exec, -1")
        e(f"{l}:")
    e("s_waitcnt vmcnt(0)")
    e("P_RET:")
    e(f"s_setpc_b64 s[{sRET}:{sRET+1}] ; @to " + " ".join(f"RT{t}_{p}" for t in "BDC" for p in range(16)))
    e("P_FLUSH:")
    if O.stag: release("F", vT0, vT1)
    if dbg:
        stamp(f"s{sK}", f"s{sTRY}")
    H = vF
    for b in range(4):
        e(f"v_mul_f32 v{vAC1+b}, v{vAC1+b}, v{vDIS1}")
        e(f"v_mul_f32 v{vAC2+b}, v{vAC2+b}, v{vDIS2}")
    e(f"v_cvt_pk_bf16_f32 v{H}, v{vAC1}, v{vAC1+1}")
    e(f"v_cvt_pk_bf16_f32 v{H+1}, v{vAC1+2}, v{vAC1+3}")
    e(f"v_cvt_pk_bf16_f32 v{H+2}, v{vAC2}, v{vAC2+1}")
    e(f"v_cvt_pk_bf16_f32 v{H+3}, v{vAC2+2}, v{vAC2+3}")
    e(f"v_permlane16_swap_b32 v{H}, v{H+2}")
    e(f"v_permlane16_swap_b32 v{H+1}, v{H+3}")
    e(f"s_mov_b64 exec, s[{sVALID}:{sVALID+1}]")
    e(f"s_cmp_eq_u32 s{sK}, 7")
    e("s_cbranch_scc1 P_NOG")
    G = vF + 4
    for r in range(4):
        e(f"v_lshlrev_b32 v{vF+8}, 16, v{H+r}")
        e(f"v_and_b32 v{vF+9}, 0xffff0000, v{H+r}")
        e(f"v_mul_f32 v{vF+8}, v{vF+8}, v{vDIS3}")
        e(f"v_mul_f32 v{vF+9}, v{vF+9}, v{vDIS3}")
        e(f"v_cvt_pk_bf16_f32 v{G+r}, v{vF+8}, v{vF+9}")
        e(f"v_min_u32 v{G+r}, -2, v{G+r}")
    e(f"buffer_store_dwordx4 v[{G}:{G+3}], v{vGOFF}, s[{sGO}:{sGO+3}], 0 offen{O.stg}")
    e("s_mov_b64 exec, 1")
    e(f"v_mov_b32 v{vF+11}, s{sCLSA}")
    e(f"v_mov_b32 v{vF+12}, 1")
    e(f"ds_add_u32 v{vF+11}, v{vF+12}")
    e(f"s_mov_b64 exec, s[{sVALID}:{sVALID+1}]")
    e(f"s_cmp_gt_u32 s{sK}, 4")
    e("s_cbranch_scc1 P_NOG")
    for r in range(4): e(f"v_mov_b32 v{vX+r}, {PV}")
    e(f"buffer_store_dwordx4 v[{vX}:{vX+3}], v{vGOFF}, s[{sWS}:{sWS+3}], s{sPOI} offen{O.stp}")
    e(f"s_add_u32 s{sPOI}, s{sPOI}, {hex(WS_GS)}")
    e("P_NOG:")
    e(f"s_mul_i32 s62, s{sK}, {TOKROW}")
    e(f"v_add_u32 v{vF+10}, s62, v{vTOKA}")
    e(f"ds_write_b128 v{vF+10}, v[{H}:{H+3}]")
    e(f"v_add_u32 v{vRA}, 4, v{vRA}")
    rstat(g, H, vF + 12, vF + 13, vF + 14)
    e(f"ds_write_b32 v{vRA}, v{vF+12}")
    e("s_mov_b64 exec, -1")
    if not O.nogate:
        for c in range(3): e(f"s_add_u32 s{sT0+c}, s{sT0+c}, s{sN0+c}")
    if O.ptab: e(f"s_mov_b32 s{sPRI}, s{sPRI2}")
    if O.stag:
        e(f"s_cmp_lt_u32 s{sK}, {O.stagk}"); e("s_cbranch_scc1 STG_NB")
        e(f"s_add_u32 s{sRBASE}, s{sRBASE}, {NGRP}")
        e("STG_NB:")
    e(f"s_add_u32 s{sK}, s{sK}, 1")
    e(f"s_cmp_le_u32 s{sK}, {O.nhops}")
    e("s_cbranch_scc1 P_HOP")
    e("P_FINAL:")
    if O.ptab: e("s_setprio 0")
    if O.dump:
        e("s_waitcnt lgkmcnt(0)")
        e(f"s_mov_b64 exec, s[{sVALID}:{sVALID+1}]")
        e(f"v_sub_u32 v{vT0}, v{vGOFF}, v{vL16}")
        e(f"v_lshlrev_b32 v{vT0}, 3, v{vT0}")
        e(f"v_add_u32 v{vT0}, v{vT0}, v{vL16}")
        e(f"s_mov_b32 s62, {hex(WS_DUMP)}")
        for k in range(8):
            e(f"ds_read_b128 v[{vRING}:{vRING+3}], v{vTOKA} offset:{k*TOKROW}")
            e("s_waitcnt lgkmcnt(0)")
            e(f"buffer_store_dwordx4 v[{vRING}:{vRING+3}], v{vT0}, s[{sWS}:{sWS+3}], s62 offen offset:{k*128}")
            e("s_nop 1")
        e("s_mov_b64 exec, -1")
    gen_final(g)
    if dbg:
        e("s_memtime s[66:67]"); e("s_waitcnt lgkmcnt(0)")
        stamp("21", "s66")
        stamp("9", f"s{sC+5}")
        if O.amp:
            def off(x):
                if x == "k1s": return WS_STAMP + 0x100000
                if x == "k1e": return WS_STAMP + 0x100000 + 4
                return WS_STAMP + int(x) * 8
            a_, b_ = O.amp.split(",")
            e("s_lshl_b32 s62, s2, 4"); e("s_add_u32 s62, s62, s3"); e("s_cmp_lg_u32 s62, 0"); e("s_cbranch_scc1 P_END")
            e("s_waitcnt vmcnt(0)")
            e(f"v_mov_b32 v40, {hex(off(a_))}"); e(f"v_mov_b32 v41, {hex(off(b_))}")
            e(f"buffer_load_dword v42, v40, s[{sWS}:{sWS+3}], 0 offen sc1")
            e(f"buffer_load_dword v43, v41, s[{sWS}:{sWS+3}], 0 offen sc1")
            e("s_waitcnt vmcnt(0)")
            e("v_sub_u32 v42, v42, v43")
            e("v_readfirstlane_b32 s62, v42")
            e("s_min_u32 s62, s62, 10000")
            e("s_lshl_b32 s62, s62, 3")
            e("s_memrealtime s[64:65]"); e("s_waitcnt lgkmcnt(0)")
            e("AMPL:"); e("s_sleep 4"); e("s_memrealtime s[66:67]"); e("s_waitcnt lgkmcnt(0)")
            e("s_sub_u32 s63, s66, s64"); e("s_cmp_lt_u32 s63, s62"); e("s_cbranch_scc1 AMPL")
    e("s_branch P_END")
    e("P_SLOWG:")
    e(f"v_lshrrev_b32 v{vT0}, 3, v{vLANE}")
    e("s_lshl_b32 s62, s3, 5")
    e(f"s_add_u32 s62, s62, {L_NODEOF}")
    e(f"v_lshl_add_u32 v{vT1}, v{vT0}, 2, s62")
    e(f"ds_read_b32 v40, v{vT1}")
    e("s_lshl_b32 s62, s3, 3")
    e(f"v_add_u32 v{vT0}, s62, v{vT0}")
    e("s_mul_i32 s62, s2, 100")
    e("s_movk_i32 s63, 100")
    e(f"v_cmp_gt_u32 vcc, s63, v{vT0}")
    for i in range(8): e(f"v_mov_b32 v{vAC1+i}, 0")
    e(f"v_lshlrev_b32 v41, 4, v{vLANE}")
    srd(g, 88, 6, 7, 3200000)
    srd(g, 92, 8, 9, 3200000)
    e("s_waitcnt lgkmcnt(0)")
    e("v_add_u32 v40, s62, v40")
    e("v_cndmask_b32 v40, -1, v40, vcc")
    e("s_mov_b32 s66, 0")
    e("SG_CHUNK:")
    e("buffer_load_dwordx4 v[44:47], v41, s[92:95], s66 offen")
    e("buffer_load_dwordx4 v[48:51], v41, s[88:91], s66 offen")
    e("s_waitcnt vmcnt(0)")
    for u in range(4):
        e("s_mov_b32 s67, 0")
        e(f"SG_R{u}:")
        e("v_readlane_b32 s68, v40, s67")
        e("s_mov_b64 s[62:63], 0xff")
        e("s_lshl_b64 s[62:63], s[62:63], s67")
        e(f"v_cmp_eq_u32 s[64:65], s68, v{44+u}")
        e(f"SG_E{u}:")
        e("s_cmp_eq_u64 s[64:65], 0")
        e(f"s_cbranch_scc1 SG_N{u}")
        e("s_ff1_i32_b64 s69, s[64:65]")
        e("s_bitset0_b64 s[64:65], s69")
        e(f"v_readlane_b32 s68, v{48+u}, s69")
        e("s_lshl_b32 s68, s68, 7")
        e(f"v_add_u32 v42, s68, v{vL16}")
        e("v_mov_b32 v43, 0x7ffffff0")
        e("v_cndmask_b32 v42, v43, v42, s[62:63]")
        e(f"SG_P{u}:")
        e(f"buffer_load_dwordx4 v[52:55], v42, s[{sGI}:{sGI+3}], 0 offen{SC}")
        e("s_waitcnt vmcnt(0)")
        e(f"v_max3_u32 v{vT0}, v52, v53, v54")
        e(f"v_max_u32 v{vT0}, v{vT0}, v55")
        e(f"v_cmp_eq_u32 vcc, -1, v{vT0}")
        e(f"s_cbranch_vccz SG_A{u}")
        e(f"s_add_u32 s{sTRY}, s{sTRY}, 1")
        e(f"s_cmp_gt_u32 s{sTRY}, {TRYMAX}")
        e(f"s_cbranch_scc1 SG_A{u}")
        e("s_sleep 8")
        e(f"s_branch SG_P{u}")
        e(f"SG_A{u}:")
        e(f"v_mfma_f32_16x16x32_bf16 v[{vAC1}:{vAC1+3}], v[{vA1}:{vA1+3}], v[52:55], v[{vAC1}:{vAC1+3}]")
        e(f"v_mfma_f32_16x16x32_bf16 v[{vAC2}:{vAC2+3}], v[{vA2}:{vA2+3}], v[52:55], v[{vAC2}:{vAC2+3}]")
        e(f"s_branch SG_E{u}")
        e(f"SG_N{u}:")
        e("s_add_u32 s67, s67, 8")
        e("s_cmp_lt_u32 s67, 64")
        e(f"s_cbranch_scc1 SG_R{u}")
    e("s_add_u32 s66, s66, 1024")
    e("s_cmp_lt_u32 s66, 3200000")
    e("s_cbranch_scc1 SG_CHUNK")
    e("s_branch P_FLUSH")
    e("P_END:")
    e("s_endpgm")

def build(path):
    g = Gen()
    gen_k1(g)
    gen_p(g)
    L = []
    for line in g.L:
        L.append(line)
    out = []; cur = None
    for line in L:
        out.append(line)
        if line.startswith("GA_") and line.endswith(":") and line[3:-1].isdigit(): cur = "GAX_" + line[3:-1]
        elif line.startswith("GB_") and line.endswith(":") and line[3:-1].isdigit(): cur = "GBX_" + line[3:-1]
        if line.startswith("s_call_b64") and line.endswith("GT"):
            out.append(cur + ":")
    g.L = out
    kernel_desc(g, "bin_kernel", 80, 64)
    kernel_desc(g, "graph_kernel", 128, 102 if O.stag else 100)
    launches = [f"; @launch kernel=bin_kernel grid=({NB+1},1,1) block=(1024,1,1) lds={K1_LDS}",
                f"; @launch kernel=graph_kernel grid=({NB},1,1) block=(1024,1,1) lds={P_LDS}"]
    s = finish(g, launches, "gather_scatter__hybrid_graph_tf_nagphormer__graph.s.ref")
    open(path, "w").write(s)
    return s

if __name__ == "__main__":
    import argparse
    ap = argparse.ArgumentParser()
    ap.add_argument("out")
    for f in ("dump", "nofinal", "dbgstat", "forceslow", "free", "nogate", "onegate", "hit", "nomfma", "nocheck", "revcls", "onegate2", "revtile", "mrg"): ap.add_argument("--" + f, action="store_true")
    ap.add_argument("--sleep", type=int, default=2); ap.add_argument("--gsleep", type=int, default=1)
    ap.add_argument("--nhops", type=int, default=7); ap.add_argument("--gq", type=int, default=2)
    ap.add_argument("--ptab", default=None); ap.add_argument("--ld", default="sc1"); ap.add_argument("--only", type=int, default=0); ap.add_argument("--seq", type=int, default=0); ap.add_argument("--ptab1", default=None); ap.add_argument("--thr", default="30,35"); ap.add_argument("--perm", default=None)
    ap.add_argument("--amp", default=None); ap.add_argument("--stp", default="sc1"); ap.add_argument("--stg", default="sc1")
    ap.add_argument("--gprio", type=int, default=1); ap.add_argument("--fsleep", type=int, default=2); ap.add_argument("--fbench", type=int, default=0); ap.add_argument("--fwaves", type=int, default=16); ap.add_argument("--fx", default="")
    ap.add_argument("--stag", type=int, default=0); ap.add_argument("--stagk", type=int, default=7); ap.add_argument("--stagp", type=int, default=1)
    a = ap.parse_args()
    O.stagk = a.stagk; O.stagp = a.stagp
    O.gprio = a.gprio; O.fsleep = a.fsleep; O.fbench = a.fbench; O.fwaves = a.fwaves; O.fx = a.fx
    O.amp = a.amp; O.onegate2 = a.onegate2; O.revtile = a.revtile; O.mrg = a.mrg; O.stag = a.stag
    O.stp = " " + a.stp.replace("_", " "); O.stg = " " + a.stg.replace("_", " ")
    O.dump = a.dump; O.final = not a.nofinal; O.dbgstat = a.dbgstat; O.forceslow = a.forceslow; O.free = a.free
    O.nogate = a.nogate; O.onegate = a.onegate; O.sleep = a.sleep; O.gsleep = a.gsleep; O.nhops = a.nhops; O.gq = a.gq
    O.pat = None; O.hit = a.hit; O.revcls = a.revcls; O.only = a.only; O.seq = a.seq; O.nomfma = a.nomfma; O.nocheck = a.nocheck; O.ld = {"sc1": " sc1", "plain": "", "nt": " nt", "sc0": " sc0", "sc01": " sc0 sc1", "sc1nt": " sc1 nt"}[a.ld]
    O.ptab = [[int(c) for c in r] for r in a.ptab.split(",")] if a.ptab else None
    O.ptab1 = [[int(c)] * 3 for c in a.ptab1] if a.ptab1 else O.ptab
    O.thr = tuple(int(x) for x in a.thr.split(","))
    O.perm = [int(x) for x in a.perm.split(",")] if a.perm else None
    build(a.out)
    print("P_LDS", P_LDS)
```

```python
P = None
fLC, fRC, fRR, fNO, fFO, fOUT = 0, 1, 2, 3, 4, 5
ID, Q25 = 8, 10
SA = 12
TOK, U, ACC, TT = 20, 28, 36, 52
fTA = Q25 + 1
fPP = 6
fST = 36
WM, WV = 64, 96
sPM = 78
sC = 80
sTILE, sMASK = 88, 89

def m32(d, a, b, c):
    cc = "0" if c is None else f"v[{c}:{c+3}]"
    return f"v_mfma_f32_16x16x32_bf16 v[{d}:{d+3}], v[{a}:{a+3}], v[{b}:{b+3}], {cc}"
def m16(d, a, b, c):
    cc = "0" if c is None else f"v[{c}:{c+3}]"
    return f"v_mfma_f32_16x16x16_bf16 v[{d}:{d+3}], v[{a}:{a+1}], v[{b}:{b+1}], {cc}"
def red_16(e, x, tmp, op):
    e(f"v_mov_b32 v{tmp}, v{x}")
    e(f"v_permlane16_swap_b32 v{x}, v{tmp}")
    e(f"{op} v{x}, v{x}, v{tmp}")
def red_q(e, x, tmp, op):
    red_16(e, x, tmp, op)
    e(f"v_mov_b32 v{tmp}, v{x}")
    e(f"v_permlane32_swap_b32 v{x}, v{tmp}")
    e(f"{op} v{x}, v{x}, v{tmp}")

def gen_lc(g):
    e = g.e
    L_R, L_TOK, L_NODEOF, TOKROW, TOKNODE, L_LC = P.L_R, P.L_TOK, P.L_NODEOF, P.TOKROW, P.TOKNODE, P.L_LC
    B = 80
    c = lambda r: B + r
    e(f"s_cmp_lg_u32 s3, {15 if not P.O.fbench else 0}"); e("s_cbranch_scc1 LC_D")
    ln, q, i, a, i7, qh, n4, n3, t0, t1 = 1, 92, 93, 94, 95, 96, 97, 98, 99, 100
    e(f"v_lshrrev_b32 v{q}, 4, v{ln}")
    e(f"v_and_b32 v{i}, 15, v{ln}")
    e(f"v_lshrrev_b32 v{a}, 3, v{i}")
    e(f"v_and_b32 v{i7}, 7, v{i}")
    e(f"s_movk_i32 s63, {TOKROW}")
    e(f"v_mul_u32_u24 v{c(fLC)}, s63, v{i7}")
    e(f"v_lshl_add_u32 v{c(fLC)}, v{q}, 5, v{c(fLC)}")
    e(f"s_movk_i32 s62, {TOKNODE}")
    e(f"v_mad_u32_u24 v{c(fLC)}, v{a}, s62, v{c(fLC)}")
    e(f"v_add_u32 v{c(fLC)}, {L_TOK}, v{c(fLC)}")
    e(f"v_lshlrev_b32 v{c(fRC)}, 2, v{i}")
    e(f"v_add_u32 v{c(fRC)}, {L_R}, v{c(fRC)}")
    e(f"v_lshlrev_b32 v{c(fRR)}, 4, v{q}")
    e(f"v_add_u32 v{c(fRR)}, {L_R}, v{c(fRR)}")
    e(f"v_lshrrev_b32 v{qh}, 1, v{q}")
    e(f"v_lshlrev_b32 v{c(fNO)}, 2, v{qh}")
    e(f"v_add_u32 v{c(fNO)}, {L_NODEOF}, v{c(fNO)}")
    e(f"v_lshrrev_b32 v{n4}, 2, v{i}")
    e(f"v_and_b32 v{n3}, 3, v{i}")
    e(f"v_cmp_eq_u32 s[64:65], v{n4}, v{q}")
    e(f"v_and_b32 v{t0}, 1, v{n3}")
    e(f"v_lshlrev_b32 v{t0}, 4, v{t0}")
    e(f"v_mov_b32 v{t1}, 0x3f80")
    e(f"v_lshlrev_b32 v{t1}, v{t0}, v{t1}")
    e(f"v_cndmask_b32 v{t1}, 0, v{t1}, s[64:65]")
    e(f"v_cmp_gt_u32 vcc, 2, v{n3}")
    e(f"v_cndmask_b32 v{c(ID)}, 0, v{t1}, vcc")
    e(f"v_cndmask_b32 v{c(ID+1)}, v{t1}, 0, vcc")
    e(f"v_mov_b32 v{c(Q25)}, 0x3e803e80")
    for m_ in range(16):
        for c_ in range(4):
            ad = L_TOK + (m_ // 8) * TOKNODE + (m_ % 8) * TOKROW + 32 * c_
            assert ((ad >> 7) & 0xff) != 0xff and ad < 0x10000
    e(f"v_lshrrev_b32 v{t0}, 2, v{ln}")
    e(f"v_lshrrev_b32 v{t1}, 5, v{ln}")
    e(f"v_and_b32 v{t0}, 7, v{t0}")
    e(f"v_mul_u32_u24 v{c(fTA)}, s63, v{t0}")
    e(f"v_mad_u32_u24 v{c(fTA)}, v{t1}, s62, v{c(fTA)}")
    e(f"v_and_b32 v{t0}, 3, v{ln}")
    e(f"v_lshl_add_u32 v{c(fTA)}, v{t0}, 5, v{c(fTA)}")
    e(f"v_add_u32 v{c(fTA)}, {L_TOK}, v{c(fTA)}")
    e(f"v_lshl_add_u32 v{t0}, v{n4}, 4, v{n3}")
    e(f"v_and_b32 v{t1}, 1, v{q}")
    e(f"v_lshl_add_u32 v{t0}, v{t1}, 2, v{t0}")
    e(f"v_lshlrev_b32 v{c(fFO)}, 1, v{t0}")
    for r in (5, 6, 7): e(f"v_mov_b32 v{c(r)}, 0")
    e(f"v_lshlrev_b32 v{t0}, 4, v{ln}")
    for k in range(3):
        e(f"ds_write_b128 v{t0}, v[{B+4*k}:{B+4*k+3}] offset:{L_LC + 1024*k}")
    e(f"v_mov_b32 v{t0}, {P.L_FLAG + 36}")
    e(f"v_mov_b32 v{t1}, 0x8000")
    e("s_mov_b64 exec, 1")
    e(f"ds_or_b32 v{t0}, v{t1}")
    e("s_mov_b64 exec, -1")
    e("LC_D:")

def gen_final(g):
    O = P.O
    L_FLAG, L_WF, L_R, L_TOK, L_NODEOF, TOKROW, TOKNODE, NTILE, sOUT = P.L_FLAG, P.L_WF, P.L_R, P.L_TOK, P.L_NODEOF, P.TOKROW, P.TOKNODE, P.NTILE, P.sOUT
    def e(s_):
        if O.fx and getattr(g, "intile", False):
            mn = s_.split()[0]
            if "m" in O.fx and mn.startswith("v_mfma"): return
            if "c" in O.fx and mn.startswith("v_cvt_pk"): return
            if "p" in O.fx and mn.startswith("v_pk_"): return
            if "t" in O.fx and mn in ("v_exp_f32", "v_rcp_f32", "v_rsq_f32"): return
            if "d" in O.fx and (mn.startswith("v_dot2") ): return
            if "x" in O.fx and (mn.startswith("v_permlane") or "dpp" in mn): return
            if "s" in O.fx and mn.startswith("buffer_store"): return
            if "v" in O.fx and mn.startswith("v_") and not mn.startswith("v_mfma") and not mn.startswith("v_add_u32") and not mn.startswith("v_lshl_add"): return
        g.e(s_)
    S = 60
    e("s_waitcnt lgkmcnt(0)")
    e("s_lshl_b32 s62, 1, s3")
    e(f"v_mov_b32 v0, {L_FLAG + 36}")
    e("v_mov_b32 v1, s62")
    e("s_mov_b64 exec, 1")
    e("ds_or_b32 v0, v1")
    e("s_mov_b64 exec, -1")
    e("s_setprio 0")
    e("F_SETUP:")
    e("v_mbcnt_lo_u32_b32 v20, -1, 0")
    e("v_mbcnt_hi_u32_b32 v20, -1, v20")
    e("v_lshlrev_b32 v32, 4, v20")
    e(f"v_add_u32 v32, {L_WF}, v32")
    for f in range(16):
        e(f"ds_read_b128 v[{WM+4*f}:{WM+4*f+3}], v32 offset:{1024*f}")
    e(f"ds_read_b128 v[{SA}:{SA+3}], v32 offset:16384")
    e(f"ds_read_b128 v[{SA+4}:{SA+7}], v32 offset:{16384 + 1024}")
    e(f"v_mov_b32 v33, {L_WF + 16384 + 2048}")
    e(f"ds_read_b32 v34, v33")
    e(f"v_mov_b32 v33, {L_FLAG + 36}")
    e(f"ds_read_b32 v35, v33")
    e(f"ds_read_b128 v[0:3], v32 offset:{P.L_LC - L_WF}")
    e(f"ds_read_b128 v[4:7], v32 offset:{P.L_LC - L_WF + 1024}")
    e(f"ds_read_b128 v[8:11], v32 offset:{P.L_LC - L_WF + 2048}")
    e(f"s_mov_b32 s{sPM}, 0x00ff00ff"); e(f"s_mov_b32 s{sPM+1}, 0xff00ff00")
    e(f"s_mov_b32 s{sC}, 0x3c800000")
    e(f"s_mov_b32 s{sC+1}, 0x3727c5ac")
    e(f"s_mov_b32 s{sC+2}, 0xffff0000")
    e(f"s_mov_b32 s{sC+3}, 0x3fb8aa3b")
    e(f"s_mul_i32 s{sC+4}, s2, 12800")
    if O.dbgstat: e(f"s_mov_b32 s{sC+5}, 0")
    e("s_waitcnt lgkmcnt(0)")
    e(f"v_readfirstlane_b32 s{sC+6}, v34")
    e(f"v_readfirstlane_b32 s62, v35")
    e("s_bitcmp1_b32 s62, 15")
    e("s_cbranch_scc1 F_NEXT")
    e("s_sleep 4")
    e("s_branch F_SETUP")
    CO = L_FLAG + 32 - L_NODEOF
    e("F_NEXT:")
    e("s_mov_b64 exec, 1")
    e(f"ds_inc_rtn_u32 v{S}, v{fNO}, v{fNO} offset:{CO}")
    e("F_POLL:")
    e(f"ds_read_b32 v{S+1}, v{fNO} offset:{CO + 4}")
    e("s_mov_b64 exec, -1")
    e("s_waitcnt lgkmcnt(0)")
    e(f"v_readfirstlane_b32 s{sTILE}, v{S}")
    e(f"v_readfirstlane_b32 s{sMASK}, v{S+1}")
    e(f"s_cmp_ge_u32 s{sTILE}, {NTILE * (O.fbench or 1)}")
    e("s_cbranch_scc1 F_DONE")
    if O.fbench:
        e(f"s_and_b32 s{sTILE}, s{sTILE}, 31"); e("s_branch F_GO")
    e(f"s_lshr_b32 s62, s{sTILE}, 2")
    e(f"s_bitcmp1_b32 s{sMASK}, s62")
    e("s_cbranch_scc1 F_GO")
    e(f"s_sleep {O.fsleep}")
    e("s_mov_b64 exec, 1")
    e("s_branch F_POLL")
    e("F_GO:")
    g.intile = True
    if O.dbgstat: e(f"s_add_u32 s{sC+5}, s{sC+5}, 1")
    e(f"s_mul_i32 s62, s{sTILE}, {2*TOKNODE}")
    e(f"s_lshl_b32 s63, s{sTILE}, 6")
    e(f"s_lshl_b32 s64, s{sTILE}, 3")
    RR, RC, NODE = TT, TT + 4, TT + 6
    e(f"v_add_u32 v{S}, s62, v{fLC}")
    e(f"ds_read_b128 v[{TOK}:{TOK+3}], v{S}")
    e(f"ds_read_b128 v[{TOK+4}:{TOK+7}], v{S} offset:16")
    e(f"v_add_u32 v{S+1}, s63, v{fRR}")
    e(f"ds_read_b128 v[{RR}:{RR+3}], v{S+1}")
    e(f"v_add_u32 v{S+2}, s63, v{fRC}")
    e(f"ds_read_b32 v{RC}, v{S+2}")
    e(f"v_add_u32 v{S+3}, s64, v{fNO}")
    e(f"ds_read_b32 v{NODE}, v{S+3}")
    e("s_waitcnt lgkmcnt(3)")
    for T in range(4): e(m32(ACC + 4*T, WM + 8*T, TOK, None))
    for T in range(4): e(m32(ACC + 4*T, WM + 8*T + 4, TOK + 4, ACC + 4*T))
    for h in range(8):
        e(f"v_cvt_pk_bf16_f32 v{U+h}, v{ACC+2*h}, v{ACC+2*h+1}")
    e(m32(S, TOK, U, None)); e(m32(S, TOK + 4, U + 4, S))
    for T in range(4): e(m32(ACC + 4*T, TOK, WV + 8*T, None))
    for T in range(4): e(m32(ACC + 4*T, TOK + 4, WV + 8*T + 4, ACC + 4*T))
    e("s_waitcnt lgkmcnt(0)")
    e(f"v_lshl_add_u32 v{fOUT}, v{NODE}, 7, v{fFO}")
    e(f"v_pk_mul_f32 v[{S}:{S+1}], v[{S}:{S+1}], v[{RR}:{RR+1}]")
    e(f"v_pk_mul_f32 v[{S+2}:{S+3}], v[{S+2}:{S+3}], v[{RR+2}:{RR+3}]")
    t0, t1 = TT + 6, TT + 7
    W = TOK
    for T in range(4):
        e(f"v_cvt_pk_bf16_f32 v{W+4*T}, v{ACC+4*T}, v{ACC+4*T+1}")
        e(f"v_cvt_pk_bf16_f32 v{W+4*T+1}, v{ACC+4*T+2}, v{ACC+4*T+3}")
    e(f"v_add_u32 v{W+14}, s62, v{fTA}")
    for T in range(4):
        e(f"ds_read_b64_tr_b16 v[{W+4*T+2}:{W+4*T+3}], v{W+14} offset:{8*T}")
    e(f"v_max3_f32 v{t0}, v{S}, v{S+1}, v{S+2}")
    e(f"v_max_f32 v{t0}, v{t0}, v{S+3}")
    red_16(e, t0, t1, "v_max_f32")
    e(f"v_mul_f32 v{t0}, v{RC}, v{t0}")
    e(f"v_pk_fma_f32 v[{S}:{S+1}], v[{S}:{S+1}], v[{RC}:{RC+1}], v[{t0}:{t0+1}] op_sel_hi:[1,0,0] neg_lo:[0,0,1] neg_hi:[0,0,1]")
    e(f"v_pk_fma_f32 v[{S+2}:{S+3}], v[{S+2}:{S+3}], v[{RC}:{RC+1}], v[{t0}:{t0+1}] op_sel_hi:[1,0,0] neg_lo:[0,0,1] neg_hi:[0,0,1]")
    for b in range(4): e(f"v_exp_f32 v{S+b}, v{S+b}")
    e(f"v_pk_add_f32 v[{t0}:{t0+1}], v[{S}:{S+1}], v[{S+2}:{S+3}]")
    e(f"v_add_f32 v{t0}, v{t0}, v{t1}")
    red_16(e, t0, t1, "v_add_f32")
    e(f"v_rcp_f32 v{t0}, v{t0}")
    e(f"v_cndmask_b32 v{t0}, 0, v{t0}, s[{sPM}:{sPM+1}]")
    e(f"v_pk_mul_f32 v[{RR}:{RR+1}], v[{RR}:{RR+1}], v[{t0}:{t0+1}] op_sel_hi:[1,0]")
    e(f"v_pk_mul_f32 v[{RR+2}:{RR+3}], v[{RR+2}:{RR+3}], v[{t0}:{t0+1}] op_sel_hi:[1,0]")
    e(f"v_pk_mul_f32 v[{S}:{S+1}], v[{S}:{S+1}], v[{RR}:{RR+1}]")
    e(f"v_pk_mul_f32 v[{S+2}:{S+3}], v[{S+2}:{S+3}], v[{RR+2}:{RR+3}]")
    PP = fPP
    e(f"v_cvt_pk_bf16_f32 v{PP}, v{S}, v{S+1}")
    e(f"v_cvt_pk_bf16_f32 v{PP+1}, v{S+2}, v{S+3}")
    assert ID == PP + 2
    e("s_waitcnt lgkmcnt(0)")
    for T in range(4): e(m32(ACC + 4*T, W + 4*T, PP, None))
    for h in range(8):
        e(f"v_cvt_pk_bf16_f32 v{TT+h}, v{ACC+2*h}, v{ACC+2*h+1}")
    for T in range(4): e(m32(ACC + 4*T, PP, W + 4*T, None))
    e(m32(S, SA, TT, None)); e(m32(S, SA + 4, TT + 4, S))
    q = TOK
    e(f"v_dot2_f32_bf16 v{PP}, v{TT}, v{TT}, 0")
    e(f"v_dot2_f32_bf16 v{PP+1}, v{TT+1}, v{TT+1}, 0")
    for r in range(2, 8):
        e(f"v_dot2_f32_bf16 v{PP+r%2}, v{TT+r}, v{TT+r}, v{PP+r%2}")
    e(f"v_add_f32 v{q}, v{PP}, v{PP+1}")
    red_q(e, q, q + 1, "v_add_f32")
    e(f"v_mul_f32 v{q+2}, s{sC}, v{S}")
    e(f"v_mul_f32 v{q+3}, v{q+2}, v{q+2}")
    e(f"v_fma_f32 v{q}, v{q}, s{sC}, -v{q+3}")
    e(f"v_max_f32 v{q}, 0, v{q}")
    e(f"v_add_f32 v{q}, s{sC+1}, v{q}")
    e(f"v_rsq_f32 v{q+4}, v{q}")
    e(f"v_fma_f32 v{q+5}, -v{q+2}, s{sC+6}, v{S+1}")
    e(f"v_mul_f32 v{q+5}, s{sC+3}, v{q+5}")
    e(f"v_mul_f32 v{q}, v{q+4}, v{q+5}")
    for i, mod in enumerate(("quad_perm:[1,0,3,2]", "quad_perm:[2,3,0,1]", "row_half_mirror")):
        src = q if i == 0 else q + 1
        e(f"v_max_f32_dpp v{q+1}, v{src}, v{src} {mod} row_mask:0xf bank_mask:0xf")
    e(f"v_sub_f32 v{q}, v{q}, v{q+1}")
    e(f"v_exp_f32 v{q}, v{q}")
    for i, mod in enumerate(("quad_perm:[1,0,3,2]", "quad_perm:[2,3,0,1]", "row_half_mirror")):
        src = q if i == 0 else q + 1
        e(f"v_add_f32_dpp v{q+1}, v{src}, v{src} {mod} row_mask:0xf bank_mask:0xf")
    e(f"v_rcp_f32 v{q+1}, v{q+1}")
    e(f"v_mul_f32 v{q}, v{q}, v{q+1}")
    e(f"v_and_b32 v{q+1}, s{sC+2}, v{q}")
    e(f"v_sub_f32 v{q}, v{q}, v{q+1}")
    e(f"v_cvt_pk_bf16_f32 v{q+2}, v{q+1}, v{q}")
    e(f"v_mov_b32 v{q+3}, 0")
    e(m16(S, q + 2, Q25, None))
    for T in range(4):
        a = ACC + 4*T
        e(f"v_pk_mul_f32 v[{a}:{a+1}], v[{a}:{a+1}], v[{S}:{S+1}]")
        e(f"v_pk_fma_f32 v[{a}:{a+1}], v[{a+2}:{a+3}], v[{S+2}:{S+3}], v[{a}:{a+1}]")
        e(f"v_add_f32 v{a}, v{a}, v{a+1}")
    e(f"v_permlane16_swap_b32 v{ACC}, v{ACC+4}")
    e(f"v_permlane16_swap_b32 v{ACC+8}, v{ACC+12}")
    e(f"v_add_f32 v{ACC}, v{ACC}, v{ACC+4}")
    e(f"v_add_f32 v{ACC+8}, v{ACC+8}, v{ACC+12}")
    e(f"v_cvt_pk_bf16_f32 v{fST}, v{ACC}, v{ACC+8}")
    e(f"buffer_store_short v{fST}, v{fOUT}, s[{sOUT}:{sOUT+3}], s{sC+4} offen")
    e(f"buffer_store_short_d16_hi v{fST}, v{fOUT}, s[{sOUT}:{sOUT+3}], s{sC+4} offen offset:16")
    g.intile = False
    e("s_branch F_NEXT")
    e("F_DONE:")
```

```python
import sys, os
sys.path.insert(0, os.path.dirname(os.path.abspath(__file__)))
from gen import Gen, srd, kernel_header, kernel_desc, finish, NB, WS_G, WS_GS, WS_WF, WS_STAMP, WS_BYTES, SRD3

class Opt:
    dbgstat = False; forceslow = False
    sleep = 2; gsleep = 1; nhops = 7
    perm = None
    stp = " sc1"; stg = " sc1"; ld = " sc1"
    gprio = 1; fsleep = 2; fbench = 0; fwaves = 16; fx = ""
    k1st = ""
    p7 = None
    wsch = (0, 0, 0, 0, 0)
    thr = (30, 35)
O = Opt()
import struct
def bf16bits(x):
    u = struct.unpack("<I", struct.pack("<f", x))[0]
    return (u + 0x7FFF + ((u >> 16) & 1)) >> 16
def thr_bits(d):
    return bf16bits((d + 1.0) ** -0.5)

WS_REC = 0x0
WS_EXT = 0x3000000
CELLS = 272
PMAX = 80
NODEB = PMAX * 2
NGRP = 13
TOKROW = 144
TOKNODE = 8 * TOKROW
L_STREAM = 0
L_CNT = 104 * NODEB + 64
L_INFO = L_CNT + 1024
L_NODEOF = L_INFO + 1024
L_GINFO = L_NODEOF + 512
L_DISF = L_GINFO + 64
L_FLAG = L_DISF + 512
L_WF = L_FLAG + 64
WFX = 2048 + 16
L_LC = L_WF + 16384 + WFX
L_R = L_LC + 3072
L_TOK = L_R + 104 * 32
P_LDS = L_TOK + 100 * TOKNODE
NTILE = 50
RING = 16
TRYMAX = 200000
K1_LDS = 1024 + NB * CELLS

sWS, sGI, sGO, sX, sDIS, sOUT = 20, 24, 28, 32, 36, 44
sK, sP0, sT0, sPOI = 52, 53, 56, 59
sM800 = 60
sVALID = 70
sI1, sI2 = 72, 73
sTRY = 73
s128, sSLOW, sRET = 74, 75, 76
sI16, sS0, sEXS, sGTRY = 87, 88, 90, 93
sONES = 99
vTID, vLANE, vL16, vIDXA = 0, 1, 2, 3
vA1, vA2, vAC1, vAC2 = 4, 8, 12, 16
vIP, vT0, vT1 = 20, 21, 22
vX, vY = 24, 28
vRING = 40
vOFF = 104
vDIS1, vDIS2, vDIS3, vTOKA, vGOFF, vRA, vGATE = 120, 121, 122, 123, 124, 125, 126
vF = 40

def redq(e, x, tmp, op="v_add_f32"):
    e(f"v_mov_b32 v{tmp}, v{x}"); e(f"v_permlane16_swap_b32 v{x}, v{tmp}"); e(f"{op} v{x}, v{x}, v{tmp}")
    e(f"v_mov_b32 v{tmp}, v{x}"); e(f"v_permlane32_swap_b32 v{x}, v{tmp}"); e(f"{op} v{x}, v{x}, v{tmp}")
def red16(e, x, tmp, op):
    e(f"v_mov_b32 v{tmp}, v{x}"); e(f"v_permlane16_swap_b32 v{x}, v{tmp}"); e(f"{op} v{x}, v{x}, v{tmp}")

def gen_k1(g):
    e = g.e
    kernel_header(g, "bin_kernel")
    e(f"s_cmp_gt_u32 s2, {NB}")
    e("s_cbranch_scc1 K1_END")
    e("s_load_dwordx8 s[4:11], s[0:1], 0")
    e("s_load_dwordx2 s[12:13], s[0:1], 88")
    if O.dbgstat: e("s_memrealtime s[52:53]")
    e(f"s_cmp_eq_u32 s2, {NB}")
    e("s_cbranch_scc1 K1_W")
    e("v_lshlrev_b32 v1, 4, v0")
    e("v_lshlrev_b32 v2, 2, v0")
    e("v_mov_b32 v3, 0")
    e("s_movk_i32 s14, 0x100")
    e("v_cmp_gt_u32 vcc, s14, v0")
    e("s_and_saveexec_b64 s[40:41], vcc")
    e("ds_write_b32 v2, v3")
    e("s_mov_b64 exec, s[40:41]")
    e("s_movk_i32 s14, 800")
    e("v_cmp_gt_u32 vcc, s14, v0")
    e("s_mov_b64 s[42:43], vcc")
    e("s_mul_i32 s14, s2, 12800")
    e("s_mul_i32 s15, s2, 200")
    e(f"s_movk_i32 s47, {CELLS}")
    e("v_lshrrev_b32 v4, 3, v0")
    e("v_lshlrev_b32 v4, 1, v4")
    e("s_waitcnt lgkmcnt(0)")
    srd(g, 16, 6, 7, 3200000)
    srd(g, 20, 8, 9, 3200000)
    srd(g, 24, 4, 5, 3200000)
    srd(g, 28, 10, 11, 50000)
    srd(g, 32, 12, 13, hex(WS_BYTES))
    e("s_mov_b64 exec, s[42:43]")
    e("s_cbranch_execz K1_NOLD")
    e("buffer_load_dwordx4 v[8:11], v1, s[20:23], s14 offen")
    e("buffer_load_dwordx4 v[12:15], v1, s[16:19], s14 offen")
    e("buffer_load_dwordx4 v[16:19], v1, s[24:27], s14 offen")
    e("buffer_load_ushort v20, v4, s[28:31], s15 offen")
    for r_ in range(4): e(f"v_mov_b32 v{24+r_}, -1")
    e("K1_NOLD:")
    e("s_mov_b64 exec, -1")
    e("s_waitcnt lgkmcnt(0)")
    e("s_barrier")
    e("s_mov_b64 exec, s[42:43]")
    e("s_cbranch_execz K1_B1")
    e("s_waitcnt vmcnt(3)")
    e("s_movk_i32 s45, 5243")
    e("s_movk_i32 s46, -100")
    e("v_mov_b32 v21, 1")
    for u in range(4):
        d = 8 + u
        e(f"v_mul_u32_u24 v{28+u}, s45, v{d}")
        e(f"v_lshrrev_b32 v{28+u}, 19, v{28+u}")
        e(f"v_mad_i32_i24 v{d}, v{28+u}, s46, v{d}")
        e(f"v_lshlrev_b32 v22, 2, v{28+u}")
        e(f"ds_add_rtn_u32 v{32+u}, v22, v21")
        e(f"v_mul_u32_u24 v{28+u}, s47, v{28+u}")
    e("s_waitcnt vmcnt(2)")
    for u in range(4):
        e(f"v_lshlrev_b32 v{52+u}, 1, v{12+u}")
        e(f"buffer_load_ushort v{56+u}, v{52+u}, s[28:31], 0 offen")
    e(f"s_add_u32 s44, s14, {hex(WS_G + WS_GS)}")
    e(f"buffer_store_dwordx4 v[24:27], v1, s[32:35], s44 offen{O.k1st}")
    for u in range(4):
        e(f"v_lshl_or_b32 v{8+u}, v{8+u}, 19, v{12+u}")
    e("s_waitcnt vmcnt(5)")
    e("v_lshlrev_b32 v20, 16, v20")
    for r in range(4):
        e(f"v_lshlrev_b32 v22, 16, v{16+r}")
        e(f"v_and_b32 v23, 0xffff0000, v{16+r}")
        e("v_mul_f32 v22, v22, v20")
        e("v_mul_f32 v23, v23, v20")
        e(f"v_cvt_pk_bf16_f32 v{16+r}, v22, v23")
    e(f"s_add_u32 s44, s14, {hex(WS_G)}")
    e(f"buffer_store_dwordx4 v[16:19], v1, s[32:35], s44 offen{O.k1st}")
    e(f"s_movk_i32 s48, {hex(thr_bits(O.thr[0]))}")
    e(f"s_movk_i32 s49, {hex(thr_bits(O.thr[1]))}")
    e(f"v_mov_b32 v60, {hex((1 << 17) | (1 << 30))}")
    e(f"v_mov_b32 v61, {hex(1 << 18)}")
    e("s_waitcnt vmcnt(2) lgkmcnt(0)")
    for u in range(4):
        e(f"v_cmp_gt_u32 vcc, s48, v{56+u}")
        e(f"v_cndmask_b32 v22, v61, v60, vcc")
        e(f"v_cmp_gt_u32 vcc, s49, v{56+u}")
        e(f"v_cndmask_b32 v22, v22, 0, vcc")
        e(f"v_or_b32 v{8+u}, v{8+u}, v22")
    for u in range(4):
        e(f"v_cmp_gt_u32 vcc, 63, v{32+u}")
        e(f"v_lshl_add_u32 v{28+u}, v{32+u}, 2, v{28+u}")
        e("s_and_b64 exec, s[42:43], vcc")
        e(f"ds_write_b32 v{28+u}, v{8+u} offset:{1024+4}")
    e("K1_B1:")
    e("s_mov_b64 exec, -1")
    e("s_waitcnt lgkmcnt(0)")
    e("s_barrier")
    e("s_movk_i32 s14, 1000")
    e("v_cmp_gt_u32 vcc, s14, v0")
    e("s_and_b64 exec, exec, vcc")
    e("s_cbranch_execz K1_END")
    e("s_mov_b64 s[42:43], exec")
    e("v_lshrrev_b32 v4, 2, v0")
    e("v_and_b32 v5, 3, v0")
    e("v_lshlrev_b32 v6, 2, v4")
    e("ds_read_b32 v7, v6")
    e(f"v_mul_u32_u24 v8, s47, v4")
    e("v_lshl_add_u32 v8, v5, 4, v8")
    e("ds_read_b128 v[12:15], v8 offset:1024")
    e("ds_read_b128 v[16:19], v8 offset:1088")
    e("s_movk_i32 s45, 32000")
    e("v_mul_u32_u24 v9, s45, v4")
    e("v_lshl_add_u32 v9, v5, 4, v9")
    e("s_lshl_b32 s44, s2, 7")
    if WS_REC: e(f"s_add_u32 s44, s44, {hex(WS_REC)}")
    e("v_lshlrev_b32 v10, 2, v5")
    e("v_cmp_eq_u32 vcc, 0, v5")
    e("s_waitcnt lgkmcnt(0)")
    e("v_cndmask_b32 v12, v12, v7, vcc")
    e("v_sub_u32 v11, v7, v10")
    e("v_cmp_le_i32 vcc, 0, v11")
    e("s_and_b64 exec, s[42:43], vcc")
    e(f"buffer_store_dwordx4 v[12:15], v9, s[32:35], s44 offen{O.k1st}")
    e("v_cmp_le_i32 vcc, 16, v11")
    e("s_and_b64 exec, s[42:43], vcc")
    e(f"buffer_store_dwordx4 v[16:19], v9, s[32:35], s44 offen offset:64{O.k1st}")
    e("v_cmp_le_i32 vcc, 32, v11")
    e("s_and_b64 exec, s[42:43], vcc")
    e("s_cbranch_execz K1_NOEXT")
    e("ds_read_b128 v[12:15], v8 offset:1152")
    e("ds_read_b128 v[16:19], v8 offset:1216")
    e("s_lshl_b32 s44, s2, 7")
    e(f"s_add_u32 s44, s44, {hex(WS_EXT)}")
    e("s_waitcnt lgkmcnt(0)")
    e(f"buffer_store_dwordx4 v[12:15], v9, s[32:35], s44 offen")
    e(f"buffer_store_dwordx4 v[16:19], v9, s[32:35], s44 offen offset:64")
    e("K1_NOEXT:")
    if O.dbgstat:
        e("s_mov_b64 exec, s[42:43]")
        e("s_waitcnt vmcnt(0)")
        e("s_memrealtime s[54:55]")
        e("s_lshl_b32 s56, s2, 4"); e(f"s_add_u32 s56, s56, {hex(WS_STAMP + 0x100000)}")
        e("v_cmp_eq_u32 vcc, 0, v0"); e("s_and_b64 exec, exec, vcc")
        e("s_waitcnt lgkmcnt(0)")
        e("v_mov_b32 v40, s52"); e("v_mov_b32 v41, s54"); e("v_mov_b32 v42, s56")
        e("buffer_store_dwordx2 v[40:41], v42, s[32:35], 0 offen")
    e("s_endpgm")
    e("K1_W:")
    e("s_load_dwordx8 s[16:23], s[0:1], 32")
    e("s_load_dwordx2 s[56:57], s[0:1], 64")
    e("v_lshrrev_b32 v1, 6, v0")
    e("v_and_b32 v2, 63, v0")
    e("v_readfirstlane_b32 s3, v1")
    e("v_lshrrev_b32 v3, 4, v2")
    e("v_and_b32 v4, 15, v2")
    e("s_lshr_b32 s24, s3, 2")
    e("s_and_b32 s25, s3, 3")
    e("v_lshrrev_b32 v5, 2, v4")
    e("v_and_b32 v6, 3, v4")
    e("v_lshl_add_u32 v7, v5, 4, v6")
    e("s_lshl_b32 s26, s25, 2")
    e("s_lshl_b32 s27, s24, 2")
    e("v_add_u32 v8, s26, v7")
    e("v_add_u32 v9, s27, v7")
    e("v_lshlrev_b32 v10, 7, v8")
    e("v_lshl_add_u32 v10, v3, 4, v10")
    e("v_lshlrev_b32 v11, 7, v9")
    e("v_lshl_add_u32 v11, v3, 4, v11")
    e("s_waitcnt lgkmcnt(0)")
    srd(g, 28, 16, 17, 8192)
    srd(g, 32, 18, 19, 8192)
    srd(g, 36, 20, 21, 8192)
    srd(g, 40, 22, 23, 8192)
    srd(g, 44, 12, 13, 16384 + WFX, add=hex(WS_WF))
    srd(g, 52, 56, 57, 128)
    e("buffer_load_dwordx4 v[16:19], v10, s[28:31], 0 offen")
    e("buffer_load_dwordx4 v[20:23], v10, s[28:31], 0 offen offset:64")
    e("buffer_load_dwordx4 v[24:27], v11, s[32:35], 0 offen")
    e("buffer_load_dwordx4 v[28:31], v11, s[32:35], 0 offen offset:64")
    e("buffer_load_dwordx4 v[32:35], v10, s[36:39], 0 offen")
    e("buffer_load_dwordx4 v[36:39], v10, s[36:39], 0 offen offset:64")
    e("v_lshlrev_b32 v12, 10, v3")
    e("v_lshl_add_u32 v12, v9, 1, v12")
    e("s_movk_i32 s48, 0x1000")
    for sp in range(2):
        for j in range(8):
            off = (32 * sp + j) * 128
            so = "0"
            if off >= 4096:
                so = "s48"; off -= 4096
            e(f"buffer_load_ushort v{60 + sp*8 + j}, v12, s[40:43], {so} offen offset:{off}")
    e("v_lshlrev_b32 v76, 5, v3")
    e("buffer_load_dwordx4 v[80:83], v76, s[52:55], 0 offen")
    e("buffer_load_dwordx4 v[84:87], v76, s[52:55], 0 offen offset:16")
    for i in range(8): e(f"v_mov_b32 v{48+i}, 0")
    e("s_waitcnt vmcnt(0)")
    for r in range(8):
        e(f"v_lshl_or_b32 v{40+r}, v{61+2*r}, 16, v{60+2*r}")
    e("v_mfma_f32_16x16x32_bf16 v[48:51], v[16:19], v[24:27], v[48:51]")
    e("v_mfma_f32_16x16x32_bf16 v[52:55], v[32:35], v[40:43], v[52:55]")
    e("v_mfma_f32_16x16x32_bf16 v[48:51], v[20:23], v[28:31], v[48:51]")
    e("v_mfma_f32_16x16x32_bf16 v[52:55], v[36:39], v[44:47], v[52:55]")
    e("s_cmp_lg_u32 s3, 0"); e("s_cbranch_scc1 K1_W2")
    e("v_cmp_eq_u32 s[62:63], 0, v6")
    e("v_cmp_eq_u32 s[60:61], 1, v6")
    e("v_mov_b32 v77, 0x3f803f80")
    for r in range(8):
        e(f"v_cndmask_b32 v{88+r}, 0, v77, s[62:63]")
        e(f"v_cndmask_b32 v{88+r}, v{88+r}, v{80+r}, s[60:61]")
    for r in range(4): e(f"v_mov_b32 v{80+r}, 0x3f803f80")
    e("v_mfma_f32_16x16x32_bf16 v[84:87], v[88:91], v[80:83], 0")
    e("v_mfma_f32_16x16x32_bf16 v[84:87], v[92:95], v[80:83], v[84:87]")
    e("v_lshlrev_b32 v13, 4, v2")
    e("s_movk_i32 s50, 0x4000")
    e("buffer_store_dwordx4 v[88:91], v13, s[44:47], s50 offen")
    e("buffer_store_dwordx4 v[92:95], v13, s[44:47], s50 offen offset:1024")
    e("v_mov_b32 v84, v85"); e("v_mov_b32 v86, v85"); e("v_mov_b32 v87, v85")
    e("v_mov_b32 v13, 0"); e("s_movk_i32 s50, 0x4800")
    e("s_mov_b64 exec, 1")
    e("buffer_store_dwordx4 v[84:87], v13, s[44:47], s50 offen")
    e("s_mov_b64 exec, -1")
    e("K1_W2:")
    def ror_sum(x):
        for sh in (8, 4, 2, 1):
            e(f"v_add_f32_dpp v{x}, v{x}, v{x} row_ror:{sh} row_mask:0xf bank_mask:0xf")
    e("v_add_f32 v56, v48, v49"); e("v_add_f32 v57, v50, v51"); e("v_add_f32 v56, v56, v57")
    e("v_add_f32 v58, v52, v53"); e("v_add_f32 v59, v54, v55"); e("v_add_f32 v58, v58, v59")
    redq(e, 56, 57); redq(e, 58, 59)
    e("v_mov_b32 v60, v56"); ror_sum(60)
    for b in range(4):
        e(f"v_mov_b32 v{62+b}, v{48+b}"); ror_sum(62 + b)
    e("v_lshlrev_b32 v14, 4, v9")
    e("s_lshl_b32 s50, s25, 2")
    e("v_add_u32 v14, s50, v14")
    e("ds_write_b32 v14, v56")
    e("ds_write_b32 v14, v58 offset:1024")
    e("v_lshlrev_b32 v15, 8, v3")
    e("s_lshl_b32 s50, s25, 6"); e("s_lshl_b32 s51, s24, 2"); e("s_add_u32 s50, s50, s51")
    e("v_add_u32 v15, s50, v15")
    for b in range(4): e(f"ds_write_b32 v15, v{62+b} offset:{2048+16*b}")
    e("s_lshl_b32 s50, s3, 2"); e("v_mov_b32 v61, s50")
    e("ds_write_b32 v61, v60 offset:3072")
    e("s_waitcnt lgkmcnt(0)")
    e("s_barrier")
    e("v_lshlrev_b32 v14, 4, v9")
    e("ds_read_b128 v[16:19], v14")
    e("ds_read_b128 v[20:23], v14 offset:1024")
    e("v_lshlrev_b32 v15, 8, v3"); e("s_lshl_b32 s50, s25, 6"); e("v_add_u32 v15, s50, v15")
    for b in range(4): e(f"ds_read_b128 v[{24+4*b}:{27+4*b}], v15 offset:{2048+16*b}")
    e("v_mov_b32 v61, 3072")
    for b in range(4): e(f"ds_read_b128 v[{64+4*b}:{67+4*b}], v61 offset:{16*b}")
    e("s_waitcnt lgkmcnt(0)")
    def sum4(d, s0):
        e(f"v_add_f32 v{s0}, v{s0}, v{s0+1}"); e(f"v_add_f32 v{s0+2}, v{s0+2}, v{s0+3}"); e(f"v_add_f32 v{d}, v{s0}, v{s0+2}")
    sum4(16, 16); sum4(20, 20)
    for b in range(4): sum4(24 + 4 * b, 24 + 4 * b)
    for b in range(4): sum4(64 + 4 * b, 64 + 4 * b)
    e("v_add_f32 v64, v64, v68"); e("v_add_f32 v72, v72, v76"); e("v_add_f32 v64, v64, v72")
    e("s_mov_b32 s48, 0x3c800000")
    e("v_mul_f32 v64, s48, v64")
    e("v_sub_f32 v16, v16, v64")
    e("s_mov_b32 s49, 0x3e38aa3b")
    for b in range(4):
        e(f"v_add_f32 v17, v16, v{24+4*b}")
        e(f"v_fma_f32 v{48+b}, -v17, s48, v{48+b}")
        e(f"v_mul_f32 v{48+b}, s49, v{48+b}")
        e(f"v_fma_f32 v{52+b}, -v20, s48, v{52+b}")
    e("v_cvt_pk_bf16_f32 v56, v48, v49"); e("v_cvt_pk_bf16_f32 v57, v50, v51")
    e("v_cvt_pk_bf16_f32 v58, v52, v53"); e("v_cvt_pk_bf16_f32 v59, v54, v55")
    e("s_lshl_b32 s50, s24, 11")
    e("s_lshr_b32 s51, s25, 1"); e("s_lshl_b32 s51, s51, 10"); e("s_add_u32 s50, s50, s51")
    e("s_and_b32 s51, s25, 1"); e("s_lshl_b32 s51, s51, 3"); e("s_add_u32 s50, s50, s51")
    e("v_lshlrev_b32 v13, 4, v2")
    e("buffer_store_dwordx2 v[56:57], v13, s[44:47], s50 offen")
    e("s_add_u32 s50, s50, 8192")
    e("buffer_store_dwordx2 v[58:59], v13, s[44:47], s50 offen")
    e("K1_END:")
    e("s_endpgm")

def tree(g, sreg, vals, label):
    if len(vals) == 1:
        g.e(f"s_branch {label(vals[0])}"); return
    mid = len(vals) // 2
    l = g.lab("TR")
    g.e(f"s_cmp_ge_u32 s{sreg}, {vals[mid]}")
    g.e(f"s_cbranch_scc1 {l}")
    tree(g, sreg, vals[:mid], label)
    g.e(f"{l}:")
    tree(g, sreg, vals[mid:], label)

DPP8 = ("quad_perm:[1,0,3,2]", "quad_perm:[2,3,0,1]", "row_half_mirror")
def rstat(g, H, r, t1, t2):
    e = g.e
    e(f"v_dot2_f32_bf16 v{r}, v{H}, v{H}, 0")
    e(f"v_dot2_f32_bf16 v{t1}, v{H}, s{sONES}, 0")
    for i in range(1, 4):
        e(f"v_dot2_f32_bf16 v{r}, v{H+i}, v{H+i}, v{r}")
        e(f"v_dot2_f32_bf16 v{t1}, v{H+i}, s{sONES}, v{t1}")
    for mod in DPP8:
        e(f"v_add_f32_dpp v{r}, v{r}, v{r} {mod} row_mask:0xf bank_mask:0xf")
        e(f"v_add_f32_dpp v{t1}, v{t1}, v{t1} {mod} row_mask:0xf bank_mask:0xf")
    e(f"v_mul_f32 v{t1}, 0x3c800000, v{t1}")
    e(f"v_mul_f32 v{t2}, v{t1}, v{t1}")
    e(f"v_mul_f32 v{r}, 0x3c800000, v{r}")
    e(f"v_sub_f32 v{r}, v{r}, v{t2}")
    e(f"v_max_f32 v{r}, 0, v{r}")
    e(f"v_add_f32 v{r}, 0x3727c5ac, v{r}")
    e(f"v_rsq_f32 v{r}, v{r}")

import final7
final7.P = sys.modules[__name__]

def gen_p(g):
    e = g.e
    SC = " sc1"
    dbg = O.dbgstat
    kernel_header(g, "graph_kernel")
    e(f"s_cmp_ge_u32 s2, {NB}")
    e("s_cbranch_scc1 P_END")
    e("s_load_dwordx8 s[4:11], s[0:1], 0")
    e("s_load_dwordx2 s[12:13], s[0:1], 88")
    e("s_load_dwordx2 s[14:15], s[0:1], 72")
    if dbg: e("s_memrealtime s[90:91]")
    e(f"v_and_b32 v{vLANE}, 63, v0")
    e("v_lshrrev_b32 v40, 6, v0")
    e("v_lshlrev_b32 v45, 4, v0")
    e("v_readfirstlane_b32 s3, v40")
    e(f"s_movk_i32 s{s128}, 128")
    e(f"s_mov_b32 s{sONES}, 0x3f803f80")
    e("s_mul_i32 s62, s2, 32000")
    if WS_REC: e(f"s_add_u32 s62, s62, {hex(WS_REC)}")
    e("s_add_u32 s63, s62, 16000")
    e("v_lshrrev_b32 v112, 3, v0")
    e("v_and_b32 v113, 7, v0")
    e("v_lshlrev_b32 v54, 1, v112")
    e("s_waitcnt lgkmcnt(0)")
    if dbg: e("s_memrealtime s[92:93]")
    srd(g, sWS, 12, 13, hex(WS_BYTES))
    RA, RB, RC, RD = 64, 68, 72, 76
    OLD = 80
    e(f"buffer_load_dwordx4 v[{RA}:{RA+3}], v45, s[{sWS}:{sWS+3}], s62 offen")
    e(f"buffer_load_dwordx4 v[{RB}:{RB+3}], v45, s[{sWS}:{sWS+3}], s63 offen")
    srd(g, sX, 4, 5, 3200000)
    srd(g, sDIS, 10, 11, 50000)
    e("s_mul_i32 s63, s2, 12800")
    e(f"buffer_load_dwordx4 v[32:35], v45, s[{sX}:{sX+3}], s63 offen")
    e("s_mul_i32 s64, s2, 200")
    e(f"buffer_load_ushort v55, v54, s[{sDIS}:{sDIS+3}], s64 offen")
    e(f"s_mov_b32 s65, {hex(WS_WF)}")
    e(f"buffer_load_dwordx4 v[60:63], v45, s[{sWS}:{sWS+3}], s65 offen")
    e(f"s_add_u32 s65, s65, 0x4000")
    e(f"v_min_u32 v41, {WFX - 16}, v45")
    e(f"buffer_load_dwordx4 v[36:39], v41, s[{sWS}:{sWS+3}], s65 offen")
    srd(g, sOUT, 14, 15, 3200000)
    WS_ = list(O.wsch)
    def warm(n):
        for i in range(n):
            e(f"buffer_load_dwordx4 v[12:15], v45, s[{sWS}:{sWS+3}], s54 offen")
            e("s_add_u32 s54, s54, 16384")
    e("s_lshr_b32 s54, s2, 3"); e("s_mul_i32 s54, s54, 103424"); e(f"s_add_u32 s54, s54, {hex(WS_G)}")
    warm(WS_[0])
    NW = WS_[0]
    for r in range(4): e(f"v_mov_b32 v{48+r}, -1")
    for r in range(4): e(f"v_mov_b32 v{116+r}, 0")
    e("ds_write_b128 v45, v[48:51]")
    nextra = (L_CNT - 16384) // 16
    e(f"v_cmp_gt_u32 vcc, {nextra}, v0")
    e("s_and_saveexec_b64 s[64:65], vcc")
    e("ds_write_b128 v45, v[48:51] offset:16384")
    e("s_mov_b64 exec, s[64:65]")
    nz = (L_WF - L_INFO) // 16
    e(f"s_movk_i32 s62, {nz}")
    e("v_cmp_gt_u32 vcc, s62, v0")
    e("s_and_saveexec_b64 s[64:65], vcc")
    e(f"ds_write_b128 v45, v[116:119] offset:{L_INFO}")
    e("s_mov_b64 exec, s[64:65]")
    e("v_sub_u32 v47, 127, v0")
    e("v_lshlrev_b32 v47, 16, v47")
    e("s_movk_i32 s62, 100")
    e("v_cmp_gt_u32 vcc, s62, v0")
    e("v_cndmask_b32 v47, 0, v47, vcc")
    e("v_mov_b32 v46, 0")
    e("v_lshlrev_b32 v44, 3, v0")
    e("s_movk_i32 s62, 128")
    e("v_cmp_gt_u32 vcc, s62, v0")
    e("s_and_saveexec_b64 s[64:65], vcc")
    e(f"ds_write_b64 v44, v[46:47] offset:{L_CNT}")
    e("s_mov_b64 exec, s[64:65]")
    e("s_movk_i32 s62, 800")
    e("v_cmp_gt_u32 vcc, s62, v0")
    e(f"s_mov_b64 s[{sM800}:{sM800+1}], vcc")
    e(f"v_and_b32 v96, 7, v{vLANE}")
    e(f"v_lshlrev_b32 v{vL16}, 4, v96")
    e("v_lshrrev_b32 v97, 1, v96")
    e("v_and_b32 v98, 1, v96")
    e("v_lshlrev_b32 v98, 4, v98")
    e("v_mov_b32 v99, 0x3f80")
    e("v_lshlrev_b32 v99, v98, v99")
    e(f"v_lshrrev_b32 v100, 4, v{vLANE}")
    e(f"v_bfe_u32 v101, v{vLANE}, 3, 1")
    e("v_add_u32 v102, 2, v101")
    e("v_cmp_eq_u32 s[62:63], v100, v101")
    e("v_cmp_eq_u32 s[64:65], v100, v102")
    for r in range(4):
        e(f"v_cmp_eq_u32 vcc, {r}, v97")
        e(f"s_and_b64 s[68:69], vcc, s[62:63]")
        e(f"v_cndmask_b32 v{vA1+r}, 0, v99, s[68:69]")
        e(f"s_and_b64 s[68:69], vcc, s[64:65]")
        e(f"v_cndmask_b32 v{vA2+r}, 0, v99, s[68:69]")
    e("v_lshrrev_b32 v103, 1, v100")
    e("v_lshl_add_u32 v126, v103, 1, v101")
    e("v_and_b32 v103, 1, v100")
    e("v_lshl_add_u32 v127, v103, 2, v126")
    e(f"v_mov_b32 v{vT1}, {L_FLAG + 16}")
    e("v_lshlrev_b32 v47, 2, v113")
    e("s_movk_i32 s62, 1000")
    e("v_cmp_gt_u32 s[66:67], s62, v0")
    e("v_cmp_eq_u32 s[68:69], 0, v113")
    e("v_mov_b32 v114, 2")
    e("v_mov_b32 v116, 0x3fc")
    if dbg: e("s_memrealtime s[94:95]")
    e("s_waitcnt lgkmcnt(0)")
    if dbg: e("s_memrealtime s[96:97]")
    e("s_barrier")
    if dbg: e("s_memrealtime s[78:79]")
    e(f"s_waitcnt vmcnt({4 + NW})")
    if dbg: e("s_memrealtime s[80:81]")
    warm(WS_[1])
    remA, remA0, remB, remB0, remC, remD = 48, 49, 50, 51, 52, 53
    for (Rr, cn, rem, rem0, remE) in ((RA, 56, remA, remA0, remC), (RB, 57, remB, remB0, remD)):
        e(f"v_mov_b32_dpp v{cn}, v{Rr} quad_perm:[0,0,0,0] row_mask:0xf bank_mask:0xf")
        e(f"v_mov_b32_dpp v{cn}, v{cn} row_shr:4 row_mask:0xf bank_mask:0xa")
        e(f"v_cndmask_b32 v{cn}, 0, v{cn}, s[66:67]")
        e(f"v_min_u32 v58, 31, v{cn}")
        e(f"v_sub_u32 v{rem}, v58, v47")
        e(f"v_add_u32 v{rem}, 1, v{rem}")
        e(f"v_cndmask_b32 v{rem0}, v{rem}, 0, s[68:69]")
        e(f"v_min_u32 v58, 63, v{cn}")
        e(f"v_sub_u32 v{remE}, v58, v47")
        e(f"v_subrev_u32 v{remE}, 31, v{remE}")
    e("v_max_u32 v58, v56, v57")
    e("v_cmp_lt_u32 vcc, 31, v58")
    e(f"s_mov_b32 s{sI1}, 0")
    e("s_cbranch_vccz P_NOEXT")
    e(f"s_mov_b32 s{sI1}, 1")
    e("s_mul_i32 s62, s2, 32000"); e(f"s_add_u32 s62, s62, {hex(WS_EXT)}"); e("s_add_u32 s63, s62, 16000")
    e(f"buffer_load_dwordx4 v[{RC}:{RC+3}], v45, s[{sWS}:{sWS+3}], s62 offen")
    e(f"buffer_load_dwordx4 v[{RD}:{RD+3}], v45, s[{sWS}:{sWS+3}], s63 offen")
    e("v_cmp_lt_u32 vcc, 63, v58")
    e("s_and_saveexec_b64 s[64:65], vcc")
    e("v_mov_b32 v59, 1")
    e(f"v_mov_b32 v58, {L_FLAG}")
    e("ds_write_b32 v58, v59")
    e("s_mov_b64 exec, s[64:65]")
    e("s_waitcnt vmcnt(0)")
    e("P_NOEXT:")
    def forrec(Rr, rem, rem0, fn, pre=None):
        order = (1, 2, 3, 0) if rem0 is not None else (0, 1, 2, 3)
        for u in order:
            if u == 0 and rem0 is not None:
                e("s_mov_b64 exec, -1")
                e(f"v_cmpx_lt_i32 vcc, 0, v{rem0}")
            else:
                e(f"v_cmpx_lt_i32 vcc, {u}, v{rem}")
            fn(Rr + u, u)
        e("s_mov_b64 exec, -1")
    sets = ((RA, remA, remA0, 0), (RB, remB, remB0, 4), (RC, remC, None, 8), (RD, remD, None, 12))
    def atom(k):
        Rr, rem, rem0, ob = sets[k]
        def fn(r, u):
            e(f"v_and_b32_sdwa v20, v{r}, v116 dst_sel:DWORD dst_unused:UNUSED_PAD src0_sel:WORD_1 src1_sel:DWORD")
            e(f"v_lshrrev_b32 v21, 26, v{r}")
            e(f"v_lshlrev_b32 v21, v21, v114")
            e(f"ds_add_rtn_u32 v{OLD+ob+u}, v20, v21 offset:{L_CNT}")
        forrec(Rr, rem, rem0, fn)
    atom(0); atom(1)
    e(f"s_cmp_eq_u32 s{sI1}, 0"); e("s_cbranch_scc1 P_AT_D")
    atom(2); atom(3)
    e("P_AT_D:")
    e(f"s_waitcnt vmcnt({NW + WS_[1]})")
    warm(WS_[2])
    e(f"ds_write_b128 v45, v[60:63] offset:{L_WF}")
    e(f"ds_write_b128 v41, v[36:39] offset:{L_WF + 16384}")
    e("s_movk_i32 s66, 104")
    e("v_mul_u32_u24 v117, s66, v113")
    e("v_lshlrev_b32 v118, 3, v112")
    e(f"v_add_u32 v119, {L_CNT}, v117")
    e("v_lshlrev_b32 v55, 16, v55")
    rstat(g, 32, 36, 37, 38)
    e("s_waitcnt lgkmcnt(0)")
    e("s_barrier")
    if dbg: e("s_memrealtime s[82:83]")
    warm(WS_[3])
    e(f"ds_read_b64 v[56:57], v118 offset:{L_CNT}")
    KB = [12, 16, 24, 28, 60, 104]
    for u in range(6):
        e(f"ds_read2_b64 v[{KB[u]}:{KB[u]+3}], v117 offset0:{L_CNT // 8 + 2*u} offset1:{L_CNT // 8 + 2*u+1}" if False else
          f"ds_read2_b64 v[{KB[u]}:{KB[u]+3}], v119 offset0:{2*u} offset1:{2*u+1}")
    e(f"ds_read_b64 v[108:109], v119 offset:96")
    KR = [b + 2 * i for b in KB for i in range(2)] + [108]
    e("v_mov_b32 v121, 0")
    e("v_mov_b32 v120, 0")
    e("s_mov_b32 s71, 0x00400040"); e("s_mov_b32 s70, 0x00010040")
    e("s_waitcnt lgkmcnt(7)")
    e("v_dot2_u32_u16 v58, v57, s70, 0")
    e("v_dot2_u32_u16 v58, v56, s71, v58")
    for u0 in range(0, 13, 4):
        us = list(range(u0, min(u0 + 4, 13)))
        e(f"s_waitcnt lgkmcnt({max(0, 7 - (us[-1] // 2 + 1))})")
        for u in us: e(f"v_dot2_u32_u16 v{KR[u]+1}, v{KR[u]+1}, s70, 0")
        for u in us: e(f"v_dot2_u32_u16 v{KR[u]}, v{KR[u]}, s71, v{KR[u]+1}")
        for i, u in enumerate(us):
            e(f"v_cmp_gt_u32 s[{62+2*i}:{63+2*i}], v{KR[u]}, v58")
        for i, u in enumerate(us):
            a = 121 if i % 2 == 0 else 120
            e(f"v_addc_co_u32 v{a}, s[{62+2*i}:{63+2*i}], 0, v{a}, s[{62+2*i}:{63+2*i}]")
    e("v_add_u32 v121, v121, v120")
    for mod in DPP8:
        e(f"v_add_u32_dpp v121, v121, v121 {mod} row_mask:0xf bank_mask:0xf")
    e(f"s_movk_i32 s66, {TOKNODE}")
    e("v_mul_u32_u24 v37, s66, v121")
    e("v_lshl_add_u32 v37, v113, 4, v37")
    e("v_lshlrev_b32 v38, 5, v121")
    e("v_lshrrev_b32 v58, 7, v58")
    e(f"s_movk_i32 s66, {NODEB}")
    e(f"v_mov_b32 v62, {L_STREAM + NODEB - 2}")
    e("v_mad_u32_u24 v62, v121, s66, v62")
    e("v_lshlrev_b32 v63, 2, v121")
    e("v_lshrrev_b32 v59, 3, v121")
    e("v_lshlrev_b32 v59, 2, v59")
    e(f"s_mov_b64 exec, s[{sM800}:{sM800+1}]")
    e(f"ds_write_b128 v37, v[32:35] offset:{L_TOK}")
    e("v_cmp_eq_u32 vcc, 0, v113")
    e("s_and_b64 exec, exec, vcc")
    e("s_cbranch_execz P_RK_D")
    e(f"ds_write_b32 v38, v36 offset:{L_R}")
    e("v_and_b32 v57, 0xffff, v57")
    e("v_sub_u32 v46, v62, v57")
    e("v_lshrrev_b32 v47, 16, v56")
    e("v_sub_u32 v47, v46, v47")
    e("v_and_b32 v47, 0xffff, v47")
    e("v_lshl_or_b32 v46, v46, 16, v47")
    e("v_mov_b32 v47, v62")
    e(f"ds_write_b64 v118, v[46:47] offset:{L_INFO}")
    e(f"ds_write_b32 v63, v112 offset:{L_NODEOF}")
    e(f"ds_write_b32 v63, v55 offset:{L_DISF}")
    e(f"ds_max_u32 v59, v58 offset:{L_GINFO}")
    e(f"v_cmp_lt_u32 vcc, {PMAX-16}+16, v58" if False else f"s_movk_i32 s66, {PMAX}")
    e("v_cmp_lt_u32 vcc, s66, v58")
    e("s_and_b64 exec, exec, vcc")
    e("v_mov_b32 v63, 1")
    e(f"v_mov_b32 v62, {L_FLAG}")
    e("ds_write_b32 v62, v63")
    e("P_RK_D:")
    e("s_mov_b64 exec, -1")
    e(f"v_mov_b32 v60, {L_FLAG}")
    e("s_waitcnt lgkmcnt(0)")
    e("s_barrier")
    if dbg: e("s_memrealtime s[84:85]")
    warm(WS_[4])
    e("ds_read_b32 v61, v60")
    INF = 96
    e("v_mov_b32 v116, 0x3fe")
    def place_rd(k):
        Rr, rem, rem0, ob = sets[k]
        for u in range(4):
            e(f"v_and_b32_sdwa v115, v{Rr+u}, v116 dst_sel:DWORD dst_unused:UNUSED_PAD src0_sel:WORD_1 src1_sel:DWORD")
            e(f"ds_read_u16 v{INF+ob+u}, v115 offset:{L_INFO}")
    def place(k):
        Rr, rem, rem0, ob = sets[k]
        for u in range(4):
            e(f"v_lshrrev_b32 v115, 26, v{Rr+u}")
            e(f"v_bfe_u32 v{OLD+ob+u}, v{OLD+ob+u}, v115, 16")
            e(f"v_sub_u32 v{OLD+ob+u}, v{INF+ob+u}, v{OLD+ob+u}")
        def fn(r, u):
            e(f"ds_write_b16 v{OLD+ob+u}, v{r}")
        forrec(Rr, rem, rem0, fn)
    place_rd(0); place_rd(1)
    e("s_waitcnt lgkmcnt(8)")
    e(f"v_readfirstlane_b32 s{sSLOW}, v61")
    if O.forceslow:
        e("s_cmp_lt_u32 s2, 3"); e("s_cbranch_scc0 P_NOFS"); e(f"s_mov_b32 s{sSLOW}, 1"); e("P_NOFS:")
    e(f"s_cmp_lg_u32 s{sSLOW}, 0"); e("s_cbranch_scc1 P_PL_D")
    e("s_waitcnt lgkmcnt(4)")
    place(0)
    e("s_waitcnt lgkmcnt(4)")
    place(1)
    e(f"s_cmp_eq_u32 s{sI1}, 0"); e("s_cbranch_scc1 P_PL_D")
    place_rd(2); place_rd(3); e("s_waitcnt lgkmcnt(0)"); place(2); place(3)
    e("P_PL_D:")
    if O.perm:
        pk = 0
        for w, gidx in enumerate(O.perm + [13, 14, 15]): pk |= gidx << (4 * w)
        e(f"s_mov_b32 s62, {hex(pk & 0xffffffff)}"); e(f"s_mov_b32 s63, {hex(pk >> 32)}")
        e("s_lshl_b32 s64, s3, 2"); e("s_lshr_b64 s[62:63], s[62:63], s64"); e("s_and_b32 s3, s62, 15")
    e("s_lshl_b32 s64, s3, 3")
    e("v_add_u32 v72, s64, v126")
    e("v_add_u32 v73, s64, v127")
    e("v_lshlrev_b32 v74, 2, v72")
    e("v_lshlrev_b32 v75, 2, v73")
    e(f"v_lshrrev_b32 v78, 3, v{vLANE}")
    e("v_add_u32 v78, s64, v78")
    e(f"s_movk_i32 s65, {NODEB}")
    e(f"v_mul_u32_u24 v{vIDXA}, s65, v78")
    e("s_movk_i32 s66, 100")
    e("v_cmp_gt_u32 vcc, s66, v73")
    e(f"s_mov_b64 s[{sVALID}:{sVALID+1}], vcc")
    e(f"s_movk_i32 s64, {TOKNODE}")
    e(f"v_mul_u32_u24 v{vTOKA}, s64, v73")
    e(f"v_lshlrev_b32 v{vRA}, 5, v73")
    e(f"v_add_u32 v{vRA}, {L_R}, v{vRA}")
    e(f"v_add_u32 v{vTOKA}, v{vTOKA}, v{vL16}")
    e(f"v_add_u32 v{vTOKA}, {L_TOK}, v{vTOKA}")
    e("s_lshl_b32 s62, s3, 2")
    e("v_mov_b32 v76, s62")
    e("s_waitcnt lgkmcnt(0)")
    e("s_barrier")
    e("s_waitcnt vmcnt(0)")
    if dbg: e("s_memrealtime s[86:87]")
    if O.fbench:
        e("s_memrealtime s[62:63]")
        e("s_lshl_b32 s64, s2, 4"); e("s_add_u32 s64, s64, s3"); e("s_lshl_b32 s64, s64, 5")
        e(f"s_add_u32 s64, s64, 7"); e("s_lshl_b32 s64, s64, 3")
        e(f"s_add_u32 s64, s64, {hex(WS_STAMP)}")
        e("s_waitcnt lgkmcnt(0)")
        e("s_mov_b64 exec, 1")
        e(f"v_mov_b32 v32, s62"); e(f"v_mov_b32 v33, 0"); e(f"v_mov_b32 v34, s64")
        e(f"buffer_store_dwordx2 v[32:33], v34, s[{sWS}:{sWS+3}], 0 offen")
        e("s_mov_b64 exec, -1")
        e(f"s_cmp_ge_u32 s3, {O.fwaves}"); e("s_cbranch_scc1 P_END")
        e("s_branch F_HELP")
    e(f"s_cmp_ge_u32 s3, {NGRP}")
    e("s_cbranch_scc1 F_HELP")
    e(f"s_setprio {O.gprio}")
    e(f"ds_read_b32 v64, v76 offset:{L_GINFO}")
    e(f"ds_read_b32 v77, v75 offset:{L_NODEOF}")
    e(f"ds_read_b32 v{vDIS1}, v74 offset:{L_DISF}")
    e(f"ds_read_b32 v{vDIS2}, v74 offset:{L_DISF+16}")
    e(f"ds_read_b32 v{vDIS3}, v75 offset:{L_DISF}")
    for i in range(RING): e(f"v_mov_b32 v{vOFF+i}, 0x7ffffff0")
    e(f"s_mov_b32 s{sK}, 1")
    e(f"s_mov_b32 s{sT0}, 0")
    e(f"s_mov_b32 s{sGI+2}, 3200000"); e(f"s_mov_b32 s{sGI+3}, {SRD3}")
    e(f"s_mov_b32 s{sGO+2}, 3200000"); e(f"s_mov_b32 s{sGO+3}, {SRD3}")
    e(f"s_add_u32 s{sGO}, s12, {hex(WS_G)}"); e(f"s_addc_u32 s{sGO+1}, s13, 0")
    e(f"s_mov_b32 s{sPOI}, {hex(WS_G + 2 * WS_GS)}")
    for r in range(4): e(f"v_mov_b32 v{vX+r}, -1")
    e("s_mul_i32 s64, s2, 100")
    e("s_waitcnt lgkmcnt(0)")
    e("v_readfirstlane_b32 s65, v64")
    e("v_add_u32 v77, s64, v77")
    e(f"v_lshl_add_u32 v{vGOFF}, v77, 7, v{vL16}")
    e("s_max_u32 s65, s65, 1")
    e(f"s_min_u32 s65, s65, {PMAX}")
    e(f"s_sub_u32 s{sP0}, {PMAX}, s65")
    e(f"s_mov_b64 exec, s[{sVALID}:{sVALID+1}]")
    e(f"buffer_store_dwordx4 v[{vX}:{vX+3}], v{vGOFF}, s[{sWS}:{sWS+3}], s{sPOI} offen{O.stp}")
    e("s_mov_b64 exec, -1")
    e(f"s_add_u32 s{sPOI}, s{sPOI}, {hex(WS_GS)}")
    def stamp(idx, val, pre=None):
        if pre is None: e("s_memrealtime s[62:63]")
        else: e(f"s_mov_b32 s62, s{pre}")
        e("s_lshl_b32 s64, s2, 4"); e("s_add_u32 s64, s64, s3"); e("s_lshl_b32 s64, s64, 5")
        e(f"s_add_u32 s64, s64, {idx}"); e("s_lshl_b32 s64, s64, 3")
        e(f"s_add_u32 s64, s64, {hex(WS_STAMP)}")
        e("s_waitcnt lgkmcnt(0)")
        e("s_mov_b64 exec, 1")
        e(f"v_mov_b32 v32, s62"); e(f"v_mov_b32 v33, {val}"); e(f"v_mov_b32 v34, s64")
        e(f"buffer_store_dwordx2 v[32:33], v34, s[{sWS}:{sWS+3}], 0 offen")
        e("s_mov_b64 exec, -1")
    if dbg:
        stamp("0", f"s{sP0}")
        stamp("8", f"s{sP0}", pre=90)
        for i, r in enumerate((78, 80, 82, 84, 86, 92, 94, 96)): stamp(str(10 + i), f"s{sP0}", pre=r)
    e("P_HOP:")
    e(f"s_mov_b32 s{sGI}, s{sGO}"); e(f"s_mov_b32 s{sGI+1}, s{sGO+1}")
    e(f"s_add_u32 s{sGO}, s{sGO}, {hex(WS_GS)}"); e(f"s_addc_u32 s{sGO+1}, s{sGO+1}, 0")
    e(f"s_mov_b32 s{sTRY}, 0")
    e(f"s_mov_b32 s{sGTRY}, 0")
    e(f"s_cmp_lg_u32 s{sSLOW}, 0")
    e("s_cbranch_scc1 P_SLOWG")
    for i in range(8): e(f"v_mov_b32 v{vAC1+i}, 0")
    e(f"s_andn2_b32 s{sI16}, s{sP0}, 15")
    e(f"s_and_b32 s{sS0}, s{sP0}, 15")
    e(f"s_add_u32 s{sEXS}, s{sS0}, 15"); e(f"s_and_b32 s{sEXS}, s{sEXS}, 15")
    e(f"s_lshl_b32 s63, s{sI16}, 1")
    e(f"v_add_u32 v{vIP}, s63, v{vIDXA}")
    e(f"s_lshr_b32 s64, s{sS0}, 3"); e("s_lshl_b32 s64, s64, 5")
    e(f"v_add_u32 v{vT0}, s64, v{vIP}")
    e(f"ds_read_b128 v[{vX}:{vX+3}], v{vT0}")
    e(f"ds_read_b128 v[{vY}:{vY+3}], v{vIP} offset:16")
    if O.p7:
        e(f"s_cmp_eq_u32 s{sK}, 7"); e("s_cbranch_scc0 NOP7")
        e(f"s_mov_b32 s62, {sum(int(c) << (2 * i) for i, c in enumerate(O.p7))}")
        e("s_lshl_b32 s63, s3, 1"); e("s_lshr_b32 s62, s62, s63"); e("s_and_b32 s62, s62, 3")
        for pv in range(3):
            e(f"s_cmp_eq_u32 s62, {pv}"); e(f"s_cbranch_scc0 P7_{pv}"); e(f"s_setprio {pv}"); e("s_branch NOP7"); e(f"P7_{pv}:")
        e("s_setprio 3")
        e("NOP7:")
    e("GW1:")
    e(f"ds_read_b32 v{vT0}, v{vT1}")
    e("s_waitcnt lgkmcnt(0)")
    e(f"v_readfirstlane_b32 s62, v{vT0}")
    e(f"s_cmp_ge_u32 s62, s{sT0}")
    e("s_cbranch_scc1 GW2")
    e(f"s_add_u32 s{sGTRY}, s{sGTRY}, 1")
    e(f"s_cmp_gt_u32 s{sGTRY}, {TRYMAX*4}")
    e("s_cbranch_scc1 GW2")
    if O.gsleep: e(f"s_sleep {O.gsleep}")
    e("s_branch GW1")
    e("GW2:")
    tree(g, sS0, list(range(16)), lambda s: f"PA_{s}")
    def idxld(s):
        if s == 0:
            e("s_waitcnt lgkmcnt(0)"); e(f"ds_read_b128 v[{vY}:{vY+3}], v{vIP} offset:16")
        elif s == 8:
            e("s_waitcnt lgkmcnt(0)"); e(f"ds_read_b128 v[{vX}:{vX+3}], v{vIP} offset:32")
    def issue(s):
        r = (vX if s < 8 else vY) + (s % 8) // 2
        t = vOFF + s; d = vRING + 4 * s
        e(f"v_mad_u32_u16 v{t}, v{r}, s{s128}, v{vL16} op_sel:[{s%2},0,0,0]")
        e(f"buffer_load_dwordx4 v[{d}:{d+3}], v{t}, s[{sGI}:{sGI+3}], 0 offen{O.ld}")
    def check(sl):
        s = vRING + 4 * sl
        e(f"v_max3_u32 v{vT0}, v{s}, v{s+1}, v{s+2}")
        e(f"v_max_u32 v{vT0}, v{vT0}, v{s+3}")
        e(f"v_cmp_eq_u32 vcc, -1, v{vT0}")
    def mfmas(sl):
        s = vRING + 4 * sl
        e(f"v_mfma_f32_16x16x32_bf16 v[{vAC1}:{vAC1+3}], v[{vA1}:{vA1+3}], v[{s}:{s+3}], v[{vAC1}:{vAC1+3}]")
        e(f"v_mfma_f32_16x16x32_bf16 v[{vAC2}:{vAC2+3}], v[{vA2}:{vA2+3}], v[{s}:{s+3}], v[{vAC2}:{vAC2+3}]")
    def wrap():
        e(f"s_add_u32 s{sI16}, s{sI16}, 16")
        e(f"v_add_u32 v{vIP}, 32, v{vIP}")
    for s in range(16):
        e(f"PA_{s}:")
        idxld(s)
        issue(s)
        if s < 15:
            e(f"s_cmp_eq_u32 s{sEXS}, {s}"); e(f"s_cbranch_scc1 PB_{s+1}")
        else:
            e(f"s_cmp_eq_u32 s{sI16}, {PMAX-16}"); e("s_cbranch_scc1 PA_END")
            wrap()
            e(f"s_cmp_eq_u32 s{sEXS}, 15"); e("s_cbranch_scc0 PA_0")
    for s in range(16):
        e(f"PB_{s}:")
        e("s_waitcnt vmcnt(15)")
        check(s)
        e(f"s_cbranch_vccnz STB_{s}")
        e(f"RTB_{s}:")
        mfmas(s)
        idxld(s)
        issue(s)
    wrap()
    e(f"s_cmp_lt_u32 s{sI16}, {PMAX}"); e("s_cbranch_scc1 PB_0")
    for s in range(16):
        e(f"PD_{s}:")
        e(f"s_waitcnt vmcnt({15-s})")
        check(s)
        e(f"s_cbranch_vccnz STD_{s}")
        e(f"RTD_{s}:")
        mfmas(s)
    e("s_branch P_FLUSH")
    e("PA_END:")
    tree(g, sS0, list(range(16)), lambda s: f"PD_{s}")
    for s in range(16):
        for t in "BD":
            e(f"ST{t}_{s}:")
            e(f"s_call_b64 s[{sRET}:{sRET+1}], POLL_{s}")
            e(f"s_branch RT{t}_{s}")
    for sl in range(RING):
        s = vRING + 4 * sl
        e(f"POLL_{sl}:")
        e(f"s_add_u32 s{sTRY}, s{sTRY}, 1")
        e(f"s_cmp_gt_u32 s{sTRY}, {TRYMAX}")
        e("s_cbranch_scc1 P_RET")
        if O.sleep: e(f"s_sleep {O.sleep}")
        e("s_mov_b64 exec, vcc")
        e(f"buffer_load_dwordx4 v[{s}:{s+3}], v{vOFF+sl}, s[{sGI}:{sGI+3}], 0 offen{SC}")
        e("s_mov_b64 exec, -1")
        e("s_waitcnt vmcnt(0)")
        check(sl)
        e(f"s_cbranch_vccnz POLL_{sl}")
        if sl < RING - 1: e("s_branch P_REFRESH")
    e("P_REFRESH:")
    for sl in range(RING):
        s = vRING + 4 * sl
        l = g.lab("RF")
        check(sl)
        e(f"s_cbranch_vccz {l}")
        e("s_mov_b64 exec, vcc")
        e(f"buffer_load_dwordx4 v[{s}:{s+3}], v{vOFF+sl}, s[{sGI}:{sGI+3}], 0 offen{SC}")
        e("s_mov_b64 exec, -1")
        e(f"{l}:")
    e("s_waitcnt vmcnt(0)")
    e("P_RET:")
    e(f"s_setpc_b64 s[{sRET}:{sRET+1}] ; @to " + " ".join(f"RT{t}_{p}" for t in "BD" for p in range(16)))
    e("P_FLUSH:")
    if dbg:
        stamp(f"s{sK}", f"s{sTRY}")
    H = vF
    for b in range(4):
        e(f"v_mul_f32 v{vAC1+b}, v{vAC1+b}, v{vDIS1}")
        e(f"v_mul_f32 v{vAC2+b}, v{vAC2+b}, v{vDIS2}")
    e(f"v_cvt_pk_bf16_f32 v{H}, v{vAC1}, v{vAC1+1}")
    e(f"v_cvt_pk_bf16_f32 v{H+1}, v{vAC1+2}, v{vAC1+3}")
    e(f"v_cvt_pk_bf16_f32 v{H+2}, v{vAC2}, v{vAC2+1}")
    e(f"v_cvt_pk_bf16_f32 v{H+3}, v{vAC2+2}, v{vAC2+3}")
    e(f"v_permlane16_swap_b32 v{H}, v{H+2}")
    e(f"v_permlane16_swap_b32 v{H+1}, v{H+3}")
    e(f"s_mov_b64 exec, s[{sVALID}:{sVALID+1}]")
    e(f"s_cmp_eq_u32 s{sK}, 7")
    e("s_cbranch_scc1 P_NOG")
    G = vF + 4
    for r in range(4):
        e(f"v_lshlrev_b32 v{vF+8}, 16, v{H+r}")
        e(f"v_and_b32 v{vF+9}, 0xffff0000, v{H+r}")
        e(f"v_mul_f32 v{vF+8}, v{vF+8}, v{vDIS3}")
        e(f"v_mul_f32 v{vF+9}, v{vF+9}, v{vDIS3}")
        e(f"v_cvt_pk_bf16_f32 v{G+r}, v{vF+8}, v{vF+9}")
        e(f"v_min_u32 v{G+r}, -2, v{G+r}")
    e(f"buffer_store_dwordx4 v[{G}:{G+3}], v{vGOFF}, s[{sGO}:{sGO+3}], 0 offen{O.stg}")
    e("s_mov_b64 exec, 1")
    e(f"v_mov_b32 v{vF+12}, 1")
    e(f"ds_add_u32 v{vT1}, v{vF+12}")
    e(f"s_mov_b64 exec, s[{sVALID}:{sVALID+1}]")
    e(f"s_cmp_gt_u32 s{sK}, 4")
    e("s_cbranch_scc1 P_NOG")
    for r in range(4): e(f"v_mov_b32 v{vX+r}, -1")
    e(f"buffer_store_dwordx4 v[{vX}:{vX+3}], v{vGOFF}, s[{sWS}:{sWS+3}], s{sPOI} offen{O.stp}")
    e(f"s_add_u32 s{sPOI}, s{sPOI}, {hex(WS_GS)}")
    e("P_NOG:")
    e(f"s_mul_i32 s62, s{sK}, {TOKROW}")
    e(f"v_add_u32 v{vF+10}, s62, v{vTOKA}")
    e(f"ds_write_b128 v{vF+10}, v[{H}:{H+3}]")
    e(f"v_add_u32 v{vRA}, 4, v{vRA}")
    rstat(g, H, vF + 12, vF + 13, vF + 14)
    e(f"ds_write_b32 v{vRA}, v{vF+12}")
    e("s_mov_b64 exec, -1")
    e(f"s_add_u32 s{sT0}, s{sT0}, {NGRP}")
    e(f"s_add_u32 s{sK}, s{sK}, 1")
    e(f"s_cmp_le_u32 s{sK}, {O.nhops}")
    e("s_cbranch_scc1 P_HOP")
    final7.gen_final(g)
    if dbg:
        stamp("9", f"s{final7.sC+5}")
    e("s_branch P_END")
    e("P_SLOWG:")
    e(f"v_lshrrev_b32 v{vT0}, 3, v{vLANE}")
    e("s_lshl_b32 s62, s3, 5")
    e(f"s_add_u32 s62, s62, {L_NODEOF}")
    e(f"v_lshl_add_u32 v39, v{vT0}, 2, s62")
    e(f"ds_read_b32 v40, v39")
    e("s_lshl_b32 s62, s3, 3")
    e(f"v_add_u32 v{vT0}, s62, v{vT0}")
    e("s_mul_i32 s62, s2, 100")
    e("s_movk_i32 s63, 100")
    e(f"v_cmp_gt_u32 vcc, s63, v{vT0}")
    for i in range(8): e(f"v_mov_b32 v{vAC1+i}, 0")
    e(f"v_lshlrev_b32 v41, 4, v{vLANE}")
    srd(g, 80, 6, 7, 3200000)
    srd(g, 84, 8, 9, 3200000)
    e("s_waitcnt lgkmcnt(0)")
    e("v_add_u32 v40, s62, v40")
    e("v_cndmask_b32 v40, -1, v40, vcc")
    e("s_mov_b32 s66, 0")
    e("SG_CHUNK:")
    e("buffer_load_dwordx4 v[44:47], v41, s[84:87], s66 offen")
    e("buffer_load_dwordx4 v[48:51], v41, s[80:83], s66 offen")
    e("s_waitcnt vmcnt(0)")
    for u in range(4):
        e("s_mov_b32 s67, 0")
        e(f"SG_R{u}:")
        e("v_readlane_b32 s68, v40, s67")
        e("s_mov_b64 s[62:63], 0xff")
        e("s_lshl_b64 s[62:63], s[62:63], s67")
        e(f"v_cmp_eq_u32 s[64:65], s68, v{44+u}")
        e(f"SG_E{u}:")
        e("s_cmp_eq_u64 s[64:65], 0")
        e(f"s_cbranch_scc1 SG_N{u}")
        e("s_ff1_i32_b64 s69, s[64:65]")
        e("s_bitset0_b64 s[64:65], s69")
        e(f"v_readlane_b32 s68, v{48+u}, s69")
        e("s_lshl_b32 s68, s68, 7")
        e(f"v_add_u32 v42, s68, v{vL16}")
        e("v_mov_b32 v43, 0x7ffffff0")
        e("v_cndmask_b32 v42, v43, v42, s[62:63]")
        e(f"SG_P{u}:")
        e(f"buffer_load_dwordx4 v[52:55], v42, s[{sGI}:{sGI+3}], 0 offen{SC}")
        e("s_waitcnt vmcnt(0)")
        e(f"v_max3_u32 v{vT0}, v52, v53, v54")
        e(f"v_max_u32 v{vT0}, v{vT0}, v55")
        e(f"v_cmp_eq_u32 vcc, -1, v{vT0}")
        e(f"s_cbranch_vccz SG_A{u}")
        e(f"s_add_u32 s{sTRY}, s{sTRY}, 1")
        e(f"s_cmp_gt_u32 s{sTRY}, {TRYMAX}")
        e(f"s_cbranch_scc1 SG_A{u}")
        e("s_sleep 8")
        e(f"s_branch SG_P{u}")
        e(f"SG_A{u}:")
        e(f"v_mfma_f32_16x16x32_bf16 v[{vAC1}:{vAC1+3}], v[{vA1}:{vA1+3}], v[52:55], v[{vAC1}:{vAC1+3}]")
        e(f"v_mfma_f32_16x16x32_bf16 v[{vAC2}:{vAC2+3}], v[{vA2}:{vA2+3}], v[52:55], v[{vAC2}:{vAC2+3}]")
        e(f"s_branch SG_E{u}")
        e(f"SG_N{u}:")
        e("s_add_u32 s67, s67, 8")
        e("s_cmp_lt_u32 s67, 64")
        e(f"s_cbranch_scc1 SG_R{u}")
    e("s_add_u32 s66, s66, 1024")
    e("s_cmp_lt_u32 s66, 3200000")
    e("s_cbranch_scc1 SG_CHUNK")
    e("s_branch P_FLUSH")
    e("F_HELP:")
    final7.gen_lc(g)
    e("s_branch F_SETUP")
    e("P_END:")
    e("s_endpgm")

def build(path):
    g = Gen()
    gen_k1(g)
    gen_p(g)
    kernel_desc(g, "bin_kernel", 96, 64)
    kernel_desc(g, "graph_kernel", 128, 100)
    launches = [f"; @launch kernel=bin_kernel grid=({NB+1},1,1) block=(1024,1,1) lds={K1_LDS}",
                f"; @launch kernel=graph_kernel grid=({NB},1,1) block=(1024,1,1) lds={P_LDS}"]
    s = finish(g, launches, "gather_scatter__hybrid_graph_tf_nagphormer__graph.s.ref")
    open(path, "w").write(s)
    return s

if __name__ == "__main__":
    import argparse
    ap = argparse.ArgumentParser()
    ap.add_argument("out")
    for f in ("dbgstat", "forceslow"): ap.add_argument("--" + f, action="store_true")
    ap.add_argument("--sleep", type=int, default=2); ap.add_argument("--gsleep", type=int, default=1)
    ap.add_argument("--nhops", type=int, default=7)
    ap.add_argument("--perm", default=None); ap.add_argument("--p7", default=None)
    ap.add_argument("--stp", default="sc1"); ap.add_argument("--stg", default="sc1"); ap.add_argument("--k1st", default="sc1")
    ap.add_argument("--gprio", type=int, default=3); ap.add_argument("--fsleep", type=int, default=2)
    ap.add_argument("--fbench", type=int, default=0); ap.add_argument("--fwaves", type=int, default=16); ap.add_argument("--fx", default="")
    ap.add_argument("--wsch", default="0,0,0,0,0"); ap.add_argument("--thr", default="30,35")
    ap.add_argument("--fv", type=int, default=1); ap.add_argument("--torder", default=None)
    a = ap.parse_args()
    O.gprio = a.gprio; O.fsleep = a.fsleep; O.fbench = a.fbench; O.fwaves = a.fwaves; O.fx = a.fx; O.fv = a.fv
    O.stp = " " + a.stp.replace("_", " "); O.stg = " " + a.stg.replace("_", " "); O.k1st = (" " + a.k1st.replace("_", " ")) if a.k1st else ""
    O.thr = tuple(int(x) for x in a.thr.split(","))
    O.wsch = tuple(int(x) for x in a.wsch.split(','))
    O.dbgstat = a.dbgstat; O.forceslow = a.forceslow
    O.sleep = a.sleep; O.gsleep = a.gsleep; O.nhops = a.nhops; O.p7 = a.p7
    O.perm = [int(x) for x in a.perm.split(",")] if a.perm else None
    O.torder = [int(x) for x in a.torder.split(",")] if a.torder else None
    build(a.out)
    print("P_LDS", P_LDS)
```

```python
import sys, os
sys.path.insert(0, os.path.dirname(os.path.abspath(__file__)))
from gen import Gen, srd, kernel_header, kernel_desc, finish, NB, WS_G, WS_GS, WS_WF, WS_STAMP, WS_BYTES, SRD3

class Opt:
    dbgstat = False; forceslow = False
    sleep = 2; gsleep = 1; nhops = 7
    perm = None
    stp = " sc1"; stg = " sc1"; ld = " sc1"
    gprio = 1; fsleep = 2; fbench = 0; fwaves = 16; fx = ""
    k1st = ""
    p7 = None
    wsch = (0, 0, 0, 0, 0)
    thr = (30, 35)
    relax = 0
O = Opt()
import struct
def bf16bits(x):
    u = struct.unpack("<I", struct.pack("<f", x))[0]
    return (u + 0x7FFF + ((u >> 16) & 1)) >> 16
def thr_bits(d):
    return bf16bits((d + 1.0) ** -0.5)

WS_REC = 0x0
WS_EXT = 0x3000000
CELLS = 272
WS_RANK = WS_WF + 0x10000
PMAX = 80
NODEB = PMAX * 2
NGRP = 13
TOKROW = 144
TOKNODE = 8 * TOKROW
L_STREAM = 0
L_CNT = 104 * NODEB + 64
L_INFO = L_CNT + 1024
L_NODEOF = L_INFO + 1024
L_GINFO = L_NODEOF + 512
L_DISF = L_GINFO + 64
L_FLAG = L_DISF + 512
L_WF = L_FLAG + 64
WFX = 2048 + 16
L_LC = L_WF + 16384 + WFX
L_R = L_LC + 3072
L_TOK = L_R + 104 * 32
P_LDS = L_TOK + 100 * TOKNODE
NTILE = 50
RING = 16
TRYMAX = 200000
K1_KEY = 1024 + NB * CELLS
K1_LDS = K1_KEY + 512

sWS, sGI, sGO, sX, sDIS, sOUT = 20, 24, 28, 32, 36, 44
sK, sP0, sT0, sPOI = 52, 53, 56, 59
sM800 = 60
sVALID = 70
sI1, sI2 = 72, 73
sTRY = 73
s128, sSLOW, sRET = 74, 75, 76
sI16, sS0, sEXS, sGTRY = 87, 88, 90, 93
sONES = 99
vTID, vLANE, vL16, vIDXA = 0, 1, 2, 3
vA1, vA2, vAC1, vAC2 = 4, 8, 12, 16
vIP, vT0, vT1 = 20, 21, 22
vX, vY = 24, 28
vRING = 40
vOFF = 104
vDIS1, vDIS2, vDIS3, vTOKA, vGOFF, vRA, vGATE = 120, 121, 122, 123, 124, 125, 126
vF = 40

def redq(e, x, tmp, op="v_add_f32"):
    e(f"v_mov_b32 v{tmp}, v{x}"); e(f"v_permlane16_swap_b32 v{x}, v{tmp}"); e(f"{op} v{x}, v{x}, v{tmp}")
    e(f"v_mov_b32 v{tmp}, v{x}"); e(f"v_permlane32_swap_b32 v{x}, v{tmp}"); e(f"{op} v{x}, v{x}, v{tmp}")
def red16(e, x, tmp, op):
    e(f"v_mov_b32 v{tmp}, v{x}"); e(f"v_permlane16_swap_b32 v{x}, v{tmp}"); e(f"{op} v{x}, v{x}, v{tmp}")

def gen_k1(g):
    e = g.e
    kernel_header(g, "bin_kernel")
    e(f"s_cmp_gt_u32 s2, {NB}")
    e("s_cbranch_scc1 K1_END")
    e("s_load_dwordx8 s[4:11], s[0:1], 0")
    e("s_load_dwordx2 s[12:13], s[0:1], 88")
    if O.dbgstat: e("s_memrealtime s[52:53]")
    e(f"s_cmp_eq_u32 s2, {NB}")
    e("s_cbranch_scc1 K1_W")
    e("v_lshlrev_b32 v1, 4, v0")
    e("v_lshlrev_b32 v2, 2, v0")
    e("v_mov_b32 v3, 0")
    e("s_movk_i32 s14, 0x100")
    e("v_cmp_gt_u32 vcc, s14, v0")
    e("s_and_saveexec_b64 s[40:41], vcc")
    e("ds_write_b32 v2, v3")
    e("s_mov_b64 exec, s[40:41]")
    e("s_movk_i32 s14, 128")
    e("v_cmp_gt_u32 vcc, s14, v0")
    e("s_and_saveexec_b64 s[40:41], vcc")
    e("v_mov_b32 v3, -1")
    e(f"v_add_u32 v5, {K1_KEY}, v2")
    e("ds_write_b32 v5, v3")
    e("s_mov_b64 exec, s[40:41]")
    e("s_movk_i32 s14, 800")
    e("v_cmp_gt_u32 vcc, s14, v0")
    e("s_mov_b64 s[42:43], vcc")
    e("s_mul_i32 s14, s2, 12800")
    e("s_mul_i32 s15, s2, 200")
    e(f"s_movk_i32 s47, {CELLS}")
    e("v_lshrrev_b32 v4, 3, v0")
    e("v_lshlrev_b32 v4, 1, v4")
    e("s_waitcnt lgkmcnt(0)")
    srd(g, 16, 6, 7, 3200000)
    srd(g, 20, 8, 9, 3200000)
    srd(g, 24, 4, 5, 3200000)
    srd(g, 28, 10, 11, 50000)
    srd(g, 32, 12, 13, hex(WS_BYTES))
    e("s_mov_b64 exec, s[42:43]")
    e("s_cbranch_execz K1_NOLD")
    e("buffer_load_dwordx4 v[8:11], v1, s[20:23], s14 offen")
    e("buffer_load_dwordx4 v[12:15], v1, s[16:19], s14 offen")
    e("buffer_load_dwordx4 v[16:19], v1, s[24:27], s14 offen")
    e("buffer_load_ushort v20, v4, s[28:31], s15 offen")
    for r_ in range(4): e(f"v_mov_b32 v{24+r_}, -1")
    e("K1_NOLD:")
    e("s_mov_b64 exec, -1")
    e("s_waitcnt lgkmcnt(0)")
    e("s_barrier")
    e("s_mov_b64 exec, s[42:43]")
    e("s_cbranch_execz K1_SKIP")
    e("s_waitcnt vmcnt(3)")
    e("s_movk_i32 s45, 5243")
    e("s_movk_i32 s46, -100")
    e("v_mov_b32 v21, 1")
    for u in range(4):
        d = 8 + u
        e(f"v_mul_u32_u24 v{28+u}, s45, v{d}")
        e(f"v_lshrrev_b32 v{28+u}, 19, v{28+u}")
        e(f"v_mad_i32_i24 v{d}, v{28+u}, s46, v{d}")
        e(f"v_lshlrev_b32 v22, 2, v{28+u}")
        e(f"ds_add_rtn_u32 v{32+u}, v22, v21")
        e(f"v_mul_u32_u24 v{28+u}, s47, v{28+u}")
    e("s_waitcnt vmcnt(2)")
    for u in range(4):
        e(f"v_lshlrev_b32 v{52+u}, 1, v{12+u}")
        e(f"buffer_load_ushort v{56+u}, v{52+u}, s[28:31], 0 offen")
    e(f"s_add_u32 s44, s14, {hex(WS_G + WS_GS)}")
    e(f"buffer_store_dwordx4 v[24:27], v1, s[32:35], s44 offen{O.k1st}")
    for u in range(4):
        e(f"v_lshl_or_b32 v{8+u}, v{8+u}, 19, v{12+u}")
    e("s_waitcnt vmcnt(5)")
    e("v_lshrrev_b32 v36, 3, v0")
    e("v_and_b32 v37, 7, v0")
    e("v_lshl_or_b32 v38, v20, 7, v36")
    e("v_lshlrev_b32 v39, 2, v36")
    e(f"v_add_u32 v39, {K1_KEY}, v39")
    e("ds_write_b32 v39, v38")
    e("v_lshlrev_b32 v20, 16, v20")
    for r in range(4):
        e(f"v_lshlrev_b32 v22, 16, v{16+r}")
        e(f"v_and_b32 v23, 0xffff0000, v{16+r}")
        e("v_mul_f32 v22, v22, v20")
        e("v_mul_f32 v23, v23, v20")
        e(f"v_cvt_pk_bf16_f32 v{16+r}, v22, v23")
    e(f"s_add_u32 s44, s14, {hex(WS_G)}")
    e(f"buffer_store_dwordx4 v[16:19], v1, s[32:35], s44 offen{O.k1st}")
    e("s_waitcnt lgkmcnt(0)")
    e("s_barrier")
    e("v_lshlrev_b32 v39, 6, v37")
    e(f"v_add_u32 v39, {K1_KEY}, v39")
    for u in range(4):
        e(f"ds_read_b128 v[{64+4*u}:{67+4*u}], v39 offset:{16*u}")
    e("v_mov_b32 v40, 0"); e("v_mov_b32 v41, 0")
    e("s_waitcnt lgkmcnt(0)")
    for u0 in range(0, 16, 4):
        for i in range(4):
            e(f"v_cmp_lt_u32 s[{56+2*i}:{57+2*i}], v{64+u0+i}, v38")
        for i in range(4):
            a = 40 + i % 2
            e(f"v_addc_co_u32 v{a}, s[{56+2*i}:{57+2*i}], 0, v{a}, s[{56+2*i}:{57+2*i}]")
    e("v_add_u32 v40, v40, v41")
    for mod in DPP8:
        e(f"v_add_u32_dpp v40, v40, v40 {mod} row_mask:0xf bank_mask:0xf")
    e("v_lshlrev_b32 v39, 1, v36")
    e("s_lshl_b32 s44, s2, 8")
    e(f"s_add_u32 s44, s44, {hex(WS_RANK)}")
    e("v_cmp_eq_u32 vcc, 0, v37")
    e("s_and_b64 exec, s[42:43], vcc")
    e(f"buffer_store_short v40, v39, s[32:35], s44 offen{O.k1st}")
    e("s_mov_b64 exec, s[42:43]")
    e(f"s_movk_i32 s48, {hex(thr_bits(O.thr[0]))}")
    e(f"s_movk_i32 s49, {hex(thr_bits(O.thr[1]))}")
    e(f"v_mov_b32 v60, {hex((1 << 17) | (1 << 30))}")
    e(f"v_mov_b32 v61, {hex(1 << 18)}")
    e("s_waitcnt vmcnt(3)")
    for u in range(4):
        e(f"v_cmp_gt_u32 vcc, s48, v{56+u}")
        e(f"v_cndmask_b32 v22, v61, v60, vcc")
        e(f"v_cmp_gt_u32 vcc, s49, v{56+u}")
        e(f"v_cndmask_b32 v22, v22, 0, vcc")
        e(f"v_or_b32 v{8+u}, v{8+u}, v22")
    for u in range(4):
        e(f"v_cmp_gt_u32 vcc, 63, v{32+u}")
        e(f"v_lshl_add_u32 v{28+u}, v{32+u}, 2, v{28+u}")
        e("s_and_b64 exec, s[42:43], vcc")
        e(f"ds_write_b32 v{28+u}, v{8+u} offset:{1024+4}")
    e("s_branch K1_B1")
    e("K1_SKIP:")
    e("s_barrier")
    e("K1_B1:")
    e("s_mov_b64 exec, -1")
    e("s_waitcnt lgkmcnt(0)")
    e("s_barrier")
    e("s_movk_i32 s14, 1000")
    e("v_cmp_gt_u32 vcc, s14, v0")
    e("s_and_b64 exec, exec, vcc")
    e("s_cbranch_execz K1_END")
    e("s_mov_b64 s[42:43], exec")
    e("v_lshrrev_b32 v4, 2, v0")
    e("v_and_b32 v5, 3, v0")
    e("v_lshlrev_b32 v6, 2, v4")
    e("ds_read_b32 v7, v6")
    e(f"v_mul_u32_u24 v8, s47, v4")
    e("v_lshl_add_u32 v8, v5, 4, v8")
    e("ds_read_b128 v[12:15], v8 offset:1024")
    e("ds_read_b128 v[16:19], v8 offset:1088")
    e("s_movk_i32 s45, 32000")
    e("v_mul_u32_u24 v9, s45, v4")
    e("v_lshl_add_u32 v9, v5, 4, v9")
    e("s_lshl_b32 s44, s2, 7")
    if WS_REC: e(f"s_add_u32 s44, s44, {hex(WS_REC)}")
    e("v_lshlrev_b32 v10, 2, v5")
    e("v_cmp_eq_u32 vcc, 0, v5")
    e("s_waitcnt lgkmcnt(0)")
    e("v_cndmask_b32 v12, v12, v7, vcc")
    e("v_sub_u32 v11, v7, v10")
    e("v_cmp_le_i32 vcc, 0, v11")
    e("s_and_b64 exec, s[42:43], vcc")
    e(f"buffer_store_dwordx4 v[12:15], v9, s[32:35], s44 offen{O.k1st}")
    e("v_cmp_le_i32 vcc, 16, v11")
    e("s_and_b64 exec, s[42:43], vcc")
    e(f"buffer_store_dwordx4 v[16:19], v9, s[32:35], s44 offen offset:64{O.k1st}")
    e("v_cmp_le_i32 vcc, 32, v11")
    e("s_and_b64 exec, s[42:43], vcc")
    e("s_cbranch_execz K1_NOEXT")
    e("ds_read_b128 v[12:15], v8 offset:1152")
    e("ds_read_b128 v[16:19], v8 offset:1216")
    e("s_lshl_b32 s44, s2, 7")
    e(f"s_add_u32 s44, s44, {hex(WS_EXT)}")
    e("s_waitcnt lgkmcnt(0)")
    e(f"buffer_store_dwordx4 v[12:15], v9, s[32:35], s44 offen")
    e(f"buffer_store_dwordx4 v[16:19], v9, s[32:35], s44 offen offset:64")
    e("K1_NOEXT:")
    if O.dbgstat:
        e("s_mov_b64 exec, s[42:43]")
        e("s_waitcnt vmcnt(0)")
        e("s_memrealtime s[54:55]")
        e("s_lshl_b32 s56, s2, 4"); e(f"s_add_u32 s56, s56, {hex(WS_STAMP + 0x100000)}")
        e("v_cmp_eq_u32 vcc, 0, v0"); e("s_and_b64 exec, exec, vcc")
        e("s_waitcnt lgkmcnt(0)")
        e("v_mov_b32 v40, s52"); e("v_mov_b32 v41, s54"); e("v_mov_b32 v42, s56")
        e("buffer_store_dwordx2 v[40:41], v42, s[32:35], 0 offen")
    e("s_endpgm")
    e("K1_W:")
    e("s_load_dwordx8 s[16:23], s[0:1], 32")
    e("s_load_dwordx2 s[56:57], s[0:1], 64")
    e("v_lshrrev_b32 v1, 6, v0")
    e("v_and_b32 v2, 63, v0")
    e("v_readfirstlane_b32 s3, v1")
    e("v_lshrrev_b32 v3, 4, v2")
    e("v_and_b32 v4, 15, v2")
    e("s_lshr_b32 s24, s3, 2")
    e("s_and_b32 s25, s3, 3")
    e("v_lshrrev_b32 v5, 2, v4")
    e("v_and_b32 v6, 3, v4")
    e("v_lshl_add_u32 v7, v5, 4, v6")
    e("s_lshl_b32 s26, s25, 2")
    e("s_lshl_b32 s27, s24, 2")
    e("v_add_u32 v8, s26, v7")
    e("v_add_u32 v9, s27, v7")
    e("v_lshlrev_b32 v10, 7, v8")
    e("v_lshl_add_u32 v10, v3, 4, v10")
    e("v_lshlrev_b32 v11, 7, v9")
    e("v_lshl_add_u32 v11, v3, 4, v11")
    e("s_waitcnt lgkmcnt(0)")
    srd(g, 28, 16, 17, 8192)
    srd(g, 32, 18, 19, 8192)
    srd(g, 36, 20, 21, 8192)
    srd(g, 40, 22, 23, 8192)
    srd(g, 44, 12, 13, 16384 + WFX, add=hex(WS_WF))
    srd(g, 52, 56, 57, 128)
    e("buffer_load_dwordx4 v[16:19], v10, s[28:31], 0 offen")
    e("buffer_load_dwordx4 v[20:23], v10, s[28:31], 0 offen offset:64")
    e("buffer_load_dwordx4 v[24:27], v11, s[32:35], 0 offen")
    e("buffer_load_dwordx4 v[28:31], v11, s[32:35], 0 offen offset:64")
    e("buffer_load_dwordx4 v[32:35], v10, s[36:39], 0 offen")
    e("buffer_load_dwordx4 v[36:39], v10, s[36:39], 0 offen offset:64")
    e("v_lshlrev_b32 v12, 10, v3")
    e("v_lshl_add_u32 v12, v9, 1, v12")
    e("s_movk_i32 s48, 0x1000")
    for sp in range(2):
        for j in range(8):
            off = (32 * sp + j) * 128
            so = "0"
            if off >= 4096:
                so = "s48"; off -= 4096
            e(f"buffer_load_ushort v{60 + sp*8 + j}, v12, s[40:43], {so} offen offset:{off}")
    e("v_lshlrev_b32 v76, 5, v3")
    e("buffer_load_dwordx4 v[80:83], v76, s[52:55], 0 offen")
    e("buffer_load_dwordx4 v[84:87], v76, s[52:55], 0 offen offset:16")
    for i in range(8): e(f"v_mov_b32 v{48+i}, 0")
    e("s_waitcnt vmcnt(0)")
    for r in range(8):
        e(f"v_lshl_or_b32 v{40+r}, v{61+2*r}, 16, v{60+2*r}")
    e("v_mfma_f32_16x16x32_bf16 v[48:51], v[16:19], v[24:27], v[48:51]")
    e("v_mfma_f32_16x16x32_bf16 v[52:55], v[32:35], v[40:43], v[52:55]")
    e("v_mfma_f32_16x16x32_bf16 v[48:51], v[20:23], v[28:31], v[48:51]")
    e("v_mfma_f32_16x16x32_bf16 v[52:55], v[36:39], v[44:47], v[52:55]")
    e("s_cmp_lg_u32 s3, 0"); e("s_cbranch_scc1 K1_W2")
    e("v_cmp_eq_u32 s[62:63], 0, v6")
    e("v_cmp_eq_u32 s[60:61], 1, v6")
    e("v_mov_b32 v77, 0x3f803f80")
    for r in range(8):
        e(f"v_cndmask_b32 v{88+r}, 0, v77, s[62:63]")
        e(f"v_cndmask_b32 v{88+r}, v{88+r}, v{80+r}, s[60:61]")
    for r in range(4): e(f"v_mov_b32 v{80+r}, 0x3f803f80")
    e("v_mfma_f32_16x16x32_bf16 v[84:87], v[88:91], v[80:83], 0")
    e("v_mfma_f32_16x16x32_bf16 v[84:87], v[92:95], v[80:83], v[84:87]")
    e("v_lshlrev_b32 v13, 4, v2")
    e("s_movk_i32 s50, 0x4000")
    e("buffer_store_dwordx4 v[88:91], v13, s[44:47], s50 offen")
    e("buffer_store_dwordx4 v[92:95], v13, s[44:47], s50 offen offset:1024")
    e("v_mov_b32 v84, v85"); e("v_mov_b32 v86, v85"); e("v_mov_b32 v87, v85")
    e("v_mov_b32 v13, 0"); e("s_movk_i32 s50, 0x4800")
    e("s_mov_b64 exec, 1")
    e("buffer_store_dwordx4 v[84:87], v13, s[44:47], s50 offen")
    e("s_mov_b64 exec, -1")
    e("K1_W2:")
    def ror_sum(x):
        for sh in (8, 4, 2, 1):
            e(f"v_add_f32_dpp v{x}, v{x}, v{x} row_ror:{sh} row_mask:0xf bank_mask:0xf")
    e("v_add_f32 v56, v48, v49"); e("v_add_f32 v57, v50, v51"); e("v_add_f32 v56, v56, v57")
    e("v_add_f32 v58, v52, v53"); e("v_add_f32 v59, v54, v55"); e("v_add_f32 v58, v58, v59")
    redq(e, 56, 57); redq(e, 58, 59)
    e("v_mov_b32 v60, v56"); ror_sum(60)
    for b in range(4):
        e(f"v_mov_b32 v{62+b}, v{48+b}"); ror_sum(62 + b)
    e("v_lshlrev_b32 v14, 4, v9")
    e("s_lshl_b32 s50, s25, 2")
    e("v_add_u32 v14, s50, v14")
    e("ds_write_b32 v14, v56")
    e("ds_write_b32 v14, v58 offset:1024")
    e("v_lshlrev_b32 v15, 8, v3")
    e("s_lshl_b32 s50, s25, 6"); e("s_lshl_b32 s51, s24, 2"); e("s_add_u32 s50, s50, s51")
    e("v_add_u32 v15, s50, v15")
    for b in range(4): e(f"ds_write_b32 v15, v{62+b} offset:{2048+16*b}")
    e("s_lshl_b32 s50, s3, 2"); e("v_mov_b32 v61, s50")
    e("ds_write_b32 v61, v60 offset:3072")
    e("s_waitcnt lgkmcnt(0)")
    e("s_barrier")
    e("v_lshlrev_b32 v14, 4, v9")
    e("ds_read_b128 v[16:19], v14")
    e("ds_read_b128 v[20:23], v14 offset:1024")
    e("v_lshlrev_b32 v15, 8, v3"); e("s_lshl_b32 s50, s25, 6"); e("v_add_u32 v15, s50, v15")
    for b in range(4): e(f"ds_read_b128 v[{24+4*b}:{27+4*b}], v15 offset:{2048+16*b}")
    e("v_mov_b32 v61, 3072")
    for b in range(4): e(f"ds_read_b128 v[{64+4*b}:{67+4*b}], v61 offset:{16*b}")
    e("s_waitcnt lgkmcnt(0)")
    def sum4(d, s0):
        e(f"v_add_f32 v{s0}, v{s0}, v{s0+1}"); e(f"v_add_f32 v{s0+2}, v{s0+2}, v{s0+3}"); e(f"v_add_f32 v{d}, v{s0}, v{s0+2}")
    sum4(16, 16); sum4(20, 20)
    for b in range(4): sum4(24 + 4 * b, 24 + 4 * b)
    for b in range(4): sum4(64 + 4 * b, 64 + 4 * b)
    e("v_add_f32 v64, v64, v68"); e("v_add_f32 v72, v72, v76"); e("v_add_f32 v64, v64, v72")
    e("s_mov_b32 s48, 0x3c800000")
    e("v_mul_f32 v64, s48, v64")
    e("v_sub_f32 v16, v16, v64")
    e("s_mov_b32 s49, 0x3e38aa3b")
    for b in range(4):
        e(f"v_add_f32 v17, v16, v{24+4*b}")
        e(f"v_fma_f32 v{48+b}, -v17, s48, v{48+b}")
        e(f"v_mul_f32 v{48+b}, s49, v{48+b}")
        e(f"v_fma_f32 v{52+b}, -v20, s48, v{52+b}")
    e("v_cvt_pk_bf16_f32 v56, v48, v49"); e("v_cvt_pk_bf16_f32 v57, v50, v51")
    e("v_cvt_pk_bf16_f32 v58, v52, v53"); e("v_cvt_pk_bf16_f32 v59, v54, v55")
    e("s_lshl_b32 s50, s24, 11")
    e("s_lshr_b32 s51, s25, 1"); e("s_lshl_b32 s51, s51, 10"); e("s_add_u32 s50, s50, s51")
    e("s_and_b32 s51, s25, 1"); e("s_lshl_b32 s51, s51, 3"); e("s_add_u32 s50, s50, s51")
    e("v_lshlrev_b32 v13, 4, v2")
    e("buffer_store_dwordx2 v[56:57], v13, s[44:47], s50 offen")
    e("s_add_u32 s50, s50, 8192")
    e("buffer_store_dwordx2 v[58:59], v13, s[44:47], s50 offen")
    e("K1_END:")
    e("s_endpgm")

def tree(g, sreg, vals, label):
    if len(vals) == 1:
        g.e(f"s_branch {label(vals[0])}"); return
    mid = len(vals) // 2
    l = g.lab("TR")
    g.e(f"s_cmp_ge_u32 s{sreg}, {vals[mid]}")
    g.e(f"s_cbranch_scc1 {l}")
    tree(g, sreg, vals[:mid], label)
    g.e(f"{l}:")
    tree(g, sreg, vals[mid:], label)

DPP8 = ("quad_perm:[1,0,3,2]", "quad_perm:[2,3,0,1]", "row_half_mirror")
def rstat(g, H, r, t1, t2):
    e = g.e
    e(f"v_dot2_f32_bf16 v{r}, v{H}, v{H}, 0")
    e(f"v_dot2_f32_bf16 v{t1}, v{H}, s{sONES}, 0")
    for i in range(1, 4):
        e(f"v_dot2_f32_bf16 v{r}, v{H+i}, v{H+i}, v{r}")
        e(f"v_dot2_f32_bf16 v{t1}, v{H+i}, s{sONES}, v{t1}")
    for mod in DPP8:
        e(f"v_add_f32_dpp v{r}, v{r}, v{r} {mod} row_mask:0xf bank_mask:0xf")
        e(f"v_add_f32_dpp v{t1}, v{t1}, v{t1} {mod} row_mask:0xf bank_mask:0xf")
    e(f"v_mul_f32 v{t1}, 0x3c800000, v{t1}")
    e(f"v_mul_f32 v{t2}, v{t1}, v{t1}")
    e(f"v_mul_f32 v{r}, 0x3c800000, v{r}")
    e(f"v_sub_f32 v{r}, v{r}, v{t2}")
    e(f"v_max_f32 v{r}, 0, v{r}")
    e(f"v_add_f32 v{r}, 0x3727c5ac, v{r}")
    e(f"v_rsq_f32 v{r}, v{r}")

import final7
final7.P = sys.modules[__name__]

def gen_p(g):
    e = g.e
    SC = " sc1"
    dbg = O.dbgstat
    kernel_header(g, "graph_kernel")
    e(f"s_cmp_ge_u32 s2, {NB}")
    e("s_cbranch_scc1 P_END")
    e("s_load_dwordx8 s[4:11], s[0:1], 0")
    e("s_load_dwordx2 s[12:13], s[0:1], 88")
    e("s_load_dwordx2 s[14:15], s[0:1], 72")
    if dbg: e("s_memrealtime s[90:91]")
    e(f"v_and_b32 v{vLANE}, 63, v0")
    e("v_lshrrev_b32 v40, 6, v0")
    e("v_lshlrev_b32 v45, 4, v0")
    e("v_readfirstlane_b32 s3, v40")
    e(f"s_movk_i32 s{s128}, 128")
    e(f"s_mov_b32 s{sONES}, 0x3f803f80")
    e("s_mul_i32 s62, s2, 32000")
    if WS_REC: e(f"s_add_u32 s62, s62, {hex(WS_REC)}")
    e("s_add_u32 s63, s62, 16000")
    e("v_lshrrev_b32 v112, 3, v0")
    e("v_and_b32 v113, 7, v0")
    e("v_lshlrev_b32 v54, 1, v112")
    e("s_waitcnt lgkmcnt(0)")
    if dbg: e("s_memrealtime s[92:93]")
    srd(g, sWS, 12, 13, hex(WS_BYTES))
    RA, RB, RC, RD = 64, 68, 72, 76
    OLD = 80
    e(f"buffer_load_dwordx4 v[{RA}:{RA+3}], v45, s[{sWS}:{sWS+3}], s62 offen")
    e(f"buffer_load_dwordx4 v[{RB}:{RB+3}], v45, s[{sWS}:{sWS+3}], s63 offen")
    srd(g, sX, 4, 5, 3200000)
    srd(g, sDIS, 10, 11, 50000)
    e("s_mul_i32 s63, s2, 12800")
    e(f"buffer_load_dwordx4 v[32:35], v45, s[{sX}:{sX+3}], s63 offen")
    e("s_mul_i32 s64, s2, 200")
    e(f"buffer_load_ushort v55, v54, s[{sDIS}:{sDIS+3}], s64 offen")
    e("s_lshl_b32 s64, s2, 8"); e(f"s_add_u32 s64, s64, {hex(WS_RANK)}")
    e(f"buffer_load_ushort v121, v54, s[{sWS}:{sWS+3}], s64 offen")
    e(f"s_mov_b32 s65, {hex(WS_WF)}")
    e(f"buffer_load_dwordx4 v[60:63], v45, s[{sWS}:{sWS+3}], s65 offen")
    e(f"s_add_u32 s65, s65, 0x4000")
    e(f"v_min_u32 v41, {WFX - 16}, v45")
    e(f"buffer_load_dwordx4 v[36:39], v41, s[{sWS}:{sWS+3}], s65 offen")
    srd(g, sOUT, 14, 15, 3200000)
    WS_ = list(O.wsch)
    def warm(n):
        for i in range(n):
            e(f"buffer_load_dwordx4 v[12:15], v45, s[{sWS}:{sWS+3}], s54 offen")
            e("s_add_u32 s54, s54, 16384")
    e("s_lshr_b32 s54, s2, 3"); e("s_mul_i32 s54, s54, 103424"); e(f"s_add_u32 s54, s54, {hex(WS_G)}")
    warm(WS_[0])
    NW = WS_[0]
    for r in range(4): e(f"v_mov_b32 v{48+r}, -1")
    for r in range(4): e(f"v_mov_b32 v{116+r}, 0")
    e("ds_write_b128 v45, v[48:51]")
    nextra = (L_CNT - 16384) // 16
    e(f"v_cmp_gt_u32 vcc, {nextra}, v0")
    e("s_and_saveexec_b64 s[64:65], vcc")
    e("ds_write_b128 v45, v[48:51] offset:16384")
    e("s_mov_b64 exec, s[64:65]")
    nz = (L_WF - L_CNT) // 16
    e(f"s_movk_i32 s62, {nz}")
    e("v_cmp_gt_u32 vcc, s62, v0")
    e("s_and_saveexec_b64 s[64:65], vcc")
    e(f"ds_write_b128 v45, v[116:119] offset:{L_CNT}")
    e("s_mov_b64 exec, s[64:65]")
    e("s_movk_i32 s62, 800")
    e("v_cmp_gt_u32 vcc, s62, v0")
    e(f"s_mov_b64 s[{sM800}:{sM800+1}], vcc")
    e(f"v_and_b32 v96, 7, v{vLANE}")
    e(f"v_lshlrev_b32 v{vL16}, 4, v96")
    e("v_lshrrev_b32 v97, 1, v96")
    e("v_and_b32 v98, 1, v96")
    e("v_lshlrev_b32 v98, 4, v98")
    e("v_mov_b32 v99, 0x3f80")
    e("v_lshlrev_b32 v99, v98, v99")
    e(f"v_lshrrev_b32 v100, 4, v{vLANE}")
    e(f"v_bfe_u32 v101, v{vLANE}, 3, 1")
    e("v_add_u32 v102, 2, v101")
    e("v_cmp_eq_u32 s[62:63], v100, v101")
    e("v_cmp_eq_u32 s[64:65], v100, v102")
    for r in range(4):
        e(f"v_cmp_eq_u32 vcc, {r}, v97")
        e(f"s_and_b64 s[68:69], vcc, s[62:63]")
        e(f"v_cndmask_b32 v{vA1+r}, 0, v99, s[68:69]")
        e(f"s_and_b64 s[68:69], vcc, s[64:65]")
        e(f"v_cndmask_b32 v{vA2+r}, 0, v99, s[68:69]")
    e("v_lshrrev_b32 v103, 1, v100")
    e("v_lshl_add_u32 v126, v103, 1, v101")
    e("v_and_b32 v103, 1, v100")
    e("v_lshl_add_u32 v127, v103, 2, v126")
    e(f"v_mov_b32 v{vT1}, {L_FLAG + 16}")
    e("v_lshlrev_b32 v47, 2, v113")
    e("s_movk_i32 s62, 1000")
    e("v_cmp_gt_u32 s[66:67], s62, v0")
    e("v_cmp_eq_u32 s[68:69], 0, v113")
    e("v_mov_b32 v114, 2")
    e("v_mov_b32 v116, 0x3fc")
    if dbg: e("s_memrealtime s[94:95]")
    e("s_waitcnt lgkmcnt(0)")
    if dbg: e("s_memrealtime s[96:97]")
    e("s_barrier")
    if dbg: e("s_memrealtime s[78:79]")
    e(f"s_waitcnt vmcnt({5 + NW})")
    if dbg: e("s_memrealtime s[80:81]")
    warm(WS_[1])
    remA, remA0, remB, remB0, remC, remD = 48, 49, 50, 51, 52, 53
    for (Rr, cn, rem, rem0, remE) in ((RA, 56, remA, remA0, remC), (RB, 57, remB, remB0, remD)):
        e(f"v_mov_b32_dpp v{cn}, v{Rr} quad_perm:[0,0,0,0] row_mask:0xf bank_mask:0xf")
        e(f"v_mov_b32_dpp v{cn}, v{cn} row_shr:4 row_mask:0xf bank_mask:0xa")
        e(f"v_cndmask_b32 v{cn}, 0, v{cn}, s[66:67]")
        e(f"v_min_u32 v58, 31, v{cn}")
        e(f"v_sub_u32 v{rem}, v58, v47")
        e(f"v_add_u32 v{rem}, 1, v{rem}")
        e(f"v_cndmask_b32 v{rem0}, v{rem}, 0, s[68:69]")
        e(f"v_min_u32 v58, 63, v{cn}")
        e(f"v_sub_u32 v{remE}, v58, v47")
        e(f"v_subrev_u32 v{remE}, 31, v{remE}")
    e("v_max_u32 v58, v56, v57")
    e("v_cmp_lt_u32 vcc, 31, v58")
    e(f"s_mov_b32 s{sI1}, 0")
    e("s_cbranch_vccz P_NOEXT")
    e(f"s_mov_b32 s{sI1}, 1")
    e("s_mul_i32 s62, s2, 32000"); e(f"s_add_u32 s62, s62, {hex(WS_EXT)}"); e("s_add_u32 s63, s62, 16000")
    e(f"buffer_load_dwordx4 v[{RC}:{RC+3}], v45, s[{sWS}:{sWS+3}], s62 offen")
    e(f"buffer_load_dwordx4 v[{RD}:{RD+3}], v45, s[{sWS}:{sWS+3}], s63 offen")
    e("v_cmp_lt_u32 vcc, 63, v58")
    e("s_and_saveexec_b64 s[64:65], vcc")
    e("v_mov_b32 v59, 1")
    e(f"v_mov_b32 v58, {L_FLAG}")
    e("ds_write_b32 v58, v59")
    e("s_mov_b64 exec, s[64:65]")
    e("s_waitcnt vmcnt(0)")
    e("P_NOEXT:")
    def forrec(Rr, rem, rem0, fn, pre=None):
        order = (1, 2, 3, 0) if rem0 is not None else (0, 1, 2, 3)
        for u in order:
            if u == 0 and rem0 is not None:
                e("s_mov_b64 exec, -1")
                e(f"v_cmpx_lt_i32 vcc, 0, v{rem0}")
            else:
                e(f"v_cmpx_lt_i32 vcc, {u}, v{rem}")
            fn(Rr + u, u)
        e("s_mov_b64 exec, -1")
    sets = ((RA, remA, remA0, 0), (RB, remB, remB0, 4), (RC, remC, None, 8), (RD, remD, None, 12))
    def atom(k):
        Rr, rem, rem0, ob = sets[k]
        def fn(r, u):
            e(f"v_and_b32_sdwa v20, v{r}, v116 dst_sel:DWORD dst_unused:UNUSED_PAD src0_sel:WORD_1 src1_sel:DWORD")
            e(f"v_lshrrev_b32 v21, 26, v{r}")
            e(f"v_lshlrev_b32 v21, v21, v114")
            e(f"ds_add_rtn_u32 v{OLD+ob+u}, v20, v21 offset:{L_CNT}")
        forrec(Rr, rem, rem0, fn)
    atom(0); atom(1)
    e(f"s_cmp_eq_u32 s{sI1}, 0"); e("s_cbranch_scc1 P_AT_D")
    atom(2); atom(3)
    e("P_AT_D:")
    e(f"s_waitcnt vmcnt({NW + WS_[1]})")
    warm(WS_[2])
    e(f"ds_write_b128 v45, v[60:63] offset:{L_WF}")
    e(f"ds_write_b128 v41, v[36:39] offset:{L_WF + 16384}")
    e("v_lshlrev_b32 v118, 3, v112")
    e("v_lshlrev_b32 v55, 16, v55")
    rstat(g, 32, 36, 37, 38)
    e(f"s_movk_i32 s66, {TOKNODE}")
    e("v_mul_u32_u24 v37, s66, v121")
    e("v_lshl_add_u32 v37, v113, 4, v37")
    e("v_lshlrev_b32 v38, 5, v121")
    e(f"s_movk_i32 s66, {NODEB}")
    e(f"v_mov_b32 v62, {L_STREAM + NODEB - 2}")
    e("v_mad_u32_u24 v62, v121, s66, v62")
    e("v_lshlrev_b32 v63, 2, v121")
    e("v_lshrrev_b32 v59, 3, v121")
    e("v_lshlrev_b32 v59, 2, v59")
    e(f"s_mov_b64 exec, s[{sM800}:{sM800+1}]")
    e(f"ds_write_b128 v37, v[32:35] offset:{L_TOK}")
    e("v_cmp_eq_u32 vcc, 0, v113")
    e("s_and_b64 s[68:69], exec, vcc")
    e("s_mov_b64 exec, s[68:69]")
    e(f"ds_write_b32 v38, v36 offset:{L_R}")
    e(f"ds_write_b32 v63, v112 offset:{L_NODEOF}")
    e(f"ds_write_b32 v63, v55 offset:{L_DISF}")
    e("s_mov_b64 exec, -1")
    e("s_waitcnt lgkmcnt(0)")
    e("s_barrier")
    if dbg: e("s_memrealtime s[82:83]")
    e("s_mov_b64 exec, s[68:69]")
    e("s_cbranch_execz P_RK_D")
    e(f"ds_read_b64 v[56:57], v118 offset:{L_CNT}")
    e("s_mov_b32 s66, 0x10001")
    e(f"s_movk_i32 s67, {2*PMAX}")
    e("s_waitcnt lgkmcnt(0)")
    e("v_sub_u32 v46, v62, v57")
    e("v_lshrrev_b32 v47, 16, v56")
    e("v_sub_u32 v47, v46, v47")
    e("v_and_b32 v47, 0xffff, v47")
    e("v_lshl_or_b32 v46, v46, 16, v47")
    e("v_mov_b32 v47, v62")
    e(f"ds_write_b64 v118, v[46:47] offset:{L_INFO}")
    e("v_dot2_u32_u16 v58, v56, s66, v57")
    e(f"ds_max_u32 v59, v58 offset:{L_GINFO}")
    e("v_cmp_lt_u32 vcc, s67, v58")
    e("s_and_b64 exec, exec, vcc")
    e("v_mov_b32 v63, 1")
    e(f"v_mov_b32 v62, {L_FLAG}")
    e("ds_write_b32 v62, v63")
    e("P_RK_D:")
    e("s_mov_b64 exec, -1")
    e(f"v_mov_b32 v60, {L_FLAG}")
    e("s_waitcnt lgkmcnt(0)")
    e("s_barrier")
    if dbg: e("s_memrealtime s[84:85]")
    warm(WS_[4])
    e("ds_read_b32 v61, v60")
    INF = 96
    e("v_mov_b32 v116, 0x3fe")
    def place_rd(k):
        Rr, rem, rem0, ob = sets[k]
        for u in range(4):
            e(f"v_and_b32_sdwa v115, v{Rr+u}, v116 dst_sel:DWORD dst_unused:UNUSED_PAD src0_sel:WORD_1 src1_sel:DWORD")
            e(f"ds_read_u16 v{INF+ob+u}, v115 offset:{L_INFO}")
    def place(k):
        Rr, rem, rem0, ob = sets[k]
        for u in range(4):
            e(f"v_lshrrev_b32 v115, 26, v{Rr+u}")
            e(f"v_bfe_u32 v{OLD+ob+u}, v{OLD+ob+u}, v115, 16")
            e(f"v_sub_u32 v{OLD+ob+u}, v{INF+ob+u}, v{OLD+ob+u}")
        def fn(r, u):
            e(f"ds_write_b16 v{OLD+ob+u}, v{r}")
        forrec(Rr, rem, rem0, fn)
    place_rd(0); place_rd(1)
    e("s_waitcnt lgkmcnt(8)")
    e(f"v_readfirstlane_b32 s{sSLOW}, v61")
    if O.forceslow:
        e("s_cmp_lt_u32 s2, 3"); e("s_cbranch_scc0 P_NOFS"); e(f"s_mov_b32 s{sSLOW}, 1"); e("P_NOFS:")
    e(f"s_cmp_lg_u32 s{sSLOW}, 0"); e("s_cbranch_scc1 P_PL_D")
    e("s_waitcnt lgkmcnt(4)")
    place(0)
    e("s_waitcnt lgkmcnt(4)")
    place(1)
    e(f"s_cmp_eq_u32 s{sI1}, 0"); e("s_cbranch_scc1 P_PL_D")
    place_rd(2); place_rd(3); e("s_waitcnt lgkmcnt(0)"); place(2); place(3)
    e("P_PL_D:")
    if O.perm:
        pk = 0
        for w, gidx in enumerate(O.perm + [13, 14, 15]): pk |= gidx << (4 * w)
        e(f"s_mov_b32 s62, {hex(pk & 0xffffffff)}"); e(f"s_mov_b32 s63, {hex(pk >> 32)}")
        e("s_lshl_b32 s64, s3, 2"); e("s_lshr_b64 s[62:63], s[62:63], s64"); e("s_and_b32 s3, s62, 15")
    e("s_lshl_b32 s64, s3, 3")
    e("v_add_u32 v72, s64, v126")
    e("v_add_u32 v73, s64, v127")
    e("v_lshlrev_b32 v74, 2, v72")
    e("v_lshlrev_b32 v75, 2, v73")
    e(f"v_lshrrev_b32 v78, 3, v{vLANE}")
    e("v_add_u32 v78, s64, v78")
    e(f"s_movk_i32 s65, {NODEB}")
    e(f"v_mul_u32_u24 v{vIDXA}, s65, v78")
    e("s_movk_i32 s66, 100")
    e("v_cmp_gt_u32 vcc, s66, v73")
    e(f"s_mov_b64 s[{sVALID}:{sVALID+1}], vcc")
    e(f"s_movk_i32 s64, {TOKNODE}")
    e(f"v_mul_u32_u24 v{vTOKA}, s64, v73")
    e(f"v_lshlrev_b32 v{vRA}, 5, v73")
    e(f"v_add_u32 v{vRA}, {L_R}, v{vRA}")
    e(f"v_add_u32 v{vTOKA}, v{vTOKA}, v{vL16}")
    e(f"v_add_u32 v{vTOKA}, {L_TOK}, v{vTOKA}")
    e("s_lshl_b32 s62, s3, 2")
    e("v_mov_b32 v76, s62")
    e("s_waitcnt lgkmcnt(0)")
    e("s_barrier")
    e("s_waitcnt vmcnt(0)")
    if dbg: e("s_memrealtime s[86:87]")
    if O.fbench:
        e("s_memrealtime s[62:63]")
        e("s_lshl_b32 s64, s2, 4"); e("s_add_u32 s64, s64, s3"); e("s_lshl_b32 s64, s64, 5")
        e(f"s_add_u32 s64, s64, 7"); e("s_lshl_b32 s64, s64, 3")
        e(f"s_add_u32 s64, s64, {hex(WS_STAMP)}")
        e("s_waitcnt lgkmcnt(0)")
        e("s_mov_b64 exec, 1")
        e(f"v_mov_b32 v32, s62"); e(f"v_mov_b32 v33, 0"); e(f"v_mov_b32 v34, s64")
        e(f"buffer_store_dwordx2 v[32:33], v34, s[{sWS}:{sWS+3}], 0 offen")
        e("s_mov_b64 exec, -1")
        e(f"s_cmp_ge_u32 s3, {O.fwaves}"); e("s_cbranch_scc1 P_END")
        e("s_branch F_HELP")
    e(f"s_cmp_ge_u32 s3, {NGRP}")
    e("s_cbranch_scc1 F_HELP")
    e(f"s_setprio {O.gprio}")
    e(f"ds_read_b32 v64, v76 offset:{L_GINFO}")
    e(f"ds_read_b32 v77, v75 offset:{L_NODEOF}")
    e(f"ds_read_b32 v{vDIS1}, v74 offset:{L_DISF}")
    e(f"ds_read_b32 v{vDIS2}, v74 offset:{L_DISF+16}")
    e(f"ds_read_b32 v{vDIS3}, v75 offset:{L_DISF}")
    for i in range(RING): e(f"v_mov_b32 v{vOFF+i}, 0x7ffffff0")
    e(f"s_mov_b32 s{sK}, 1")
    e(f"s_mov_b32 s{sT0}, 0")
    e(f"s_mov_b32 s{sGI+2}, 3200000"); e(f"s_mov_b32 s{sGI+3}, {SRD3}")
    e(f"s_mov_b32 s{sGO+2}, 3200000"); e(f"s_mov_b32 s{sGO+3}, {SRD3}")
    e(f"s_add_u32 s{sGO}, s12, {hex(WS_G)}"); e(f"s_addc_u32 s{sGO+1}, s13, 0")
    e(f"s_mov_b32 s{sPOI}, {hex(WS_G + 2 * WS_GS)}")
    for r in range(4): e(f"v_mov_b32 v{vX+r}, -1")
    e("s_mul_i32 s64, s2, 100")
    e("s_waitcnt lgkmcnt(0)")
    e("v_readfirstlane_b32 s65, v64")
    e("s_lshr_b32 s65, s65, 1")
    e("v_add_u32 v77, s64, v77")
    e(f"v_lshl_add_u32 v{vGOFF}, v77, 7, v{vL16}")
    e("s_max_u32 s65, s65, 1")
    e(f"s_min_u32 s65, s65, {PMAX}")
    e(f"s_sub_u32 s{sP0}, {PMAX}, s65")
    e(f"s_mov_b64 exec, s[{sVALID}:{sVALID+1}]")
    e(f"buffer_store_dwordx4 v[{vX}:{vX+3}], v{vGOFF}, s[{sWS}:{sWS+3}], s{sPOI} offen{O.stp}")
    e("s_mov_b64 exec, -1")
    e(f"s_add_u32 s{sPOI}, s{sPOI}, {hex(WS_GS)}")
    def stamp(idx, val, pre=None):
        if pre is None: e("s_memrealtime s[62:63]")
        else: e(f"s_mov_b32 s62, s{pre}")
        e("s_lshl_b32 s64, s2, 4"); e("s_add_u32 s64, s64, s3"); e("s_lshl_b32 s64, s64, 5")
        e(f"s_add_u32 s64, s64, {idx}"); e("s_lshl_b32 s64, s64, 3")
        e(f"s_add_u32 s64, s64, {hex(WS_STAMP)}")
        e("s_waitcnt lgkmcnt(0)")
        e("s_mov_b64 exec, 1")
        e(f"v_mov_b32 v32, s62"); e(f"v_mov_b32 v33, {val}"); e(f"v_mov_b32 v34, s64")
        e(f"buffer_store_dwordx2 v[32:33], v34, s[{sWS}:{sWS+3}], 0 offen")
        e("s_mov_b64 exec, -1")
    if dbg:
        stamp("0", f"s{sP0}")
        stamp("8", f"s{sP0}", pre=90)
        for i, r in enumerate((78, 80, 82, 84, 86, 92, 94, 96)): stamp(str(10 + i), f"s{sP0}", pre=r)
    e("P_HOP:")
    e(f"s_mov_b32 s{sGI}, s{sGO}"); e(f"s_mov_b32 s{sGI+1}, s{sGO+1}")
    e(f"s_add_u32 s{sGO}, s{sGO}, {hex(WS_GS)}"); e(f"s_addc_u32 s{sGO+1}, s{sGO+1}, 0")
    e(f"s_mov_b32 s{sTRY}, 0")
    e(f"s_mov_b32 s{sGTRY}, 0")
    e(f"s_cmp_lg_u32 s{sSLOW}, 0")
    e("s_cbranch_scc1 P_SLOWG")
    for i in range(8): e(f"v_mov_b32 v{vAC1+i}, 0")
    e(f"s_andn2_b32 s{sI16}, s{sP0}, 15")
    e(f"s_and_b32 s{sS0}, s{sP0}, 15")
    e(f"s_add_u32 s{sEXS}, s{sS0}, 15"); e(f"s_and_b32 s{sEXS}, s{sEXS}, 15")
    e(f"s_lshl_b32 s63, s{sI16}, 1")
    e(f"v_add_u32 v{vIP}, s63, v{vIDXA}")
    e(f"s_lshr_b32 s64, s{sS0}, 3"); e("s_lshl_b32 s64, s64, 5")
    e(f"v_add_u32 v{vT0}, s64, v{vIP}")
    e(f"ds_read_b128 v[{vX}:{vX+3}], v{vT0}")
    e(f"ds_read_b128 v[{vY}:{vY+3}], v{vIP} offset:16")
    if O.p7:
        e(f"s_cmp_eq_u32 s{sK}, 7"); e("s_cbranch_scc0 NOP7")
        e(f"s_mov_b32 s62, {sum(int(c) << (2 * i) for i, c in enumerate(O.p7))}")
        e("s_lshl_b32 s63, s3, 1"); e("s_lshr_b32 s62, s62, s63"); e("s_and_b32 s62, s62, 3")
        for pv in range(3):
            e(f"s_cmp_eq_u32 s62, {pv}"); e(f"s_cbranch_scc0 P7_{pv}"); e(f"s_setprio {pv}"); e("s_branch NOP7"); e(f"P7_{pv}:")
        e("s_setprio 3")
        e("NOP7:")
    e("GW1:")
    e(f"ds_read_b32 v{vT0}, v{vT1}")
    e("s_waitcnt lgkmcnt(0)")
    e(f"v_readfirstlane_b32 s62, v{vT0}")
    e(f"s_cmp_ge_u32 s62, s{sT0}")
    e("s_cbranch_scc1 GW2")
    e(f"s_add_u32 s{sGTRY}, s{sGTRY}, 1")
    e(f"s_cmp_gt_u32 s{sGTRY}, {TRYMAX*4}")
    e("s_cbranch_scc1 GW2")
    if O.gsleep: e(f"s_sleep {O.gsleep}")
    e("s_branch GW1")
    e("GW2:")
    tree(g, sS0, list(range(16)), lambda s: f"PA_{s}")
    def idxld(s):
        if s == 0:
            e("s_waitcnt lgkmcnt(0)"); e(f"ds_read_b128 v[{vY}:{vY+3}], v{vIP} offset:16")
        elif s == 8:
            e("s_waitcnt lgkmcnt(0)"); e(f"ds_read_b128 v[{vX}:{vX+3}], v{vIP} offset:32")
    def issue(s):
        r = (vX if s < 8 else vY) + (s % 8) // 2
        t = vOFF + s; d = vRING + 4 * s
        e(f"v_mad_u32_u16 v{t}, v{r}, s{s128}, v{vL16} op_sel:[{s%2},0,0,0]")
        e(f"buffer_load_dwordx4 v[{d}:{d+3}], v{t}, s[{sGI}:{sGI+3}], 0 offen{O.ld}")
    def check(sl):
        s = vRING + 4 * sl
        e(f"v_max3_u32 v{vT0}, v{s}, v{s+1}, v{s+2}")
        e(f"v_max_u32 v{vT0}, v{vT0}, v{s+3}")
        e(f"v_cmp_eq_u32 vcc, -1, v{vT0}")
    def mfmas(sl):
        s = vRING + 4 * sl
        e(f"v_mfma_f32_16x16x32_bf16 v[{vAC1}:{vAC1+3}], v[{vA1}:{vA1+3}], v[{s}:{s+3}], v[{vAC1}:{vAC1+3}]")
        e(f"v_mfma_f32_16x16x32_bf16 v[{vAC2}:{vAC2+3}], v[{vA2}:{vA2+3}], v[{s}:{s+3}], v[{vAC2}:{vAC2+3}]")
    def wrap():
        e(f"s_add_u32 s{sI16}, s{sI16}, 16")
        e(f"v_add_u32 v{vIP}, 32, v{vIP}")
    for s in range(16):
        e(f"PA_{s}:")
        idxld(s)
        issue(s)
        if s < 15:
            e(f"s_cmp_eq_u32 s{sEXS}, {s}"); e(f"s_cbranch_scc1 PB_{s+1}")
        else:
            e(f"s_cmp_eq_u32 s{sI16}, {PMAX-16}"); e("s_cbranch_scc1 PA_END")
            wrap()
            e(f"s_cmp_eq_u32 s{sEXS}, 15"); e("s_cbranch_scc0 PA_0")
    for s in range(16):
        e(f"PB_{s}:")
        e("s_waitcnt vmcnt(15)")
        check(s)
        e(f"s_cbranch_vccnz STB_{s}")
        e(f"RTB_{s}:")
        mfmas(s)
        idxld(s)
        issue(s)
    wrap()
    e(f"s_cmp_lt_u32 s{sI16}, {PMAX}"); e("s_cbranch_scc1 PB_0")
    for s in range(16):
        e(f"PD_{s}:")
        e(f"s_waitcnt vmcnt({15-s})")
        check(s)
        e(f"s_cbranch_vccnz STD_{s}")
        e(f"RTD_{s}:")
        mfmas(s)
    e("s_branch P_FLUSH")
    e("PA_END:")
    tree(g, sS0, list(range(16)), lambda s: f"PD_{s}")
    for s in range(16):
        for t in "BD":
            e(f"ST{t}_{s}:")
            e(f"s_call_b64 s[{sRET}:{sRET+1}], POLL_{s}")
            e(f"s_branch RT{t}_{s}")
    for sl in range(RING):
        s = vRING + 4 * sl
        e(f"POLL_{sl}:")
        e(f"s_add_u32 s{sTRY}, s{sTRY}, 1")
        e(f"s_cmp_gt_u32 s{sTRY}, {TRYMAX}")
        e("s_cbranch_scc1 P_RET")
        if O.sleep: e(f"s_sleep {O.sleep}")
        e("s_mov_b64 exec, vcc")
        e(f"buffer_load_dwordx4 v[{s}:{s+3}], v{vOFF+sl}, s[{sGI}:{sGI+3}], 0 offen{SC}")
        e("s_mov_b64 exec, -1")
        e("s_waitcnt vmcnt(0)")
        check(sl)
        e(f"s_cbranch_vccnz POLL_{sl}")
        if sl < RING - 1: e("s_branch P_REFRESH")
    e("P_REFRESH:")
    for sl in range(RING):
        s = vRING + 4 * sl
        l = g.lab("RF")
        check(sl)
        e(f"s_cbranch_vccz {l}")
        e("s_mov_b64 exec, vcc")
        e(f"buffer_load_dwordx4 v[{s}:{s+3}], v{vOFF+sl}, s[{sGI}:{sGI+3}], 0 offen{SC}")
        e("s_mov_b64 exec, -1")
        e(f"{l}:")
    e("s_waitcnt vmcnt(0)")
    e("P_RET:")
    e(f"s_setpc_b64 s[{sRET}:{sRET+1}] ; @to " + " ".join(f"RT{t}_{p}" for t in "BD" for p in range(16)))
    e("P_FLUSH:")
    if dbg:
        stamp(f"s{sK}", f"s{sTRY}")
    H = vF
    for b in range(4):
        e(f"v_mul_f32 v{vAC1+b}, v{vAC1+b}, v{vDIS1}")
        e(f"v_mul_f32 v{vAC2+b}, v{vAC2+b}, v{vDIS2}")
    e(f"v_cvt_pk_bf16_f32 v{H}, v{vAC1}, v{vAC1+1}")
    e(f"v_cvt_pk_bf16_f32 v{H+1}, v{vAC1+2}, v{vAC1+3}")
    e(f"v_cvt_pk_bf16_f32 v{H+2}, v{vAC2}, v{vAC2+1}")
    e(f"v_cvt_pk_bf16_f32 v{H+3}, v{vAC2+2}, v{vAC2+3}")
    e(f"v_permlane16_swap_b32 v{H}, v{H+2}")
    e(f"v_permlane16_swap_b32 v{H+1}, v{H+3}")
    e(f"s_mov_b64 exec, s[{sVALID}:{sVALID+1}]")
    e(f"s_cmp_eq_u32 s{sK}, 7")
    e("s_cbranch_scc1 P_NOG")
    G = vF + 4
    for r in range(4):
        e(f"v_lshlrev_b32 v{vF+8}, 16, v{H+r}")
        e(f"v_and_b32 v{vF+9}, 0xffff0000, v{H+r}")
        e(f"v_mul_f32 v{vF+8}, v{vF+8}, v{vDIS3}")
        e(f"v_mul_f32 v{vF+9}, v{vF+9}, v{vDIS3}")
        e(f"v_cvt_pk_bf16_f32 v{G+r}, v{vF+8}, v{vF+9}")
        e(f"v_min_u32 v{G+r}, -2, v{G+r}")
    e(f"buffer_store_dwordx4 v[{G}:{G+3}], v{vGOFF}, s[{sGO}:{sGO+3}], 0 offen{O.stg}")
    e("s_mov_b64 exec, 1")
    e(f"v_mov_b32 v{vF+12}, 1")
    e(f"ds_add_u32 v{vT1}, v{vF+12}")
    e(f"s_mov_b64 exec, s[{sVALID}:{sVALID+1}]")
    e(f"s_cmp_gt_u32 s{sK}, 4")
    e("s_cbranch_scc1 P_NOG")
    for r in range(4): e(f"v_mov_b32 v{vX+r}, -1")
    e(f"buffer_store_dwordx4 v[{vX}:{vX+3}], v{vGOFF}, s[{sWS}:{sWS+3}], s{sPOI} offen{O.stp}")
    e(f"s_add_u32 s{sPOI}, s{sPOI}, {hex(WS_GS)}")
    e("P_NOG:")
    e(f"s_mul_i32 s62, s{sK}, {TOKROW}")
    e(f"v_add_u32 v{vF+10}, s62, v{vTOKA}")
    e(f"ds_write_b128 v{vF+10}, v[{H}:{H+3}]")
    e(f"v_add_u32 v{vRA}, 4, v{vRA}")
    rstat(g, H, vF + 12, vF + 13, vF + 14)
    e(f"ds_write_b32 v{vRA}, v{vF+12}")
    e("s_mov_b64 exec, -1")
    e(f"s_add_u32 s{sT0}, s{sT0}, {NGRP}")
    if O.relax:
        e(f"s_cmp_eq_u32 s{sK}, 1"); e("s_cbranch_scc0 RLX"); e(f"s_sub_u32 s{sT0}, s{sT0}, {O.relax}"); e("RLX:")
    e(f"s_add_u32 s{sK}, s{sK}, 1")
    e(f"s_cmp_le_u32 s{sK}, {O.nhops}")
    e("s_cbranch_scc1 P_HOP")
    final7.gen_final(g)
    if dbg:
        stamp("9", f"s{final7.sC+5}")
    e("s_branch P_END")
    e("P_SLOWG:")
    e(f"v_lshrrev_b32 v{vT0}, 3, v{vLANE}")
    e("s_lshl_b32 s62, s3, 5")
    e(f"s_add_u32 s62, s62, {L_NODEOF}")
    e(f"v_lshl_add_u32 v39, v{vT0}, 2, s62")
    e(f"ds_read_b32 v40, v39")
    e("s_lshl_b32 s62, s3, 3")
    e(f"v_add_u32 v{vT0}, s62, v{vT0}")
    e("s_mul_i32 s62, s2, 100")
    e("s_movk_i32 s63, 100")
    e(f"v_cmp_gt_u32 vcc, s63, v{vT0}")
    for i in range(8): e(f"v_mov_b32 v{vAC1+i}, 0")
    e(f"v_lshlrev_b32 v41, 4, v{vLANE}")
    srd(g, 80, 6, 7, 3200000)
    srd(g, 84, 8, 9, 3200000)
    e("s_waitcnt lgkmcnt(0)")
    e("v_add_u32 v40, s62, v40")
    e("v_cndmask_b32 v40, -1, v40, vcc")
    e("s_mov_b32 s66, 0")
    e("SG_CHUNK:")
    e("buffer_load_dwordx4 v[44:47], v41, s[84:87], s66 offen")
    e("buffer_load_dwordx4 v[48:51], v41, s[80:83], s66 offen")
    e("s_waitcnt vmcnt(0)")
    for u in range(4):
        e("s_mov_b32 s67, 0")
        e(f"SG_R{u}:")
        e("v_readlane_b32 s68, v40, s67")
        e("s_mov_b64 s[62:63], 0xff")
        e("s_lshl_b64 s[62:63], s[62:63], s67")
        e(f"v_cmp_eq_u32 s[64:65], s68, v{44+u}")
        e(f"SG_E{u}:")
        e("s_cmp_eq_u64 s[64:65], 0")
        e(f"s_cbranch_scc1 SG_N{u}")
        e("s_ff1_i32_b64 s69, s[64:65]")
        e("s_bitset0_b64 s[64:65], s69")
        e(f"v_readlane_b32 s68, v{48+u}, s69")
        e("s_lshl_b32 s68, s68, 7")
        e(f"v_add_u32 v42, s68, v{vL16}")
        e("v_mov_b32 v43, 0x7ffffff0")
        e("v_cndmask_b32 v42, v43, v42, s[62:63]")
        e(f"SG_P{u}:")
        e(f"buffer_load_dwordx4 v[52:55], v42, s[{sGI}:{sGI+3}], 0 offen{SC}")
        e("s_waitcnt vmcnt(0)")
        e(f"v_max3_u32 v{vT0}, v52, v53, v54")
        e(f"v_max_u32 v{vT0}, v{vT0}, v55")
        e(f"v_cmp_eq_u32 vcc, -1, v{vT0}")
        e(f"s_cbranch_vccz SG_A{u}")
        e(f"s_add_u32 s{sTRY}, s{sTRY}, 1")
        e(f"s_cmp_gt_u32 s{sTRY}, {TRYMAX}")
        e(f"s_cbranch_scc1 SG_A{u}")
        e("s_sleep 8")
        e(f"s_branch SG_P{u}")
        e(f"SG_A{u}:")
        e(f"v_mfma_f32_16x16x32_bf16 v[{vAC1}:{vAC1+3}], v[{vA1}:{vA1+3}], v[52:55], v[{vAC1}:{vAC1+3}]")
        e(f"v_mfma_f32_16x16x32_bf16 v[{vAC2}:{vAC2+3}], v[{vA2}:{vA2+3}], v[52:55], v[{vAC2}:{vAC2+3}]")
        e(f"s_branch SG_E{u}")
        e(f"SG_N{u}:")
        e("s_add_u32 s67, s67, 8")
        e("s_cmp_lt_u32 s67, 64")
        e(f"s_cbranch_scc1 SG_R{u}")
    e("s_add_u32 s66, s66, 1024")
    e("s_cmp_lt_u32 s66, 3200000")
    e("s_cbranch_scc1 SG_CHUNK")
    e("s_branch P_FLUSH")
    e("F_HELP:")
    final7.gen_lc(g)
    e("s_branch F_SETUP")
    e("P_END:")
    e("s_endpgm")

def build(path):
    g = Gen()
    gen_k1(g)
    gen_p(g)
    kernel_desc(g, "bin_kernel", 96, 64)
    kernel_desc(g, "graph_kernel", 128, 100)
    launches = [f"; @launch kernel=bin_kernel grid=({NB+1},1,1) block=(1024,1,1) lds={K1_LDS}",
                f"; @launch kernel=graph_kernel grid=({NB},1,1) block=(1024,1,1) lds={P_LDS}"]
    s = finish(g, launches, "gather_scatter__hybrid_graph_tf_nagphormer__graph.s.ref")
    open(path, "w").write(s)
    return s

if __name__ == "__main__":
    import argparse
    ap = argparse.ArgumentParser()
    ap.add_argument("out")
    for f in ("dbgstat", "forceslow"): ap.add_argument("--" + f, action="store_true")
    ap.add_argument("--sleep", type=int, default=2); ap.add_argument("--gsleep", type=int, default=1)
    ap.add_argument("--nhops", type=int, default=7)
    ap.add_argument("--perm", default=None); ap.add_argument("--p7", default=None)
    ap.add_argument("--stp", default="sc1"); ap.add_argument("--stg", default="sc1"); ap.add_argument("--k1st", default="sc1")
    ap.add_argument("--gprio", type=int, default=3); ap.add_argument("--fsleep", type=int, default=2)
    ap.add_argument("--fbench", type=int, default=0); ap.add_argument("--fwaves", type=int, default=16); ap.add_argument("--fx", default="")
    ap.add_argument("--wsch", default="0,0,0,0,0"); ap.add_argument("--thr", default="30,35")
    ap.add_argument("--fv", type=int, default=1); ap.add_argument("--torder", default=None)
    ap.add_argument("--relax", type=int, default=0)
    a = ap.parse_args()
    O.relax = a.relax
    O.gprio = a.gprio; O.fsleep = a.fsleep; O.fbench = a.fbench; O.fwaves = a.fwaves; O.fx = a.fx; O.fv = a.fv
    O.stp = " " + a.stp.replace("_", " "); O.stg = " " + a.stg.replace("_", " "); O.k1st = (" " + a.k1st.replace("_", " ")) if a.k1st else ""
    O.thr = tuple(int(x) for x in a.thr.split(","))
    O.wsch = tuple(int(x) for x in a.wsch.split(','))
    O.dbgstat = a.dbgstat; O.forceslow = a.forceslow
    O.sleep = a.sleep; O.gsleep = a.gsleep; O.nhops = a.nhops; O.p7 = a.p7
    O.perm = [int(x) for x in a.perm.split(",")] if a.perm else None
    O.torder = [int(x) for x in a.torder.split(",")] if a.torder else None
    build(a.out)
    print("P_LDS", P_LDS)
```

```python
import sys, os
sys.path.insert(0, os.path.dirname(os.path.abspath(__file__)))
from gen import Gen, srd, kernel_header, kernel_desc, finish, NB, WS_G, WS_GS, WS_WF, WS_STAMP, WS_BYTES, SRD3

class Opt:
    dbgstat = False; forceslow = False
    sleep = 2; gsleep = 1; nhops = 7
    perm = None
    stp = " sc1"; stg = " sc1"; ld = " sc1"
    gprio = 1; fsleep = 2; fbench = 0; fwaves = 16; fx = ""
    k1st = ""
    p7 = None
    wsch = (0, 0, 0, 0, 0)
    thr = (30, 35)
    relax = 0
    wl = None; wl128 = True
O = Opt()
import struct
def bf16bits(x):
    u = struct.unpack("<I", struct.pack("<f", x))[0]
    return (u + 0x7FFF + ((u >> 16) & 1)) >> 16
def thr_bits(d):
    return bf16bits((d + 1.0) ** -0.5)

WS_REC = 0x0
WS_EXT = 0x3000000
CELLS = 272
WS_RANK = WS_WF + 0x10000
PMAX = 80
NODEB = PMAX * 2
NGRP = 13
TOKROW = 144
TOKNODE = 8 * TOKROW
L_STREAM = 0
L_CNT = 104 * NODEB + 64
L_INFO = L_CNT + 1024
L_NODEOF = L_INFO + 1024
L_GINFO = L_NODEOF + 512
L_DISF = L_GINFO + 64
L_FLAG = L_DISF + 512
L_WF = L_FLAG + 64
WFX = 2048 + 16
L_LC = L_WF + 16384 + WFX
L_R = L_LC + 3072
L_TOK = L_R + 104 * 32
P_LDS = L_TOK + 100 * TOKNODE
NTILE = 50
RING = 16
TRYMAX = 200000
K1_KEY = 1024 + NB * CELLS
K1_LDS = K1_KEY + 512

sWS, sGI, sGO, sX, sDIS, sOUT = 20, 24, 28, 32, 36, 44
sK, sP0, sT0, sPOI = 52, 53, 56, 59
sM800 = 60
sVALID = 70
sI1, sI2 = 72, 73
sTRY = 73
s128, sSLOW, sRET = 74, 75, 76
sI16, sS0, sEXS, sGTRY = 87, 88, 90, 93
sONES = 99
vTID, vLANE, vL16, vIDXA = 0, 1, 2, 3
vA1, vA2, vAC1, vAC2 = 4, 8, 12, 16
vIP, vT0, vT1 = 20, 21, 22
vX, vY = 24, 28
vRING = 40
vOFF = 104
vDIS1, vDIS2, vDIS3, vTOKA, vGOFF, vRA, vGATE = 120, 121, 122, 123, 124, 125, 126
vF = 40

def redq(e, x, tmp, op="v_add_f32"):
    e(f"v_mov_b32 v{tmp}, v{x}"); e(f"v_permlane16_swap_b32 v{x}, v{tmp}"); e(f"{op} v{x}, v{x}, v{tmp}")
    e(f"v_mov_b32 v{tmp}, v{x}"); e(f"v_permlane32_swap_b32 v{x}, v{tmp}"); e(f"{op} v{x}, v{x}, v{tmp}")
def red16(e, x, tmp, op):
    e(f"v_mov_b32 v{tmp}, v{x}"); e(f"v_permlane16_swap_b32 v{x}, v{tmp}"); e(f"{op} v{x}, v{x}, v{tmp}")

def gen_k1(g):
    e = g.e
    kernel_header(g, "bin_kernel")
    e(f"s_cmp_gt_u32 s2, {NB}")
    e("s_cbranch_scc1 K1_END")
    e("s_load_dwordx8 s[4:11], s[0:1], 0")
    e("s_load_dwordx2 s[12:13], s[0:1], 88")
    if O.dbgstat: e("s_memrealtime s[52:53]")
    e(f"s_cmp_eq_u32 s2, {NB}")
    e("s_cbranch_scc1 K1_W")
    e("v_lshlrev_b32 v1, 4, v0")
    e("v_lshlrev_b32 v2, 2, v0")
    e("v_mov_b32 v3, 0")
    e("s_movk_i32 s14, 0x100")
    e("v_cmp_gt_u32 vcc, s14, v0")
    e("s_and_saveexec_b64 s[40:41], vcc")
    e("ds_write_b32 v2, v3")
    e("s_mov_b64 exec, s[40:41]")
    e("s_movk_i32 s14, 128")
    e("v_cmp_gt_u32 vcc, s14, v0")
    e("s_and_saveexec_b64 s[40:41], vcc")
    e("v_mov_b32 v3, -1")
    e(f"v_add_u32 v5, {K1_KEY}, v2")
    e("ds_write_b32 v5, v3")
    e("s_mov_b64 exec, s[40:41]")
    e("s_movk_i32 s14, 800")
    e("v_cmp_gt_u32 vcc, s14, v0")
    e("s_mov_b64 s[42:43], vcc")
    e("s_mul_i32 s14, s2, 12800")
    e("s_mul_i32 s15, s2, 200")
    e(f"s_movk_i32 s47, {CELLS}")
    e("v_lshrrev_b32 v4, 3, v0")
    e("v_lshlrev_b32 v4, 1, v4")
    e("s_waitcnt lgkmcnt(0)")
    srd(g, 16, 6, 7, 3200000)
    srd(g, 20, 8, 9, 3200000)
    srd(g, 24, 4, 5, 3200000)
    srd(g, 28, 10, 11, 50000)
    srd(g, 32, 12, 13, hex(WS_BYTES))
    e("s_mov_b64 exec, s[42:43]")
    e("s_cbranch_execz K1_NOLD")
    e("buffer_load_dwordx4 v[8:11], v1, s[20:23], s14 offen")
    e("buffer_load_dwordx4 v[12:15], v1, s[16:19], s14 offen")
    e("buffer_load_dwordx4 v[16:19], v1, s[24:27], s14 offen")
    e("buffer_load_ushort v20, v4, s[28:31], s15 offen")
    for r_ in range(4): e(f"v_mov_b32 v{24+r_}, -1")
    e("K1_NOLD:")
    e("s_mov_b64 exec, -1")
    e("s_waitcnt lgkmcnt(0)")
    e("s_barrier")
    e("s_mov_b64 exec, s[42:43]")
    e("s_cbranch_execz K1_SKIP")
    e("s_waitcnt vmcnt(3)")
    e("s_movk_i32 s45, 5243")
    e("s_movk_i32 s46, -100")
    e("v_mov_b32 v21, 1")
    for u in range(4):
        d = 8 + u
        e(f"v_mul_u32_u24 v{28+u}, s45, v{d}")
        e(f"v_lshrrev_b32 v{28+u}, 19, v{28+u}")
        e(f"v_mad_i32_i24 v{d}, v{28+u}, s46, v{d}")
        e(f"v_lshlrev_b32 v22, 2, v{28+u}")
        e(f"ds_add_rtn_u32 v{32+u}, v22, v21")
        e(f"v_mul_u32_u24 v{28+u}, s47, v{28+u}")
    e("s_waitcnt vmcnt(2)")
    for u in range(4):
        e(f"v_lshlrev_b32 v{52+u}, 1, v{12+u}")
        e(f"buffer_load_ushort v{56+u}, v{52+u}, s[28:31], 0 offen")
    e(f"s_add_u32 s44, s14, {hex(WS_G + WS_GS)}")
    e(f"buffer_store_dwordx4 v[24:27], v1, s[32:35], s44 offen{O.k1st}")
    for u in range(4):
        e(f"v_lshl_or_b32 v{8+u}, v{8+u}, 19, v{12+u}")
    e("s_waitcnt vmcnt(5)")
    e("v_lshrrev_b32 v36, 3, v0")
    e("v_and_b32 v37, 7, v0")
    e("v_lshl_or_b32 v38, v20, 7, v36")
    e("v_lshlrev_b32 v39, 2, v36")
    e(f"v_add_u32 v39, {K1_KEY}, v39")
    e("ds_write_b32 v39, v38")
    e("v_lshlrev_b32 v20, 16, v20")
    for r in range(4):
        e(f"v_lshlrev_b32 v22, 16, v{16+r}")
        e(f"v_and_b32 v23, 0xffff0000, v{16+r}")
        e("v_mul_f32 v22, v22, v20")
        e("v_mul_f32 v23, v23, v20")
        e(f"v_cvt_pk_bf16_f32 v{16+r}, v22, v23")
    e(f"s_add_u32 s44, s14, {hex(WS_G)}")
    e(f"buffer_store_dwordx4 v[16:19], v1, s[32:35], s44 offen{O.k1st}")
    e("s_waitcnt lgkmcnt(0)")
    e("s_barrier")
    e("v_lshlrev_b32 v39, 6, v37")
    e(f"v_add_u32 v39, {K1_KEY}, v39")
    for u in range(4):
        e(f"ds_read_b128 v[{64+4*u}:{67+4*u}], v39 offset:{16*u}")
    e("v_mov_b32 v40, 0"); e("v_mov_b32 v41, 0")
    e("s_waitcnt lgkmcnt(0)")
    for u0 in range(0, 16, 4):
        for i in range(4):
            e(f"v_cmp_lt_u32 s[{56+2*i}:{57+2*i}], v{64+u0+i}, v38")
        for i in range(4):
            a = 40 + i % 2
            e(f"v_addc_co_u32 v{a}, s[{56+2*i}:{57+2*i}], 0, v{a}, s[{56+2*i}:{57+2*i}]")
    e("v_add_u32 v40, v40, v41")
    for mod in DPP8:
        e(f"v_add_u32_dpp v40, v40, v40 {mod} row_mask:0xf bank_mask:0xf")
    e("v_lshlrev_b32 v39, 1, v36")
    e("s_lshl_b32 s44, s2, 8")
    e(f"s_add_u32 s44, s44, {hex(WS_RANK)}")
    e("v_cmp_eq_u32 vcc, 0, v37")
    e("s_and_b64 exec, s[42:43], vcc")
    e(f"buffer_store_short v40, v39, s[32:35], s44 offen{O.k1st}")
    e("s_mov_b64 exec, s[42:43]")
    e(f"s_movk_i32 s48, {hex(thr_bits(O.thr[0]))}")
    e(f"s_movk_i32 s49, {hex(thr_bits(O.thr[1]))}")
    e(f"v_mov_b32 v60, {hex((1 << 17) | (1 << 30))}")
    e(f"v_mov_b32 v61, {hex(1 << 18)}")
    e("s_waitcnt vmcnt(3)")
    for u in range(4):
        e(f"v_cmp_gt_u32 vcc, s48, v{56+u}")
        e(f"v_cndmask_b32 v22, v61, v60, vcc")
        e(f"v_cmp_gt_u32 vcc, s49, v{56+u}")
        e(f"v_cndmask_b32 v22, v22, 0, vcc")
        e(f"v_or_b32 v{8+u}, v{8+u}, v22")
    for u in range(4):
        e(f"v_cmp_gt_u32 vcc, 63, v{32+u}")
        e(f"v_lshl_add_u32 v{28+u}, v{32+u}, 2, v{28+u}")
        e("s_and_b64 exec, s[42:43], vcc")
        e(f"ds_write_b32 v{28+u}, v{8+u} offset:{1024+4}")
    e("s_branch K1_B1")
    e("K1_SKIP:")
    e("s_barrier")
    e("K1_B1:")
    e("s_mov_b64 exec, -1")
    e("s_waitcnt lgkmcnt(0)")
    e("s_barrier")
    e("s_movk_i32 s14, 1000")
    e("v_cmp_gt_u32 vcc, s14, v0")
    e("s_and_b64 exec, exec, vcc")
    e("s_cbranch_execz K1_END")
    e("s_mov_b64 s[42:43], exec")
    e("v_lshrrev_b32 v4, 2, v0")
    e("v_and_b32 v5, 3, v0")
    e("v_lshlrev_b32 v6, 2, v4")
    e("ds_read_b32 v7, v6")
    e(f"v_mul_u32_u24 v8, s47, v4")
    e("v_lshl_add_u32 v8, v5, 4, v8")
    e("ds_read_b128 v[12:15], v8 offset:1024")
    e("ds_read_b128 v[16:19], v8 offset:1088")
    e("s_movk_i32 s45, 32000")
    e("v_mul_u32_u24 v9, s45, v4")
    e("v_lshl_add_u32 v9, v5, 4, v9")
    e("s_lshl_b32 s44, s2, 7")
    if WS_REC: e(f"s_add_u32 s44, s44, {hex(WS_REC)}")
    e("v_lshlrev_b32 v10, 2, v5")
    e("v_cmp_eq_u32 vcc, 0, v5")
    e("s_waitcnt lgkmcnt(0)")
    e("v_cndmask_b32 v12, v12, v7, vcc")
    e("v_sub_u32 v11, v7, v10")
    e("v_cmp_le_i32 vcc, 0, v11")
    e("s_and_b64 exec, s[42:43], vcc")
    e(f"buffer_store_dwordx4 v[12:15], v9, s[32:35], s44 offen{O.k1st}")
    e("v_cmp_le_i32 vcc, 16, v11")
    e("s_and_b64 exec, s[42:43], vcc")
    e(f"buffer_store_dwordx4 v[16:19], v9, s[32:35], s44 offen offset:64{O.k1st}")
    e("v_cmp_le_i32 vcc, 32, v11")
    e("s_and_b64 exec, s[42:43], vcc")
    e("s_cbranch_execz K1_NOEXT")
    e("ds_read_b128 v[12:15], v8 offset:1152")
    e("ds_read_b128 v[16:19], v8 offset:1216")
    e("s_lshl_b32 s44, s2, 7")
    e(f"s_add_u32 s44, s44, {hex(WS_EXT)}")
    e("s_waitcnt lgkmcnt(0)")
    e(f"buffer_store_dwordx4 v[12:15], v9, s[32:35], s44 offen")
    e(f"buffer_store_dwordx4 v[16:19], v9, s[32:35], s44 offen offset:64")
    e("K1_NOEXT:")
    if O.dbgstat:
        e("s_mov_b64 exec, s[42:43]")
        e("s_waitcnt vmcnt(0)")
        e("s_memrealtime s[54:55]")
        e("s_lshl_b32 s56, s2, 4"); e(f"s_add_u32 s56, s56, {hex(WS_STAMP + 0x100000)}")
        e("v_cmp_eq_u32 vcc, 0, v0"); e("s_and_b64 exec, exec, vcc")
        e("s_waitcnt lgkmcnt(0)")
        e("v_mov_b32 v40, s52"); e("v_mov_b32 v41, s54"); e("v_mov_b32 v42, s56")
        e("buffer_store_dwordx2 v[40:41], v42, s[32:35], 0 offen")
    e("s_endpgm")
    e("K1_W:")
    e("s_load_dwordx8 s[16:23], s[0:1], 32")
    e("s_load_dwordx2 s[56:57], s[0:1], 64")
    e("v_lshrrev_b32 v1, 6, v0")
    e("v_and_b32 v2, 63, v0")
    e("v_readfirstlane_b32 s3, v1")
    e("v_lshrrev_b32 v3, 4, v2")
    e("v_and_b32 v4, 15, v2")
    e("s_lshr_b32 s24, s3, 2")
    e("s_and_b32 s25, s3, 3")
    e("v_lshrrev_b32 v5, 2, v4")
    e("v_and_b32 v6, 3, v4")
    e("v_lshl_add_u32 v7, v5, 4, v6")
    e("s_lshl_b32 s26, s25, 2")
    e("s_lshl_b32 s27, s24, 2")
    e("v_add_u32 v8, s26, v7")
    e("v_add_u32 v9, s27, v7")
    e("v_lshlrev_b32 v10, 7, v8")
    e("v_lshl_add_u32 v10, v3, 4, v10")
    e("v_lshlrev_b32 v11, 7, v9")
    e("v_lshl_add_u32 v11, v3, 4, v11")
    e("s_waitcnt lgkmcnt(0)")
    srd(g, 28, 16, 17, 8192)
    srd(g, 32, 18, 19, 8192)
    srd(g, 36, 20, 21, 8192)
    srd(g, 40, 22, 23, 8192)
    srd(g, 44, 12, 13, 16384 + WFX, add=hex(WS_WF))
    srd(g, 52, 56, 57, 128)
    e("buffer_load_dwordx4 v[16:19], v10, s[28:31], 0 offen")
    e("buffer_load_dwordx4 v[20:23], v10, s[28:31], 0 offen offset:64")
    e("buffer_load_dwordx4 v[24:27], v11, s[32:35], 0 offen")
    e("buffer_load_dwordx4 v[28:31], v11, s[32:35], 0 offen offset:64")
    e("buffer_load_dwordx4 v[32:35], v10, s[36:39], 0 offen")
    e("buffer_load_dwordx4 v[36:39], v10, s[36:39], 0 offen offset:64")
    e("v_lshlrev_b32 v12, 10, v3")
    e("v_lshl_add_u32 v12, v9, 1, v12")
    e("s_movk_i32 s48, 0x1000")
    for sp in range(2):
        for j in range(8):
            off = (32 * sp + j) * 128
            so = "0"
            if off >= 4096:
                so = "s48"; off -= 4096
            e(f"buffer_load_ushort v{60 + sp*8 + j}, v12, s[40:43], {so} offen offset:{off}")
    e("v_lshlrev_b32 v76, 5, v3")
    e("buffer_load_dwordx4 v[80:83], v76, s[52:55], 0 offen")
    e("buffer_load_dwordx4 v[84:87], v76, s[52:55], 0 offen offset:16")
    for i in range(8): e(f"v_mov_b32 v{48+i}, 0")
    e("s_waitcnt vmcnt(0)")
    for r in range(8):
        e(f"v_lshl_or_b32 v{40+r}, v{61+2*r}, 16, v{60+2*r}")
    e("v_mfma_f32_16x16x32_bf16 v[48:51], v[16:19], v[24:27], v[48:51]")
    e("v_mfma_f32_16x16x32_bf16 v[52:55], v[32:35], v[40:43], v[52:55]")
    e("v_mfma_f32_16x16x32_bf16 v[48:51], v[20:23], v[28:31], v[48:51]")
    e("v_mfma_f32_16x16x32_bf16 v[52:55], v[36:39], v[44:47], v[52:55]")
    e("s_cmp_lg_u32 s3, 0"); e("s_cbranch_scc1 K1_W2")
    e("v_cmp_eq_u32 s[62:63], 0, v6")
    e("v_cmp_eq_u32 s[60:61], 1, v6")
    e("v_mov_b32 v77, 0x3f803f80")
    for r in range(8):
        e(f"v_cndmask_b32 v{88+r}, 0, v77, s[62:63]")
        e(f"v_cndmask_b32 v{88+r}, v{88+r}, v{80+r}, s[60:61]")
    for r in range(4): e(f"v_mov_b32 v{80+r}, 0x3f803f80")
    e("v_mfma_f32_16x16x32_bf16 v[84:87], v[88:91], v[80:83], 0")
    e("v_mfma_f32_16x16x32_bf16 v[84:87], v[92:95], v[80:83], v[84:87]")
    e("v_lshlrev_b32 v13, 4, v2")
    e("s_movk_i32 s50, 0x4000")
    e("buffer_store_dwordx4 v[88:91], v13, s[44:47], s50 offen")
    e("buffer_store_dwordx4 v[92:95], v13, s[44:47], s50 offen offset:1024")
    e("v_mov_b32 v84, v85"); e("v_mov_b32 v86, v85"); e("v_mov_b32 v87, v85")
    e("v_mov_b32 v13, 0"); e("s_movk_i32 s50, 0x4800")
    e("s_mov_b64 exec, 1")
    e("buffer_store_dwordx4 v[84:87], v13, s[44:47], s50 offen")
    e("s_mov_b64 exec, -1")
    e("K1_W2:")
    def ror_sum(x):
        for sh in (8, 4, 2, 1):
            e(f"v_add_f32_dpp v{x}, v{x}, v{x} row_ror:{sh} row_mask:0xf bank_mask:0xf")
    e("v_add_f32 v56, v48, v49"); e("v_add_f32 v57, v50, v51"); e("v_add_f32 v56, v56, v57")
    e("v_add_f32 v58, v52, v53"); e("v_add_f32 v59, v54, v55"); e("v_add_f32 v58, v58, v59")
    redq(e, 56, 57); redq(e, 58, 59)
    e("v_mov_b32 v60, v56"); ror_sum(60)
    for b in range(4):
        e(f"v_mov_b32 v{62+b}, v{48+b}"); ror_sum(62 + b)
    e("v_lshlrev_b32 v14, 4, v9")
    e("s_lshl_b32 s50, s25, 2")
    e("v_add_u32 v14, s50, v14")
    e("ds_write_b32 v14, v56")
    e("ds_write_b32 v14, v58 offset:1024")
    e("v_lshlrev_b32 v15, 8, v3")
    e("s_lshl_b32 s50, s25, 6"); e("s_lshl_b32 s51, s24, 2"); e("s_add_u32 s50, s50, s51")
    e("v_add_u32 v15, s50, v15")
    for b in range(4): e(f"ds_write_b32 v15, v{62+b} offset:{2048+16*b}")
    e("s_lshl_b32 s50, s3, 2"); e("v_mov_b32 v61, s50")
    e("ds_write_b32 v61, v60 offset:3072")
    e("s_waitcnt lgkmcnt(0)")
    e("s_barrier")
    e("v_lshlrev_b32 v14, 4, v9")
    e("ds_read_b128 v[16:19], v14")
    e("ds_read_b128 v[20:23], v14 offset:1024")
    e("v_lshlrev_b32 v15, 8, v3"); e("s_lshl_b32 s50, s25, 6"); e("v_add_u32 v15, s50, v15")
    for b in range(4): e(f"ds_read_b128 v[{24+4*b}:{27+4*b}], v15 offset:{2048+16*b}")
    e("v_mov_b32 v61, 3072")
    for b in range(4): e(f"ds_read_b128 v[{64+4*b}:{67+4*b}], v61 offset:{16*b}")
    e("s_waitcnt lgkmcnt(0)")
    def sum4(d, s0):
        e(f"v_add_f32 v{s0}, v{s0}, v{s0+1}"); e(f"v_add_f32 v{s0+2}, v{s0+2}, v{s0+3}"); e(f"v_add_f32 v{d}, v{s0}, v{s0+2}")
    sum4(16, 16); sum4(20, 20)
    for b in range(4): sum4(24 + 4 * b, 24 + 4 * b)
    for b in range(4): sum4(64 + 4 * b, 64 + 4 * b)
    e("v_add_f32 v64, v64, v68"); e("v_add_f32 v72, v72, v76"); e("v_add_f32 v64, v64, v72")
    e("s_mov_b32 s48, 0x3c800000")
    e("v_mul_f32 v64, s48, v64")
    e("v_sub_f32 v16, v16, v64")
    e("s_mov_b32 s49, 0x3e38aa3b")
    for b in range(4):
        e(f"v_add_f32 v17, v16, v{24+4*b}")
        e(f"v_fma_f32 v{48+b}, -v17, s48, v{48+b}")
        e(f"v_mul_f32 v{48+b}, s49, v{48+b}")
        e(f"v_fma_f32 v{52+b}, -v20, s48, v{52+b}")
    e("v_cvt_pk_bf16_f32 v56, v48, v49"); e("v_cvt_pk_bf16_f32 v57, v50, v51")
    e("v_cvt_pk_bf16_f32 v58, v52, v53"); e("v_cvt_pk_bf16_f32 v59, v54, v55")
    e("s_lshl_b32 s50, s24, 11")
    e("s_lshr_b32 s51, s25, 1"); e("s_lshl_b32 s51, s51, 10"); e("s_add_u32 s50, s50, s51")
    e("s_and_b32 s51, s25, 1"); e("s_lshl_b32 s51, s51, 3"); e("s_add_u32 s50, s50, s51")
    e("v_lshlrev_b32 v13, 4, v2")
    e("buffer_store_dwordx2 v[56:57], v13, s[44:47], s50 offen")
    e("s_add_u32 s50, s50, 8192")
    e("buffer_store_dwordx2 v[58:59], v13, s[44:47], s50 offen")
    e("K1_END:")
    e("s_endpgm")

def tree(g, sreg, vals, label):
    if len(vals) == 1:
        g.e(f"s_branch {label(vals[0])}"); return
    mid = len(vals) // 2
    l = g.lab("TR")
    g.e(f"s_cmp_ge_u32 s{sreg}, {vals[mid]}")
    g.e(f"s_cbranch_scc1 {l}")
    tree(g, sreg, vals[:mid], label)
    g.e(f"{l}:")
    tree(g, sreg, vals[mid:], label)

DPP8 = ("quad_perm:[1,0,3,2]", "quad_perm:[2,3,0,1]", "row_half_mirror")
def rstat(g, H, r, t1, t2):
    e = g.e
    e(f"v_dot2_f32_bf16 v{r}, v{H}, v{H}, 0")
    e(f"v_dot2_f32_bf16 v{t1}, v{H}, s{sONES}, 0")
    for i in range(1, 4):
        e(f"v_dot2_f32_bf16 v{r}, v{H+i}, v{H+i}, v{r}")
        e(f"v_dot2_f32_bf16 v{t1}, v{H+i}, s{sONES}, v{t1}")
    for mod in DPP8:
        e(f"v_add_f32_dpp v{r}, v{r}, v{r} {mod} row_mask:0xf bank_mask:0xf")
        e(f"v_add_f32_dpp v{t1}, v{t1}, v{t1} {mod} row_mask:0xf bank_mask:0xf")
    e(f"v_mul_f32 v{t1}, 0x3c800000, v{t1}")
    e(f"v_mul_f32 v{t2}, v{t1}, v{t1}")
    e(f"v_mul_f32 v{r}, 0x3c800000, v{r}")
    e(f"v_sub_f32 v{r}, v{r}, v{t2}")
    e(f"v_max_f32 v{r}, 0, v{r}")
    e(f"v_add_f32 v{r}, 0x3727c5ac, v{r}")
    e(f"v_rsq_f32 v{r}, v{r}")

import final7
final7.P = sys.modules[__name__]

def gen_p(g):
    e = g.e
    SC = " sc1"
    dbg = O.dbgstat
    kernel_header(g, "graph_kernel")
    e(f"s_cmp_ge_u32 s2, {NB}")
    e("s_cbranch_scc1 P_END")
    e("s_load_dwordx8 s[4:11], s[0:1], 0")
    e("s_load_dwordx2 s[12:13], s[0:1], 88")
    e("s_load_dwordx2 s[14:15], s[0:1], 72")
    if dbg: e("s_memrealtime s[90:91]")
    e(f"v_and_b32 v{vLANE}, 63, v0")
    e("v_lshrrev_b32 v40, 6, v0")
    e("v_lshlrev_b32 v45, 4, v0")
    e("v_readfirstlane_b32 s3, v40")
    e(f"s_movk_i32 s{s128}, 128")
    e(f"s_mov_b32 s{sONES}, 0x3f803f80")
    e("s_mul_i32 s62, s2, 32000")
    if WS_REC: e(f"s_add_u32 s62, s62, {hex(WS_REC)}")
    e("s_add_u32 s63, s62, 16000")
    e("v_lshrrev_b32 v112, 3, v0")
    e("v_and_b32 v113, 7, v0")
    e("v_lshlrev_b32 v54, 1, v112")
    e("s_waitcnt lgkmcnt(0)")
    if dbg: e("s_memrealtime s[92:93]")
    srd(g, sWS, 12, 13, hex(WS_BYTES))
    RA, RB, RC, RD = 64, 68, 72, 76
    OLD = 80
    e(f"buffer_load_dwordx4 v[{RA}:{RA+3}], v45, s[{sWS}:{sWS+3}], s62 offen")
    e(f"buffer_load_dwordx4 v[{RB}:{RB+3}], v45, s[{sWS}:{sWS+3}], s63 offen")
    srd(g, sX, 4, 5, 3200000)
    srd(g, sDIS, 10, 11, 50000)
    e("s_mul_i32 s63, s2, 12800")
    e(f"buffer_load_dwordx4 v[32:35], v45, s[{sX}:{sX+3}], s63 offen")
    e("s_mul_i32 s64, s2, 200")
    e(f"buffer_load_ushort v55, v54, s[{sDIS}:{sDIS+3}], s64 offen")
    e("s_lshl_b32 s64, s2, 8"); e(f"s_add_u32 s64, s64, {hex(WS_RANK)}")
    e(f"buffer_load_ushort v121, v54, s[{sWS}:{sWS+3}], s64 offen")
    e(f"s_mov_b32 s65, {hex(WS_WF)}")
    e(f"buffer_load_dwordx4 v[60:63], v45, s[{sWS}:{sWS+3}], s65 offen")
    e(f"s_add_u32 s65, s65, 0x4000")
    e(f"v_min_u32 v41, {WFX - 16}, v45")
    e(f"buffer_load_dwordx4 v[36:39], v41, s[{sWS}:{sWS+3}], s65 offen")
    srd(g, sOUT, 14, 15, 3200000)
    WS_ = list(O.wsch)
    WL = O.wl
    if WL:
        WS_ = [0] * 5
        for p_ in WL: WS_[p_] += 1
        e("s_lshr_b32 s54, s2, 3"); e("s_mul_i32 s54, s54, 103424")
        e(f"v_lshl_add_u32 v12, v0, {7 if O.wl128 else 6}, s54")
        e(f"s_mov_b32 s55, 3200000")
        e("v_cmp_gt_u32 vcc, s55, v12")
        e(f"s_movk_i32 s55, {808 if O.wl128 else 1024}")
        e("v_cmp_gt_u32 s[62:63], s55, v0")
        e("s_and_b64 vcc, vcc, s[62:63]")
        e("v_bfrev_b32 v13, 1")
        e("v_cndmask_b32 v12, v13, v12, vcc")
        nl = 808 if O.wl128 else 1616
        npt = len(WL)
        if O.wl128:
            per = (13 + npt - 1) // npt * 64
            for i_ in range(npt):
                e(f"s_movk_i32 s55, {i_ * per}"); e("v_cmp_le_u32 vcc, s55, v0")
                e(f"s_movk_i32 s55, {(i_ + 1) * per}"); e("v_cmp_gt_u32 s[62:63], s55, v0")
                e("s_and_b64 vcc, vcc, s[62:63]")
                e(f"v_cndmask_b32 v{14 + i_}, v13, v12, vcc")
        e(f"s_mov_b32 s55, {hex(WS_G)}")
    wl_i = [0]
    def warm(n, pt=None):
        if WL:
            for i in range(n):
                e(f"buffer_load_dword v23, v{14 + wl_i[0]}, s[{sWS}:{sWS+3}], s55 offen")
                wl_i[0] += 1
            return
        for i in range(n):
            e(f"buffer_load_dwordx4 v[12:15], v45, s[{sWS}:{sWS+3}], s54 offen")
            e("s_add_u32 s54, s54, 16384")
    if not WL:
        e("s_lshr_b32 s54, s2, 3"); e("s_mul_i32 s54, s54, 103424"); e(f"s_add_u32 s54, s54, {hex(WS_G)}")
    warm(WS_[0])
    NW = WS_[0]
    for r in range(4): e(f"v_mov_b32 v{48+r}, -1")
    for r in range(4): e(f"v_mov_b32 v{116+r}, 0")
    e("ds_write_b128 v45, v[48:51]")
    nextra = (L_CNT - 16384) // 16
    e(f"v_cmp_gt_u32 vcc, {nextra}, v0")
    e("s_and_saveexec_b64 s[64:65], vcc")
    e("ds_write_b128 v45, v[48:51] offset:16384")
    e("s_mov_b64 exec, s[64:65]")
    nz = (L_WF - L_CNT) // 16
    e(f"s_movk_i32 s62, {nz}")
    e("v_cmp_gt_u32 vcc, s62, v0")
    e("s_and_saveexec_b64 s[64:65], vcc")
    e(f"ds_write_b128 v45, v[116:119] offset:{L_CNT}")
    e("s_mov_b64 exec, s[64:65]")
    e("s_movk_i32 s62, 800")
    e("v_cmp_gt_u32 vcc, s62, v0")
    e(f"s_mov_b64 s[{sM800}:{sM800+1}], vcc")
    e(f"v_and_b32 v96, 7, v{vLANE}")
    e(f"v_lshlrev_b32 v{vL16}, 4, v96")
    e("v_lshrrev_b32 v97, 1, v96")
    e("v_and_b32 v98, 1, v96")
    e("v_lshlrev_b32 v98, 4, v98")
    e("v_mov_b32 v99, 0x3f80")
    e("v_lshlrev_b32 v99, v98, v99")
    e(f"v_lshrrev_b32 v100, 4, v{vLANE}")
    e(f"v_bfe_u32 v101, v{vLANE}, 3, 1")
    e("v_add_u32 v102, 2, v101")
    e("v_cmp_eq_u32 s[62:63], v100, v101")
    e("v_cmp_eq_u32 s[64:65], v100, v102")
    for r in range(4):
        e(f"v_cmp_eq_u32 vcc, {r}, v97")
        e(f"s_and_b64 s[68:69], vcc, s[62:63]")
        e(f"v_cndmask_b32 v{vA1+r}, 0, v99, s[68:69]")
        e(f"s_and_b64 s[68:69], vcc, s[64:65]")
        e(f"v_cndmask_b32 v{vA2+r}, 0, v99, s[68:69]")
    e("v_lshrrev_b32 v103, 1, v100")
    e("v_lshl_add_u32 v126, v103, 1, v101")
    e("v_and_b32 v103, 1, v100")
    e("v_lshl_add_u32 v127, v103, 2, v126")
    e(f"v_mov_b32 v{vT1}, {L_FLAG + 16}")
    e("v_lshlrev_b32 v47, 2, v113")
    e("s_movk_i32 s62, 1000")
    e("v_cmp_gt_u32 s[66:67], s62, v0")
    e("v_cmp_eq_u32 s[68:69], 0, v113")
    e("v_mov_b32 v114, 2")
    e("v_mov_b32 v116, 0x3fc")
    if dbg: e("s_memrealtime s[94:95]")
    e("s_waitcnt lgkmcnt(0)")
    if dbg: e("s_memrealtime s[96:97]")
    e("s_barrier")
    if dbg: e("s_memrealtime s[78:79]")
    e(f"s_waitcnt vmcnt({5 + NW})")
    if dbg: e("s_memrealtime s[80:81]")
    warm(WS_[1])
    remA, remA0, remB, remB0, remC, remD = 48, 49, 50, 51, 52, 53
    for (Rr, cn, rem, rem0, remE) in ((RA, 56, remA, remA0, remC), (RB, 57, remB, remB0, remD)):
        e(f"v_mov_b32_dpp v{cn}, v{Rr} quad_perm:[0,0,0,0] row_mask:0xf bank_mask:0xf")
        e(f"v_mov_b32_dpp v{cn}, v{cn} row_shr:4 row_mask:0xf bank_mask:0xa")
        e(f"v_cndmask_b32 v{cn}, 0, v{cn}, s[66:67]")
        e(f"v_min_u32 v58, 31, v{cn}")
        e(f"v_sub_u32 v{rem}, v58, v47")
        e(f"v_add_u32 v{rem}, 1, v{rem}")
        e(f"v_cndmask_b32 v{rem0}, v{rem}, 0, s[68:69]")
        e(f"v_min_u32 v58, 63, v{cn}")
        e(f"v_sub_u32 v{remE}, v58, v47")
        e(f"v_subrev_u32 v{remE}, 31, v{remE}")
    e("v_max_u32 v58, v56, v57")
    e("v_cmp_lt_u32 vcc, 31, v58")
    e(f"s_mov_b32 s{sI1}, 0")
    e("s_cbranch_vccz P_NOEXT")
    e(f"s_mov_b32 s{sI1}, 1")
    e("s_mul_i32 s62, s2, 32000"); e(f"s_add_u32 s62, s62, {hex(WS_EXT)}"); e("s_add_u32 s63, s62, 16000")
    e(f"buffer_load_dwordx4 v[{RC}:{RC+3}], v45, s[{sWS}:{sWS+3}], s62 offen")
    e(f"buffer_load_dwordx4 v[{RD}:{RD+3}], v45, s[{sWS}:{sWS+3}], s63 offen")
    e("v_cmp_lt_u32 vcc, 63, v58")
    e("s_and_saveexec_b64 s[64:65], vcc")
    e("v_mov_b32 v59, 1")
    e(f"v_mov_b32 v58, {L_FLAG}")
    e("ds_write_b32 v58, v59")
    e("s_mov_b64 exec, s[64:65]")
    e("s_waitcnt vmcnt(0)")
    e("P_NOEXT:")
    def forrec(Rr, rem, rem0, fn, pre=None):
        order = (1, 2, 3, 0) if rem0 is not None else (0, 1, 2, 3)
        for u in order:
            if u == 0 and rem0 is not None:
                e("s_mov_b64 exec, -1")
                e(f"v_cmpx_lt_i32 vcc, 0, v{rem0}")
            else:
                e(f"v_cmpx_lt_i32 vcc, {u}, v{rem}")
            fn(Rr + u, u)
        e("s_mov_b64 exec, -1")
    sets = ((RA, remA, remA0, 0), (RB, remB, remB0, 4), (RC, remC, None, 8), (RD, remD, None, 12))
    def atom(k):
        Rr, rem, rem0, ob = sets[k]
        def fn(r, u):
            e(f"v_and_b32_sdwa v20, v{r}, v116 dst_sel:DWORD dst_unused:UNUSED_PAD src0_sel:WORD_1 src1_sel:DWORD")
            e(f"v_lshrrev_b32 v21, 26, v{r}")
            e(f"v_lshlrev_b32 v21, v21, v114")
            e(f"ds_add_rtn_u32 v{OLD+ob+u}, v20, v21 offset:{L_CNT}")
        forrec(Rr, rem, rem0, fn)
    atom(0); atom(1)
    e(f"s_cmp_eq_u32 s{sI1}, 0"); e("s_cbranch_scc1 P_AT_D")
    atom(2); atom(3)
    e("P_AT_D:")
    e(f"s_waitcnt vmcnt({NW + WS_[1]})")
    warm(WS_[2])
    e(f"ds_write_b128 v45, v[60:63] offset:{L_WF}")
    e(f"ds_write_b128 v41, v[36:39] offset:{L_WF + 16384}")
    e("v_lshlrev_b32 v118, 3, v112")
    e("v_lshlrev_b32 v55, 16, v55")
    rstat(g, 32, 36, 37, 38)
    e(f"s_movk_i32 s66, {TOKNODE}")
    e("v_mul_u32_u24 v37, s66, v121")
    e("v_lshl_add_u32 v37, v113, 4, v37")
    e("v_lshlrev_b32 v38, 5, v121")
    e(f"s_movk_i32 s66, {NODEB}")
    e(f"v_mov_b32 v62, {L_STREAM + NODEB - 2}")
    e("v_mad_u32_u24 v62, v121, s66, v62")
    e("v_lshlrev_b32 v63, 2, v121")
    e("v_lshrrev_b32 v59, 3, v121")
    e("v_lshlrev_b32 v59, 2, v59")
    e(f"s_mov_b64 exec, s[{sM800}:{sM800+1}]")
    e(f"ds_write_b128 v37, v[32:35] offset:{L_TOK}")
    e("v_cmp_eq_u32 vcc, 0, v113")
    e("s_and_b64 s[68:69], exec, vcc")
    e("s_mov_b64 exec, s[68:69]")
    e(f"ds_write_b32 v38, v36 offset:{L_R}")
    e(f"ds_write_b32 v63, v112 offset:{L_NODEOF}")
    e(f"ds_write_b32 v63, v55 offset:{L_DISF}")
    e("s_mov_b64 exec, -1")
    e("s_waitcnt lgkmcnt(0)")
    e("s_barrier")
    if dbg: e("s_memrealtime s[82:83]")
    e("s_mov_b64 exec, s[68:69]")
    e("s_cbranch_execz P_RK_D")
    e(f"ds_read_b64 v[56:57], v118 offset:{L_CNT}")
    e("s_mov_b32 s66, 0x10001")
    e(f"s_movk_i32 s67, {2*PMAX}")
    e("s_waitcnt lgkmcnt(0)")
    e("v_sub_u32 v46, v62, v57")
    e("v_lshrrev_b32 v47, 16, v56")
    e("v_sub_u32 v47, v46, v47")
    e("v_and_b32 v47, 0xffff, v47")
    e("v_lshl_or_b32 v46, v46, 16, v47")
    e("v_mov_b32 v47, v62")
    e(f"ds_write_b64 v118, v[46:47] offset:{L_INFO}")
    e("v_dot2_u32_u16 v58, v56, s66, v57")
    e(f"ds_max_u32 v59, v58 offset:{L_GINFO}")
    e("v_cmp_lt_u32 vcc, s67, v58")
    e("s_and_b64 exec, exec, vcc")
    e("v_mov_b32 v63, 1")
    e(f"v_mov_b32 v62, {L_FLAG}")
    e("ds_write_b32 v62, v63")
    e("P_RK_D:")
    e("s_mov_b64 exec, -1")
    e(f"v_mov_b32 v60, {L_FLAG}")
    e("s_waitcnt lgkmcnt(0)")
    e("s_barrier")
    if dbg: e("s_memrealtime s[84:85]")
    warm(WS_[4])
    e("ds_read_b32 v61, v60")
    INF = 96
    e("v_mov_b32 v116, 0x3fe")
    def place_rd(k):
        Rr, rem, rem0, ob = sets[k]
        for u in range(4):
            e(f"v_and_b32_sdwa v115, v{Rr+u}, v116 dst_sel:DWORD dst_unused:UNUSED_PAD src0_sel:WORD_1 src1_sel:DWORD")
            e(f"ds_read_u16 v{INF+ob+u}, v115 offset:{L_INFO}")
    def place(k):
        Rr, rem, rem0, ob = sets[k]
        for u in range(4):
            e(f"v_lshrrev_b32 v115, 26, v{Rr+u}")
            e(f"v_bfe_u32 v{OLD+ob+u}, v{OLD+ob+u}, v115, 16")
            e(f"v_sub_u32 v{OLD+ob+u}, v{INF+ob+u}, v{OLD+ob+u}")
        def fn(r, u):
            e(f"ds_write_b16 v{OLD+ob+u}, v{r}")
        forrec(Rr, rem, rem0, fn)
    place_rd(0); place_rd(1)
    e("s_waitcnt lgkmcnt(8)")
    e(f"v_readfirstlane_b32 s{sSLOW}, v61")
    if O.forceslow:
        e("s_cmp_lt_u32 s2, 3"); e("s_cbranch_scc0 P_NOFS"); e(f"s_mov_b32 s{sSLOW}, 1"); e("P_NOFS:")
    e(f"s_cmp_lg_u32 s{sSLOW}, 0"); e("s_cbranch_scc1 P_PL_D")
    e("s_waitcnt lgkmcnt(4)")
    place(0)
    e("s_waitcnt lgkmcnt(4)")
    place(1)
    e(f"s_cmp_eq_u32 s{sI1}, 0"); e("s_cbranch_scc1 P_PL_D")
    place_rd(2); place_rd(3); e("s_waitcnt lgkmcnt(0)"); place(2); place(3)
    e("P_PL_D:")
    if O.perm:
        pk = 0
        for w, gidx in enumerate(O.perm + [13, 14, 15]): pk |= gidx << (4 * w)
        e(f"s_mov_b32 s62, {hex(pk & 0xffffffff)}"); e(f"s_mov_b32 s63, {hex(pk >> 32)}")
        e("s_lshl_b32 s64, s3, 2"); e("s_lshr_b64 s[62:63], s[62:63], s64"); e("s_and_b32 s3, s62, 15")
    e("s_lshl_b32 s64, s3, 3")
    e("v_add_u32 v72, s64, v126")
    e("v_add_u32 v73, s64, v127")
    e("v_lshlrev_b32 v74, 2, v72")
    e("v_lshlrev_b32 v75, 2, v73")
    e(f"v_lshrrev_b32 v78, 3, v{vLANE}")
    e("v_add_u32 v78, s64, v78")
    e(f"s_movk_i32 s65, {NODEB}")
    e(f"v_mul_u32_u24 v{vIDXA}, s65, v78")
    e("s_movk_i32 s66, 100")
    e("v_cmp_gt_u32 vcc, s66, v73")
    e(f"s_mov_b64 s[{sVALID}:{sVALID+1}], vcc")
    e(f"s_movk_i32 s64, {TOKNODE}")
    e(f"v_mul_u32_u24 v{vTOKA}, s64, v73")
    e(f"v_lshlrev_b32 v{vRA}, 5, v73")
    e(f"v_add_u32 v{vRA}, {L_R}, v{vRA}")
    e(f"v_add_u32 v{vTOKA}, v{vTOKA}, v{vL16}")
    e(f"v_add_u32 v{vTOKA}, {L_TOK}, v{vTOKA}")
    e("s_lshl_b32 s62, s3, 2")
    e("v_mov_b32 v76, s62")
    e("s_waitcnt lgkmcnt(0)")
    e("s_barrier")
    if not WL: e("s_waitcnt vmcnt(0)")
    if dbg: e("s_memrealtime s[86:87]")
    if O.fbench:
        e("s_memrealtime s[62:63]")
        e("s_lshl_b32 s64, s2, 4"); e("s_add_u32 s64, s64, s3"); e("s_lshl_b32 s64, s64, 5")
        e(f"s_add_u32 s64, s64, 7"); e("s_lshl_b32 s64, s64, 3")
        e(f"s_add_u32 s64, s64, {hex(WS_STAMP)}")
        e("s_waitcnt lgkmcnt(0)")
        e("s_mov_b64 exec, 1")
        e(f"v_mov_b32 v32, s62"); e(f"v_mov_b32 v33, 0"); e(f"v_mov_b32 v34, s64")
        e(f"buffer_store_dwordx2 v[32:33], v34, s[{sWS}:{sWS+3}], 0 offen")
        e("s_mov_b64 exec, -1")
        e(f"s_cmp_ge_u32 s3, {O.fwaves}"); e("s_cbranch_scc1 P_END")
        e("s_branch F_HELP")
    e(f"s_cmp_ge_u32 s3, {NGRP}")
    e("s_cbranch_scc1 F_HELP")
    e(f"s_setprio {O.gprio}")
    e(f"ds_read_b32 v64, v76 offset:{L_GINFO}")
    e(f"ds_read_b32 v77, v75 offset:{L_NODEOF}")
    e(f"ds_read_b32 v{vDIS1}, v74 offset:{L_DISF}")
    e(f"ds_read_b32 v{vDIS2}, v74 offset:{L_DISF+16}")
    e(f"ds_read_b32 v{vDIS3}, v75 offset:{L_DISF}")
    for i in range(RING): e(f"v_mov_b32 v{vOFF+i}, 0x7ffffff0")
    e(f"s_mov_b32 s{sK}, 1")
    e(f"s_mov_b32 s{sT0}, 0")
    e(f"s_mov_b32 s{sGI+2}, 3200000"); e(f"s_mov_b32 s{sGI+3}, {SRD3}")
    e(f"s_mov_b32 s{sGO+2}, 3200000"); e(f"s_mov_b32 s{sGO+3}, {SRD3}")
    e(f"s_add_u32 s{sGO}, s12, {hex(WS_G)}"); e(f"s_addc_u32 s{sGO+1}, s13, 0")
    e(f"s_mov_b32 s{sPOI}, {hex(WS_G + 2 * WS_GS)}")
    for r in range(4): e(f"v_mov_b32 v{vX+r}, -1")
    e("s_mul_i32 s64, s2, 100")
    e("s_waitcnt lgkmcnt(0)")
    e("v_readfirstlane_b32 s65, v64")
    e("s_lshr_b32 s65, s65, 1")
    e("v_add_u32 v77, s64, v77")
    e(f"v_lshl_add_u32 v{vGOFF}, v77, 7, v{vL16}")
    e("s_max_u32 s65, s65, 1")
    e(f"s_min_u32 s65, s65, {PMAX}")
    e(f"s_sub_u32 s{sP0}, {PMAX}, s65")
    e(f"s_mov_b64 exec, s[{sVALID}:{sVALID+1}]")
    e(f"buffer_store_dwordx4 v[{vX}:{vX+3}], v{vGOFF}, s[{sWS}:{sWS+3}], s{sPOI} offen{O.stp}")
    e("s_mov_b64 exec, -1")
    e(f"s_add_u32 s{sPOI}, s{sPOI}, {hex(WS_GS)}")
    def stamp(idx, val, pre=None):
        if pre is None: e("s_memrealtime s[62:63]")
        else: e(f"s_mov_b32 s62, s{pre}")
        e("s_lshl_b32 s64, s2, 4"); e("s_add_u32 s64, s64, s3"); e("s_lshl_b32 s64, s64, 5")
        e(f"s_add_u32 s64, s64, {idx}"); e("s_lshl_b32 s64, s64, 3")
        e(f"s_add_u32 s64, s64, {hex(WS_STAMP)}")
        e("s_waitcnt lgkmcnt(0)")
        e("s_mov_b64 exec, 1")
        e(f"v_mov_b32 v32, s62"); e(f"v_mov_b32 v33, {val}"); e(f"v_mov_b32 v34, s64")
        e(f"buffer_store_dwordx2 v[32:33], v34, s[{sWS}:{sWS+3}], 0 offen")
        e("s_mov_b64 exec, -1")
    if dbg:
        stamp("0", f"s{sP0}")
        stamp("8", f"s{sP0}", pre=90)
        for i, r in enumerate((78, 80, 82, 84, 86, 92, 94, 96)): stamp(str(10 + i), f"s{sP0}", pre=r)
    e("P_HOP:")
    e(f"s_mov_b32 s{sGI}, s{sGO}"); e(f"s_mov_b32 s{sGI+1}, s{sGO+1}")
    e(f"s_add_u32 s{sGO}, s{sGO}, {hex(WS_GS)}"); e(f"s_addc_u32 s{sGO+1}, s{sGO+1}, 0")
    e(f"s_mov_b32 s{sTRY}, 0")
    e(f"s_mov_b32 s{sGTRY}, 0")
    e(f"s_cmp_lg_u32 s{sSLOW}, 0")
    e("s_cbranch_scc1 P_SLOWG")
    for i in range(8): e(f"v_mov_b32 v{vAC1+i}, 0")
    e(f"s_andn2_b32 s{sI16}, s{sP0}, 15")
    e(f"s_and_b32 s{sS0}, s{sP0}, 15")
    e(f"s_add_u32 s{sEXS}, s{sS0}, 15"); e(f"s_and_b32 s{sEXS}, s{sEXS}, 15")
    e(f"s_lshl_b32 s63, s{sI16}, 1")
    e(f"v_add_u32 v{vIP}, s63, v{vIDXA}")
    e(f"s_lshr_b32 s64, s{sS0}, 3"); e("s_lshl_b32 s64, s64, 5")
    e(f"v_add_u32 v{vT0}, s64, v{vIP}")
    e(f"ds_read_b128 v[{vX}:{vX+3}], v{vT0}")
    e(f"ds_read_b128 v[{vY}:{vY+3}], v{vIP} offset:16")
    if O.p7:
        e(f"s_cmp_eq_u32 s{sK}, 7"); e("s_cbranch_scc0 NOP7")
        e(f"s_mov_b32 s62, {sum(int(c) << (2 * i) for i, c in enumerate(O.p7))}")
        e("s_lshl_b32 s63, s3, 1"); e("s_lshr_b32 s62, s62, s63"); e("s_and_b32 s62, s62, 3")
        for pv in range(3):
            e(f"s_cmp_eq_u32 s62, {pv}"); e(f"s_cbranch_scc0 P7_{pv}"); e(f"s_setprio {pv}"); e("s_branch NOP7"); e(f"P7_{pv}:")
        e("s_setprio 3")
        e("NOP7:")
    e("GW1:")
    e(f"ds_read_b32 v{vT0}, v{vT1}")
    e("s_waitcnt lgkmcnt(0)")
    e(f"v_readfirstlane_b32 s62, v{vT0}")
    e(f"s_cmp_ge_u32 s62, s{sT0}")
    e("s_cbranch_scc1 GW2")
    e(f"s_add_u32 s{sGTRY}, s{sGTRY}, 1")
    e(f"s_cmp_gt_u32 s{sGTRY}, {TRYMAX*4}")
    e("s_cbranch_scc1 GW2")
    if O.gsleep: e(f"s_sleep {O.gsleep}")
    e("s_branch GW1")
    e("GW2:")
    tree(g, sS0, list(range(16)), lambda s: f"PA_{s}")
    def idxld(s):
        if s == 0:
            e("s_waitcnt lgkmcnt(0)"); e(f"ds_read_b128 v[{vY}:{vY+3}], v{vIP} offset:16")
        elif s == 8:
            e("s_waitcnt lgkmcnt(0)"); e(f"ds_read_b128 v[{vX}:{vX+3}], v{vIP} offset:32")
    def issue(s):
        r = (vX if s < 8 else vY) + (s % 8) // 2
        t = vOFF + s; d = vRING + 4 * s
        e(f"v_mad_u32_u16 v{t}, v{r}, s{s128}, v{vL16} op_sel:[{s%2},0,0,0]")
        e(f"buffer_load_dwordx4 v[{d}:{d+3}], v{t}, s[{sGI}:{sGI+3}], 0 offen{O.ld}")
    def check(sl):
        s = vRING + 4 * sl
        e(f"v_max3_u32 v{vT0}, v{s}, v{s+1}, v{s+2}")
        e(f"v_max_u32 v{vT0}, v{vT0}, v{s+3}")
        e(f"v_cmp_eq_u32 vcc, -1, v{vT0}")
    def mfmas(sl):
        s = vRING + 4 * sl
        e(f"v_mfma_f32_16x16x32_bf16 v[{vAC1}:{vAC1+3}], v[{vA1}:{vA1+3}], v[{s}:{s+3}], v[{vAC1}:{vAC1+3}]")
        e(f"v_mfma_f32_16x16x32_bf16 v[{vAC2}:{vAC2+3}], v[{vA2}:{vA2+3}], v[{s}:{s+3}], v[{vAC2}:{vAC2+3}]")
    def wrap():
        e(f"s_add_u32 s{sI16}, s{sI16}, 16")
        e(f"v_add_u32 v{vIP}, 32, v{vIP}")
    for s in range(16):
        e(f"PA_{s}:")
        idxld(s)
        issue(s)
        if s < 15:
            e(f"s_cmp_eq_u32 s{sEXS}, {s}"); e(f"s_cbranch_scc1 PB_{s+1}")
        else:
            e(f"s_cmp_eq_u32 s{sI16}, {PMAX-16}"); e("s_cbranch_scc1 PA_END")
            wrap()
            e(f"s_cmp_eq_u32 s{sEXS}, 15"); e("s_cbranch_scc0 PA_0")
    for s in range(16):
        e(f"PB_{s}:")
        e("s_waitcnt vmcnt(15)")
        check(s)
        e(f"s_cbranch_vccnz STB_{s}")
        e(f"RTB_{s}:")
        mfmas(s)
        idxld(s)
        issue(s)
    wrap()
    e(f"s_cmp_lt_u32 s{sI16}, {PMAX}"); e("s_cbranch_scc1 PB_0")
    for s in range(16):
        e(f"PD_{s}:")
        e(f"s_waitcnt vmcnt({15-s})")
        check(s)
        e(f"s_cbranch_vccnz STD_{s}")
        e(f"RTD_{s}:")
        mfmas(s)
    e("s_branch P_FLUSH")
    e("PA_END:")
    tree(g, sS0, list(range(16)), lambda s: f"PD_{s}")
    for s in range(16):
        for t in "BD":
            e(f"ST{t}_{s}:")
            e(f"s_call_b64 s[{sRET}:{sRET+1}], POLL_{s}")
            e(f"s_branch RT{t}_{s}")
    for sl in range(RING):
        s = vRING + 4 * sl
        e(f"POLL_{sl}:")
        e(f"s_add_u32 s{sTRY}, s{sTRY}, 1")
        e(f"s_cmp_gt_u32 s{sTRY}, {TRYMAX}")
        e("s_cbranch_scc1 P_RET")
        if O.sleep: e(f"s_sleep {O.sleep}")
        e("s_mov_b64 exec, vcc")
        e(f"buffer_load_dwordx4 v[{s}:{s+3}], v{vOFF+sl}, s[{sGI}:{sGI+3}], 0 offen{SC}")
        e("s_mov_b64 exec, -1")
        e("s_waitcnt vmcnt(0)")
        check(sl)
        e(f"s_cbranch_vccnz POLL_{sl}")
        if sl < RING - 1: e("s_branch P_REFRESH")
    e("P_REFRESH:")
    for sl in range(RING):
        s = vRING + 4 * sl
        l = g.lab("RF")
        check(sl)
        e(f"s_cbranch_vccz {l}")
        e("s_mov_b64 exec, vcc")
        e(f"buffer_load_dwordx4 v[{s}:{s+3}], v{vOFF+sl}, s[{sGI}:{sGI+3}], 0 offen{SC}")
        e("s_mov_b64 exec, -1")
        e(f"{l}:")
    e("s_waitcnt vmcnt(0)")
    e("P_RET:")
    e(f"s_setpc_b64 s[{sRET}:{sRET+1}] ; @to " + " ".join(f"RT{t}_{p}" for t in "BD" for p in range(16)))
    e("P_FLUSH:")
    if dbg:
        stamp(f"s{sK}", f"s{sTRY}")
    H = vF
    for b in range(4):
        e(f"v_mul_f32 v{vAC1+b}, v{vAC1+b}, v{vDIS1}")
        e(f"v_mul_f32 v{vAC2+b}, v{vAC2+b}, v{vDIS2}")
    e(f"v_cvt_pk_bf16_f32 v{H}, v{vAC1}, v{vAC1+1}")
    e(f"v_cvt_pk_bf16_f32 v{H+1}, v{vAC1+2}, v{vAC1+3}")
    e(f"v_cvt_pk_bf16_f32 v{H+2}, v{vAC2}, v{vAC2+1}")
    e(f"v_cvt_pk_bf16_f32 v{H+3}, v{vAC2+2}, v{vAC2+3}")
    e(f"v_permlane16_swap_b32 v{H}, v{H+2}")
    e(f"v_permlane16_swap_b32 v{H+1}, v{H+3}")
    e(f"s_mov_b64 exec, s[{sVALID}:{sVALID+1}]")
    e(f"s_cmp_eq_u32 s{sK}, 7")
    e("s_cbranch_scc1 P_NOG")
    G = vF + 4
    for r in range(4):
        e(f"v_lshlrev_b32 v{vF+8}, 16, v{H+r}")
        e(f"v_and_b32 v{vF+9}, 0xffff0000, v{H+r}")
        e(f"v_mul_f32 v{vF+8}, v{vF+8}, v{vDIS3}")
        e(f"v_mul_f32 v{vF+9}, v{vF+9}, v{vDIS3}")
        e(f"v_cvt_pk_bf16_f32 v{G+r}, v{vF+8}, v{vF+9}")
        e(f"v_min_u32 v{G+r}, -2, v{G+r}")
    e(f"buffer_store_dwordx4 v[{G}:{G+3}], v{vGOFF}, s[{sGO}:{sGO+3}], 0 offen{O.stg}")
    e("s_mov_b64 exec, 1")
    e(f"v_mov_b32 v{vF+12}, 1")
    e(f"ds_add_u32 v{vT1}, v{vF+12}")
    e(f"s_mov_b64 exec, s[{sVALID}:{sVALID+1}]")
    e(f"s_cmp_gt_u32 s{sK}, 4")
    e("s_cbranch_scc1 P_NOG")
    for r in range(4): e(f"v_mov_b32 v{vX+r}, -1")
    e(f"buffer_store_dwordx4 v[{vX}:{vX+3}], v{vGOFF}, s[{sWS}:{sWS+3}], s{sPOI} offen{O.stp}")
    e(f"s_add_u32 s{sPOI}, s{sPOI}, {hex(WS_GS)}")
    e("P_NOG:")
    e(f"s_mul_i32 s62, s{sK}, {TOKROW}")
    e(f"v_add_u32 v{vF+10}, s62, v{vTOKA}")
    e(f"ds_write_b128 v{vF+10}, v[{H}:{H+3}]")
    e(f"v_add_u32 v{vRA}, 4, v{vRA}")
    rstat(g, H, vF + 12, vF + 13, vF + 14)
    e(f"ds_write_b32 v{vRA}, v{vF+12}")
    e("s_mov_b64 exec, -1")
    e(f"s_add_u32 s{sT0}, s{sT0}, {NGRP}")
    if O.relax:
        e(f"s_cmp_eq_u32 s{sK}, 1"); e("s_cbranch_scc0 RLX"); e(f"s_sub_u32 s{sT0}, s{sT0}, {O.relax}"); e("RLX:")
    e(f"s_add_u32 s{sK}, s{sK}, 1")
    e(f"s_cmp_le_u32 s{sK}, {O.nhops}")
    e("s_cbranch_scc1 P_HOP")
    final7.gen_final(g)
    if dbg:
        stamp("9", f"s{final7.sC+5}")
    e("s_branch P_END")
    e("P_SLOWG:")
    e(f"v_lshrrev_b32 v{vT0}, 3, v{vLANE}")
    e("s_lshl_b32 s62, s3, 5")
    e(f"s_add_u32 s62, s62, {L_NODEOF}")
    e(f"v_lshl_add_u32 v39, v{vT0}, 2, s62")
    e(f"ds_read_b32 v40, v39")
    e("s_lshl_b32 s62, s3, 3")
    e(f"v_add_u32 v{vT0}, s62, v{vT0}")
    e("s_mul_i32 s62, s2, 100")
    e("s_movk_i32 s63, 100")
    e(f"v_cmp_gt_u32 vcc, s63, v{vT0}")
    for i in range(8): e(f"v_mov_b32 v{vAC1+i}, 0")
    e(f"v_lshlrev_b32 v41, 4, v{vLANE}")
    srd(g, 80, 6, 7, 3200000)
    srd(g, 84, 8, 9, 3200000)
    e("s_waitcnt lgkmcnt(0)")
    e("v_add_u32 v40, s62, v40")
    e("v_cndmask_b32 v40, -1, v40, vcc")
    e("s_mov_b32 s66, 0")
    e("SG_CHUNK:")
    e("buffer_load_dwordx4 v[44:47], v41, s[84:87], s66 offen")
    e("buffer_load_dwordx4 v[48:51], v41, s[80:83], s66 offen")
    e("s_waitcnt vmcnt(0)")
    for u in range(4):
        e("s_mov_b32 s67, 0")
        e(f"SG_R{u}:")
        e("v_readlane_b32 s68, v40, s67")
        e("s_mov_b64 s[62:63], 0xff")
        e("s_lshl_b64 s[62:63], s[62:63], s67")
        e(f"v_cmp_eq_u32 s[64:65], s68, v{44+u}")
        e(f"SG_E{u}:")
        e("s_cmp_eq_u64 s[64:65], 0")
        e(f"s_cbranch_scc1 SG_N{u}")
        e("s_ff1_i32_b64 s69, s[64:65]")
        e("s_bitset0_b64 s[64:65], s69")
        e(f"v_readlane_b32 s68, v{48+u}, s69")
        e("s_lshl_b32 s68, s68, 7")
        e(f"v_add_u32 v42, s68, v{vL16}")
        e("v_mov_b32 v43, 0x7ffffff0")
        e("v_cndmask_b32 v42, v43, v42, s[62:63]")
        e(f"SG_P{u}:")
        e(f"buffer_load_dwordx4 v[52:55], v42, s[{sGI}:{sGI+3}], 0 offen{SC}")
        e("s_waitcnt vmcnt(0)")
        e(f"v_max3_u32 v{vT0}, v52, v53, v54")
        e(f"v_max_u32 v{vT0}, v{vT0}, v55")
        e(f"v_cmp_eq_u32 vcc, -1, v{vT0}")
        e(f"s_cbranch_vccz SG_A{u}")
        e(f"s_add_u32 s{sTRY}, s{sTRY}, 1")
        e(f"s_cmp_gt_u32 s{sTRY}, {TRYMAX}")
        e(f"s_cbranch_scc1 SG_A{u}")
        e("s_sleep 8")
        e(f"s_branch SG_P{u}")
        e(f"SG_A{u}:")
        e(f"v_mfma_f32_16x16x32_bf16 v[{vAC1}:{vAC1+3}], v[{vA1}:{vA1+3}], v[52:55], v[{vAC1}:{vAC1+3}]")
        e(f"v_mfma_f32_16x16x32_bf16 v[{vAC2}:{vAC2+3}], v[{vA2}:{vA2+3}], v[52:55], v[{vAC2}:{vAC2+3}]")
        e(f"s_branch SG_E{u}")
        e(f"SG_N{u}:")
        e("s_add_u32 s67, s67, 8")
        e("s_cmp_lt_u32 s67, 64")
        e(f"s_cbranch_scc1 SG_R{u}")
    e("s_add_u32 s66, s66, 1024")
    e("s_cmp_lt_u32 s66, 3200000")
    e("s_cbranch_scc1 SG_CHUNK")
    e("s_branch P_FLUSH")
    e("F_HELP:")
    e("s_waitcnt vmcnt(0)")
    final7.gen_lc(g)
    e("s_branch F_SETUP")
    e("P_END:")
    e("s_endpgm")

def build(path):
    g = Gen()
    gen_k1(g)
    gen_p(g)
    kernel_desc(g, "bin_kernel", 96, 64)
    kernel_desc(g, "graph_kernel", 128, 100)
    launches = [f"; @launch kernel=bin_kernel grid=({NB+1},1,1) block=(1024,1,1) lds={K1_LDS}",
                f"; @launch kernel=graph_kernel grid=({NB},1,1) block=(1024,1,1) lds={P_LDS}"]
    s = finish(g, launches, "gather_scatter__hybrid_graph_tf_nagphormer__graph.s.ref")
    open(path, "w").write(s)
    return s

if __name__ == "__main__":
    import argparse
    ap = argparse.ArgumentParser()
    ap.add_argument("out")
    for f in ("dbgstat", "forceslow"): ap.add_argument("--" + f, action="store_true")
    ap.add_argument("--sleep", type=int, default=2); ap.add_argument("--gsleep", type=int, default=1)
    ap.add_argument("--nhops", type=int, default=7)
    ap.add_argument("--perm", default=None); ap.add_argument("--p7", default=None)
    ap.add_argument("--stp", default="sc1"); ap.add_argument("--stg", default="sc1"); ap.add_argument("--k1st", default="sc1")
    ap.add_argument("--gprio", type=int, default=3); ap.add_argument("--fsleep", type=int, default=2)
    ap.add_argument("--fbench", type=int, default=0); ap.add_argument("--fwaves", type=int, default=16); ap.add_argument("--fx", default="")
    ap.add_argument("--wsch", default="0,0,0,0,0"); ap.add_argument("--thr", default="30,35")
    ap.add_argument("--fv", type=int, default=1); ap.add_argument("--torder", default=None)
    ap.add_argument("--relax", type=int, default=0)
    ap.add_argument("--wl", default=None)
    a = ap.parse_args()
    O.relax = a.relax
    O.wl = sorted(int(x) for x in a.wl.split(",")) if a.wl else None
    O.gprio = a.gprio; O.fsleep = a.fsleep; O.fbench = a.fbench; O.fwaves = a.fwaves; O.fx = a.fx; O.fv = a.fv
    O.stp = " " + a.stp.replace("_", " "); O.stg = " " + a.stg.replace("_", " "); O.k1st = (" " + a.k1st.replace("_", " ")) if a.k1st else ""
    O.thr = tuple(int(x) for x in a.thr.split(","))
    O.wsch = tuple(int(x) for x in a.wsch.split(','))
    O.dbgstat = a.dbgstat; O.forceslow = a.forceslow
    O.sleep = a.sleep; O.gsleep = a.gsleep; O.nhops = a.nhops; O.p7 = a.p7
    O.perm = [int(x) for x in a.perm.split(",")] if a.perm else None
    O.torder = [int(x) for x in a.torder.split(",")] if a.torder else None
    build(a.out)
    print("P_LDS", P_LDS)
```
